```python
import torch

def _softmax(x, axis=-1):
    return torch.softmax(x, dim=axis)
def _gelu(x):
    return torch.nn.functional.gelu(x, approximate="tanh")
def _silu(x):
    return torch.nn.functional.silu(x)
def _sigmoid(x):
    return torch.sigmoid(x)
def _layernorm(x, axis=-1, eps=1e-5):
    m = x.mean(dim=axis, keepdim=True)
    v = x.var(dim=axis, keepdim=True, unbiased=False)
    return (x - m) / torch.sqrt(v + eps)
def _scatter_add(tgt, idx, src, axis=0):
    return tgt.clone().index_add_(axis, idx, src)
def _segment_sum(src, seg, n):
    out = torch.zeros((n,) + src.shape[1:], dtype=src.dtype)
    return out.index_add_(0, seg, src)
def _pad(x, pw):
    flat = tuple(v for pair in reversed(pw) for v in pair)
    return torch.nn.functional.pad(x, flat)

kernel_name = 'standalone__weight_only_int_quip__sampling'

def setup_inputs():

    _w = (lambda a: (lambda t: t.to(torch.bfloat16) if t.is_floating_point() else t)(torch.as_tensor(a)))
    B, S, D, F = 32, 8, 1024, 3584
    G = 64 if 64 > 0 else D
    D = (D // G) * G
    ng = D // G
    bits = 4 if 4 > 0 else 4
    qmax = 1 << bits
    qw = torch.randint(0, qmax, (D, F)).to(torch.int32)
    U, _ = (lambda *_a, **_k: torch.linalg.qr(*[torch.as_tensor(_x).float() for _x in _a], **_k))((lambda *s: torch.randn(*s, dtype=torch.bfloat16) * 0.05)(D, D))
    V, _ = (lambda *_a, **_k: torch.linalg.qr(*[torch.as_tensor(_x).float() for _x in _a], **_k))((lambda *s: torch.randn(*s, dtype=torch.bfloat16) * 0.05)(F, F))
    return {
        "x": _w((lambda *s: torch.randn(*s, dtype=torch.bfloat16) * 0.05)(B, S, D)),
        "qw": _w(qw),
        "scales": _w(torch.abs((lambda *s: torch.randn(*s, dtype=torch.bfloat16) * 0.05)(ng, F)) * 0.02 + 0.005),
        "zeros": _w(torch.full((ng, F), qmax / 2.0, dtype=float)),
        "U": _w(U.to(float)),
        "V": _w(V.to(float)),
    }

def reference(x, qw, scales, zeros, U, V):
    B, S, D = x.shape
    ng, F = scales.shape
    G = D // ng
    s = (lambda x, n, axis: torch.repeat_interleave(x, n, dim=axis))(scales, G, axis=0)
    z = (lambda x, n, axis: torch.repeat_interleave(x, n, dim=axis))(zeros, G, axis=0)
    wq = ((lambda x, dt: x.to(dt))(qw, x.dtype) - z) * s
    xr = torch.einsum("bsd,de->bse", x, U)
    h  = torch.einsum("bse,ef->bsf", xr, wq)
    y  = torch.einsum("bsf,fg->bsg", h, V)
    return y
```

```python
class Asm:
    def __init__(self):
        self.lines = []
    def __call__(self, s=""):
        self.lines.append("    " + s if s and not s.endswith(":") else s)
    def raw(self, s):
        self.lines.append(s)
    def label(self, s):
        self.lines.append(s + ":")
    def c(self, s):
        self.lines.append("    ; " + s)
    def text(self):
        return "\n".join(self.lines) + "\n"

def vr(b, n=1, p="v"):
    return f"{p}{b}" if n == 1 else f"{p}[{b}:{b+n-1}]"
def ar(b, n=1):
    return vr(b, n, "a")
def sr(b, n=1):
    return vr(b, n, "s")

HEADER = """; Kernarg layout for this problem (72 bytes, ptrs only, base s[0:1]):
"""

X_BYTES = 256*1024*2
QW_BYTES = 1024*3584*4
SC_BYTES = 16*3584*2
U_BYTES = 1024*1024*2
V_BYTES = 3584*3584*2
OUT_BYTES = 256*3584*2

def kernel_begin(a, name):
    a.raw(".text")
    a.raw(f".globl {name}")
    a.raw(".p2align 8")
    a.raw(f".type {name},@function")
    a.raw(f"{name}:")

def kernel_desc(a, name, nvgpr, nsgpr, accum):
    a.raw('.section .rodata,"a"')
    a.raw(".p2align 6")
    a.raw(f".amdhsa_kernel {name}")
    a.raw(f"  .amdhsa_next_free_vgpr {nvgpr}")
    a.raw(f"  .amdhsa_next_free_sgpr {nsgpr}")
    a.raw(f"  .amdhsa_accum_offset {accum}")
    a.raw("  .amdhsa_group_segment_fixed_size 0")
    a.raw("  .amdhsa_kernarg_size 72")
    a.raw("  .amdhsa_user_sgpr_count 2")
    a.raw("  .amdhsa_user_sgpr_kernarg_segment_ptr 1")
    a.raw("  .amdhsa_system_sgpr_workgroup_id_x 1")
    a.raw(".end_amdhsa_kernel")

def srd(a, d, base, nbytes, off=0):
    if off:
        a(f"s_add_u32 s{d}, s{base}, {hex(off)}")
        a(f"s_addc_u32 s{d+1}, s{base+1}, 0")
        a(f"s_and_b32 s{d+1}, s{d+1}, 0xffff")
    else:
        a(f"s_mov_b32 s{d}, s{base}")
        a(f"s_and_b32 s{d+1}, s{base+1}, 0xffff")
    a(f"s_mov_b32 s{d+2}, {hex(nbytes)}")
    a(f"s_mov_b32 s{d+3}, 0x20000")
```

```python
import sys
from asmlib import *

XR_OFF = 0
XR_BYTES = 256*1024*2
H_OFF = 1 << 20
H_BYTES = 256*3584*2

def common_ids(a):
    a("v_lshrrev_b32 v4, 6, v0")
    a("v_and_b32 v1, 63, v0")
    a("v_readfirstlane_b32 s4, v4")
    a("v_lshrrev_b32 v2, 4, v1")
    a("v_and_b32 v3, 15, v1")

def pi_c(a, dst, c, tmp):
    a(f"v_lshrrev_b32 {dst}, 2, {c}")
    a(f"v_lshlrev_b32 {dst}, 1, {dst}")
    a(f"v_and_b32 {tmp}, 1, {c}")
    a(f"v_or_b32 {dst}, {dst}, {tmp}")
    a(f"v_and_b32 {tmp}, 2, {c}")
    a(f"v_lshlrev_b32 {tmp}, 2, {tmp}")
    a(f"v_or_b32 {dst}, {dst}, {tmp}")

def k1(a):
    name = "p1_kernel"
    kernel_begin(a, name)
    a("s_cmp_ge_u32 s2, 256")
    a("s_cbranch_scc1 P1_done")
    a("s_load_dwordx2 s[6:7], s[0:1], 0")
    a("s_load_dwordx2 s[8:9], s[0:1], 32")
    a("s_load_dwordx2 s[10:11], s[0:1], 64")
    common_ids(a)
    a("s_and_b32 s12, s2, 7")
    a("s_lshl_b32 s12, s12, 2")
    a("s_lshr_b32 s5, s2, 3")
    a("s_and_b32 s13, s5, 3")
    a("s_add_u32 s12, s12, s13")
    a("s_lshr_b32 s13, s5, 2")
    a("s_waitcnt lgkmcnt(0)")
    srd(a, 16, 6, X_BYTES)
    srd(a, 20, 8, U_BYTES)
    srd(a, 24, 10, XR_BYTES, XR_OFF)
    a("s_lshl_b32 s14, s13, 16")
    a("s_lshl_b32 s15, s4, 9")
    a("s_add_u32 s14, s14, s15")
    a("v_lshlrev_b32 v5, 11, v3")
    a("v_lshl_add_u32 v5, v2, 4, v5")
    a("v_add_u32 v5, s14, v5")
    a("v_add_u32 v6, 0x8000, v5")
    a("s_lshl_b32 s14, s4, 19")
    a("s_lshl_b32 s15, s12, 6")
    a("s_add_u32 s14, s14, s15")
    a("v_lshlrev_b32 v7, 14, v2")
    a("v_lshl_add_u32 v7, v3, 2, v7")
    a("v_add_u32 v7, s14, v7")
    XB, UB, FB, AC = 16, 80, 144, 208
    for t in range(8):
        for i in range(8):
            if i % 2 == 0:
                a(f"s_mov_b32 s28, {hex((32*t+i)*2048)}")
            a(f"buffer_load_dword v{UB+8*t+i}, v7, s[20:23], s28 offen offset:{(i%2)*2048}")
        for mi in range(2):
            a(f"buffer_load_dwordx4 {vr(XB+(t*2+mi)*4,4)}, v{5+mi}, s[16:19], 0 offen offset:{t*64}")
    a("s_mov_b32 s30, 0x05040100")
    a("s_mov_b32 s31, 0x07060302")
    for r in range(16):
        a(f"v_mov_b32 v{AC+r}, 0")
    for t in range(8):
        n = (7-t)*10
        a(f"s_waitcnt vmcnt({min(n,63)})")
        for jj in range(2):
            for p in range(4):
                a(f"v_perm_b32 v{FB+t*8+jj*4+p}, v{UB+8*t+2*p+1}, v{UB+8*t+2*p}, s{30+jj}")
        a("s_nop 1")
        for jj in range(2):
            for mi in range(2):
                acc = vr(AC+(jj*2+mi)*4, 4)
                a(f"v_mfma_f32_16x16x32_bf16 {acc}, {vr(FB+t*8+jj*4,4)}, {vr(XB+(t*2+mi)*4,4)}, {acc}")
    a("s_nop 7")
    a("v_lshlrev_b32 v8, 4, v1")
    a("s_lshl_b32 s14, s4, 12")
    a("v_add_u32 v9, s14, v8")
    for q in range(4):
        a(f"ds_write_b128 v9, {vr(AC+q*4,4)} offset:{q*1024}")
    a("s_waitcnt lgkmcnt(0)")
    a("s_barrier")
    a("s_cmp_ge_u32 s4, 2")
    a("s_cbranch_scc1 P1_done")
    a("s_lshl_b32 s14, s4, 10")
    a("v_add_u32 v9, s14, v8")
    for w in range(4):
        for jj in range(2):
            a(f"ds_read_b128 {vr(16+(w*2+jj)*4,4)}, v9 offset:{w*4096+jj*2048}")
    a("s_waitcnt lgkmcnt(0)")
    for jj in range(2):
        for r in range(4):
            d = 16+jj*4+r
            a(f"v_add_f32 v{d}, v{d}, v{d+8}")
            a(f"v_add_f32 v{d+16}, v{d+16}, v{d+24}")
            a(f"v_add_f32 v{d}, v{d}, v{d+16}")
    for r in range(4):
        a(f"v_cvt_pk_bf16_f32 v{48+r}, v{16+r}, v{20+r}")
    a("s_lshr_b32 s14, s13, 1")
    a("s_lshl_b32 s14, s14, 5")
    a("s_add_u32 s14, s14, s12")
    a("s_lshl_b32 s14, s14, 2")
    a("s_and_b32 s15, s13, 1")
    a("s_lshl_b32 s15, s15, 1")
    a("s_add_u32 s14, s14, s15")
    a("s_add_u32 s14, s14, s4")
    a("s_lshl_b32 s14, s14, 10")
    a("buffer_store_dwordx4 v[48:51], v8, s[24:27], s14 offen")
    a.label("P1_done")
    a("s_endpgm")
    kernel_desc(a, name, 256, 40, 256)

def tile_ids(a):
    a("s_and_b32 s12, s2, 7")
    a("s_mul_i32 s12, s12, 7")
    a("s_lshr_b32 s5, s2, 3")
    a("s_and_b32 s13, s5, 3")
    a("s_lshr_b32 s5, s5, 2")
    a("s_add_u32 s12, s12, s5")

def reduce4(a, accpfx, AC, T0):
    a("v_lshlrev_b32 v8, 4, v1")
    a("s_lshl_b32 s14, s4, 14")
    a("v_add_u32 v9, s14, v8")
    for mi in range(4):
        for jj in range(4):
            a(f"ds_write_b128 v9, {vr(AC+(jj*4+mi)*4,4,accpfx)} offset:{(mi*4+jj)*1024}")
    a("s_waitcnt lgkmcnt(0)")
    a("s_barrier")
    a("s_lshl_b32 s14, s4, 12")
    a("v_add_u32 v9, s14, v8")
    for w in range(4):
        for jj in range(4):
            a(f"ds_read_b128 {vr(T0+(w*4+jj)*4,4)}, v9 offset:{w*16384+jj*1024}")
    a("s_waitcnt lgkmcnt(0)")
    for q in range(16):
        d = T0+q
        a(f"v_add_f32 v{d}, v{d}, v{d+16}")
        a(f"v_add_f32 v{d+32}, v{d+32}, v{d+48}")
        a(f"v_add_f32 v{d}, v{d}, v{d+32}")

def pack_pieces(a, T0, P0):
    for f in range(2):
        for rr in range(2):
            r = 2*f+rr
            for h in range(2):
                a(f"v_cvt_pk_bf16_f32 v{P0+f*4+rr*2+h}, v{T0+(2*h)*4+r}, v{T0+(2*h+1)*4+r}")

def k2(a):
    name = "p2_kernel"
    kernel_begin(a, name)
    a("s_cmp_ge_u32 s2, 224")
    a("s_cbranch_scc1 P2_done")
    a("s_load_dwordx2 s[6:7], s[0:1], 8")
    a("s_load_dwordx4 s[8:11], s[0:1], 16")
    a("s_load_dwordx2 s[36:37], s[0:1], 64")
    common_ids(a)
    tile_ids(a)
    pi_c(a, "v10", "v3", "v11")
    a("s_waitcnt lgkmcnt(0)")
    srd(a, 16, 6, QW_BYTES)
    srd(a, 20, 8, SC_BYTES)
    srd(a, 24, 10, SC_BYTES)
    srd(a, 28, 36, XR_BYTES, XR_OFF)
    srd(a, 32, 36, H_BYTES, H_OFF)
    a("s_mul_i32 s14, s4, 28672")
    a("s_lshl_b32 s15, s12, 7")
    a("s_add_u32 s14, s14, s15")
    a("v_lshlrev_b32 v6, 3, v10")
    a("v_add_u32 v6, s14, v6")
    SZ = 12
    for gi in range(4):
        a(f"s_mov_b32 s38, {gi*7168}")
        a(f"buffer_load_dwordx2 {vr(SZ+gi*4,2)}, v6, s[20:23], s38 offen")
        a(f"buffer_load_dwordx2 {vr(SZ+gi*4+2,2)}, v6, s[24:27], s38 offen")
    a(f"s_mul_i32 s14, s4, {256*14336}")
    a("s_lshl_b32 s15, s12, 8")
    a("s_add_u32 s14, s14, s15")
    a(f"v_mul_u32_u24 v5, {8*14336}, v2")
    a("v_lshl_add_u32 v5, v10, 4, v5")
    a("v_add_u32 v5, s14, v5")
    a("s_lshl_b32 s14, s13, 5")
    a("s_lshl_b32 s15, s4, 3")
    a("s_add_u32 s14, s14, s15")
    a("s_lshl_b32 s14, s14, 12")
    a("v_lshlrev_b32 v7, 4, v1")
    a("v_add_u32 v7, s14, v7")
    SF = 28
    WF = 36
    QB = 52
    XB = 148
    DEPTH = 3
    def issue(t):
        b = t % DEPTH
        for i in range(8):
            a(f"s_mov_b32 s38, {hex((32*t+i)*14336)}")
            a(f"buffer_load_dwordx4 {vr(QB+b*32+i*4,4)}, v5, s[16:19], s38 offen")
        a(f"s_mov_b32 s38, {hex(t*4096)}")
        for mi in range(4):
            a(f"buffer_load_dwordx4 {vr(XB+b*16+mi*4,4)}, v7, s[28:31], s38 offen offset:{mi*1024}")
    for t in range(DEPTH):
        issue(t)
    for r in range(64):
        a(f"v_accvgpr_write_b32 a{r}, 0")
    for t in range(8):
        b = t % DEPTH
        later = min(7, t+DEPTH-1) - t
        a(f"s_waitcnt vmcnt({later*12})")
        if t % 2 == 0:
            gi = t//2
            for jj in range(4):
                src = SZ+gi*4+jj//2
                if jj % 2 == 0:
                    a(f"v_lshlrev_b32 v{SF+jj}, 16, v{src}")
                    a(f"v_lshlrev_b32 v{SF+4+jj}, 16, v{src+2}")
                else:
                    a(f"v_and_b32 v{SF+jj}, 0xffff0000, v{src}")
                    a(f"v_and_b32 v{SF+4+jj}, 0xffff0000, v{src+2}")
                a(f"v_mul_f32 v{SF+4+jj}, v{SF+4+jj}, v{SF+jj}")
        for i in range(8):
            for jj in range(4):
                q = QB+b*32+i*4+jj
                a(f"v_cvt_f32_i32 v{q}, v{q}")
                a(f"v_fma_f32 v{q}, v{q}, v{SF+jj}, -v{SF+4+jj}")
        for jj in range(4):
            for p in range(4):
                a(f"v_cvt_pk_bf16_f32 v{WF+jj*4+p}, v{QB+b*32+(2*p)*4+jj}, v{QB+b*32+(2*p+1)*4+jj}")
        a("s_nop 1")
        for jj in range(4):
            for mi in range(4):
                acc = ar((jj*4+mi)*4, 4)
                a(f"v_mfma_f32_16x16x32_bf16 {acc}, {vr(WF+jj*4,4)}, {vr(XB+b*16+mi*4,4)}, {acc}")
        if t+DEPTH < 8:
            issue(t+DEPTH)
    a("s_nop 7")
    reduce4(a, "a", 0, 64)
    pack_pieces(a, 64, 48)
    a("s_mul_i32 s14, s13, 56")
    a("s_add_u32 s14, s14, s12")
    a("s_lshl_b32 s14, s14, 2")
    a("s_add_u32 s14, s14, s4")
    a("s_lshl_b32 s14, s14, 11")
    a("buffer_store_dwordx4 v[48:51], v8, s[32:35], s14 offen")
    a("buffer_store_dwordx4 v[52:55], v8, s[32:35], s14 offen offset:1024")
    a.label("P2_done")
    a("s_endpgm")
    kernel_desc(a, name, 320, 48, 256)

def k3(a):
    name = "p3_kernel"
    kernel_begin(a, name)
    a("s_cmp_ge_u32 s2, 224")
    a("s_cbranch_scc1 P3_done")
    a("s_load_dwordx4 s[8:11], s[0:1], 40")
    a("s_load_dwordx2 s[36:37], s[0:1], 64")
    common_ids(a)
    tile_ids(a)
    pi_c(a, "v10", "v3", "v11")
    a("s_waitcnt lgkmcnt(0)")
    srd(a, 16, 8, V_BYTES)
    srd(a, 20, 10, OUT_BYTES)
    srd(a, 32, 36, H_BYTES, H_OFF)
    a(f"s_mul_i32 s14, s4, {896*7168}")
    a("s_lshl_b32 s15, s12, 7")
    a("s_add_u32 s14, s14, s15")
    a(f"v_mul_u32_u24 v5, {8*7168}, v2")
    a("v_lshl_add_u32 v5, v10, 3, v5")
    a("v_add_u32 v5, s14, v5")
    a("s_mul_i32 s14, s13, 56")
    a("s_mul_i32 s15, s4, 14")
    a("s_add_u32 s14, s14, s15")
    a("s_lshl_b32 s14, s14, 13")
    a("v_lshlrev_b32 v7, 4, v1")
    a("v_add_u32 v7, s14, v7")
    a("s_mov_b32 s30, 0x05040100")
    a("s_mov_b32 s31, 0x07060302")
    VF = 12
    VB = 44
    HB = 140
    DEPTH = 3
    NB = 14
    def issue(t):
        b = t % DEPTH
        for f in range(2):
            for i in range(8):
                a(f"s_mov_b32 s38, {hex((64*t+32*f+i)*7168)}")
                a(f"buffer_load_dwordx2 {vr(VB+b*32+(f*8+i)*2,2)}, v5, s[16:19], s38 offen")
        for q in range(8):
            if q % 4 == 0:
                a(f"s_mov_b32 s38, {hex(t*8192+q*1024)}")
            a(f"buffer_load_dwordx4 {vr(HB+b*32+q*4,4)}, v7, s[32:35], s38 offen offset:{(q%4)*1024}")
    for t in range(DEPTH-1):
        issue(t)
    for r in range(64):
        a(f"v_accvgpr_write_b32 a{r}, 0")
    for t in range(NB):
        b = t % DEPTH
        if t+DEPTH-1 < NB:
            issue(t+DEPTH-1)
        later = min(NB-1, t+DEPTH-1) - t
        a(f"s_waitcnt vmcnt({later*24})")
        for f in range(2):
            for jj in range(4):
                for p in range(4):
                    lo = VB+b*32+(f*8+2*p)*2+jj//2
                    hi = lo+2
                    a(f"v_perm_b32 v{VF+(f*4+jj)*4+p}, v{hi}, v{lo}, s{30+jj%2}")
        a("s_nop 1")
        for f in range(2):
            for jj in range(4):
                for mi in range(4):
                    acc = ar((jj*4+mi)*4, 4)
                    a(f"v_mfma_f32_16x16x32_bf16 {acc}, {vr(VF+(f*4+jj)*4,4)}, {vr(HB+b*32+(mi*2+f)*4,4)}, {acc}")
    a("s_nop 7")
    reduce4(a, "a", 0, 64)
    pack_pieces(a, 64, 48)
    a("s_lshl_b32 s14, s13, 2")
    a("s_add_u32 s14, s14, s4")
    a(f"s_mul_i32 s14, s14, {16*7168}")
    a("s_lshl_b32 s15, s12, 7")
    a("s_add_u32 s14, s14, s15")
    a("v_mul_u32_u24 v9, 7168, v3")
    a("v_lshl_add_u32 v9, v2, 4, v9")
    a("buffer_store_dwordx4 v[48:51], v9, s[20:23], s14 offen")
    a("buffer_store_dwordx4 v[52:55], v9, s[20:23], s14 offen offset:64")
    a.label("P3_done")
    a("s_endpgm")
    kernel_desc(a, name, 320, 48, 256)

def nop_kernel(a):
    name = "nop_kernel"
    kernel_begin(a, name)
    a("s_endpgm")
    kernel_desc(a, name, 8, 8, 8)

def main(extra_nops=0):
    a = Asm()
    a.raw(HEADER.rstrip())
    for i in range(extra_nops):
        a.raw("; @launch kernel=nop_kernel grid=(256,1,1) block=(256,1,1) lds=0")
    a.raw("; @launch kernel=p1_kernel grid=(256,1,1) block=(256,1,1) lds=16384")
    a.raw("; @launch kernel=p2_kernel grid=(224,1,1) block=(256,1,1) lds=65536")
    a.raw("; @launch kernel=p3_kernel grid=(224,1,1) block=(256,1,1) lds=65536")
    a.raw('.amdgcn_target "amdgcn-amd-amdhsa--gfx950"')
    k1(a); k2(a); k3(a)
    if extra_nops:
        nop_kernel(a)
    return a.text()

if __name__ == "__main__":
    n = int(sys.argv[2]) if len(sys.argv) > 2 else 0
    open(sys.argv[1], "w").write(main(n))
```

```python
import sys
from asmlib import *
from stamp import *
STAMP = False

XR_OFF = 0
XR_BYTES = 256*1024*2
H_OFF = 1 << 20
H_BYTES = 256*3584*2

def common_ids(a):
    a("v_lshrrev_b32 v4, 6, v0")
    a("v_and_b32 v1, 63, v0")
    a("v_readfirstlane_b32 s4, v4")
    a("v_lshrrev_b32 v2, 4, v1")
    a("v_and_b32 v3, 15, v1")

def pi_c(a, dst, c, tmp):
    a(f"v_lshrrev_b32 {dst}, 2, {c}")
    a(f"v_lshlrev_b32 {dst}, 1, {dst}")
    a(f"v_and_b32 {tmp}, 1, {c}")
    a(f"v_or_b32 {dst}, {dst}, {tmp}")
    a(f"v_and_b32 {tmp}, 2, {c}")
    a(f"v_lshlrev_b32 {tmp}, 2, {tmp}")
    a(f"v_or_b32 {dst}, {dst}, {tmp}")

def k1(a):
    name = "p1_kernel"
    kernel_begin(a, name)
    a("s_cmp_ge_u32 s2, 256")
    a("s_cbranch_scc1 P1_done")
    if STAMP: stamp(a, 80)
    a("s_load_dwordx2 s[6:7], s[0:1], 0")
    a("s_load_dwordx2 s[8:9], s[0:1], 32")
    a("s_load_dwordx2 s[10:11], s[0:1], 64")
    common_ids(a)
    a("s_and_b32 s12, s2, 7")
    a("s_lshl_b32 s12, s12, 2")
    a("s_lshr_b32 s5, s2, 3")
    a("s_and_b32 s13, s5, 3")
    a("s_add_u32 s12, s12, s13")
    a("s_lshr_b32 s13, s5, 2")
    a("s_waitcnt lgkmcnt(0)")
    srd(a, 16, 6, X_BYTES)
    srd(a, 20, 8, U_BYTES)
    srd(a, 24, 10, XR_BYTES, XR_OFF)
    a("s_lshl_b32 s14, s13, 16")
    a("s_lshl_b32 s15, s4, 9")
    a("s_add_u32 s14, s14, s15")
    a("v_lshlrev_b32 v5, 11, v3")
    a("v_lshl_add_u32 v5, v2, 4, v5")
    a("v_add_u32 v5, s14, v5")
    a("v_add_u32 v6, 0x8000, v5")
    a("s_lshl_b32 s14, s4, 19")
    a("s_lshl_b32 s15, s12, 6")
    a("s_add_u32 s14, s14, s15")
    a("v_lshlrev_b32 v7, 14, v2")
    a("v_lshl_add_u32 v7, v3, 2, v7")
    a("v_add_u32 v7, s14, v7")
    XB, UB, FB, AC = 16, 80, 144, 208
    for t in range(8):
        for i in range(8):
            if i % 2 == 0:
                a(f"s_mov_b32 s28, {hex((32*t+i)*2048)}")
            a(f"buffer_load_dword v{UB+8*t+i}, v7, s[20:23], s28 offen offset:{(i%2)*2048}")
        for mi in range(2):
            a(f"buffer_load_dwordx4 {vr(XB+(t*2+mi)*4,4)}, v{5+mi}, s[16:19], 0 offen offset:{t*64}")
    a("s_mov_b32 s30, 0x05040100")
    a("s_mov_b32 s31, 0x07060302")
    for r in range(16):
        a(f"v_mov_b32 v{AC+r}, 0")
    for t in range(8):
        n = (7-t)*10
        a(f"s_waitcnt vmcnt({min(n,63)})")
        for jj in range(2):
            for p in range(4):
                a(f"v_perm_b32 v{FB+t*8+jj*4+p}, v{UB+8*t+2*p+1}, v{UB+8*t+2*p}, s{30+jj}")
        a("s_nop 1")
        for jj in range(2):
            for mi in range(2):
                acc = vr(AC+(jj*2+mi)*4, 4)
                a(f"v_mfma_f32_16x16x32_bf16 {acc}, {vr(FB+t*8+jj*4,4)}, {vr(XB+(t*2+mi)*4,4)}, {acc}")
    a("s_nop 7")
    a("v_lshlrev_b32 v8, 4, v1")
    a("s_lshl_b32 s14, s4, 12")
    a("v_add_u32 v9, s14, v8")
    for q in range(4):
        a(f"ds_write_b128 v9, {vr(AC+q*4,4)} offset:{q*1024}")
    a("s_waitcnt lgkmcnt(0)")
    a("s_barrier")
    a("s_cmp_ge_u32 s4, 2")
    a("s_cbranch_scc1 P1_done")
    a("s_lshl_b32 s14, s4, 10")
    a("v_add_u32 v9, s14, v8")
    for w in range(4):
        for jj in range(2):
            a(f"ds_read_b128 {vr(16+(w*2+jj)*4,4)}, v9 offset:{w*4096+jj*2048}")
    a("s_waitcnt lgkmcnt(0)")
    for jj in range(2):
        for r in range(4):
            d = 16+jj*4+r
            a(f"v_add_f32 v{d}, v{d}, v{d+8}")
            a(f"v_add_f32 v{d+16}, v{d+16}, v{d+24}")
            a(f"v_add_f32 v{d}, v{d}, v{d+16}")
    for r in range(4):
        a(f"v_cvt_pk_bf16_f32 v{48+r}, v{16+r}, v{20+r}")
    a("s_lshr_b32 s14, s13, 1")
    a("s_lshl_b32 s14, s14, 5")
    a("s_add_u32 s14, s14, s12")
    a("s_lshl_b32 s14, s14, 2")
    a("s_and_b32 s15, s13, 1")
    a("s_lshl_b32 s15, s15, 1")
    a("s_add_u32 s14, s14, s15")
    a("s_add_u32 s14, s14, s4")
    a("s_lshl_b32 s14, s14, 10")
    a("buffer_store_dwordx4 v[48:51], v8, s[24:27], s14 offen")
    if STAMP:
        a("s_waitcnt vmcnt(0)")
        stamp(a, 82)
        a("s_waitcnt lgkmcnt(0)")
        stamp_store(a, 0, [80, 82])
    a.label("P1_done")
    a("s_endpgm")
    kernel_desc(a, name, 256, 102, 256)

def tile_ids(a):
    a("s_and_b32 s12, s2, 7")
    a("s_mul_i32 s12, s12, 7")
    a("s_lshr_b32 s5, s2, 3")
    a("s_and_b32 s13, s5, 3")
    a("s_lshr_b32 s5, s5, 2")
    a("s_add_u32 s12, s12, s5")

def reduce4(a, accpfx, AC, T0):
    a("v_lshlrev_b32 v8, 4, v1")
    a("s_lshl_b32 s14, s4, 14")
    a("v_add_u32 v9, s14, v8")
    for mi in range(4):
        for jj in range(4):
            a(f"ds_write_b128 v9, {vr(AC+(jj*4+mi)*4,4,accpfx)} offset:{(mi*4+jj)*1024}")
    a("s_waitcnt lgkmcnt(0)")
    a("s_barrier")
    a("s_lshl_b32 s14, s4, 12")
    a("v_add_u32 v9, s14, v8")
    for w in range(4):
        for jj in range(4):
            a(f"ds_read_b128 {vr(T0+(w*4+jj)*4,4)}, v9 offset:{w*16384+jj*1024}")
    a("s_waitcnt lgkmcnt(0)")
    for q in range(16):
        d = T0+q
        a(f"v_add_f32 v{d}, v{d}, v{d+16}")
        a(f"v_add_f32 v{d+32}, v{d+32}, v{d+48}")
        a(f"v_add_f32 v{d}, v{d}, v{d+32}")

def pack_pieces(a, T0, P0):
    for f in range(2):
        for rr in range(2):
            r = 2*f+rr
            for h in range(2):
                a(f"v_cvt_pk_bf16_f32 v{P0+f*4+rr*2+h}, v{T0+(2*h)*4+r}, v{T0+(2*h+1)*4+r}")

def k2(a):
    name = "p2_kernel"
    kernel_begin(a, name)
    a("s_cmp_ge_u32 s2, 224")
    a("s_cbranch_scc1 P2_done")
    if STAMP: stamp(a, 80)
    a("s_load_dwordx2 s[6:7], s[0:1], 8")
    a("s_load_dwordx4 s[8:11], s[0:1], 16")
    a("s_load_dwordx2 s[36:37], s[0:1], 64")
    common_ids(a)
    tile_ids(a)
    pi_c(a, "v10", "v3", "v11")
    a("s_waitcnt lgkmcnt(0)")
    srd(a, 16, 6, QW_BYTES)
    srd(a, 20, 8, SC_BYTES)
    srd(a, 24, 10, SC_BYTES)
    srd(a, 28, 36, XR_BYTES, XR_OFF)
    srd(a, 32, 36, H_BYTES, H_OFF)
    a("s_mul_i32 s14, s4, 28672")
    a("s_lshl_b32 s15, s12, 7")
    a("s_add_u32 s14, s14, s15")
    a("v_lshlrev_b32 v6, 3, v10")
    a("v_add_u32 v6, s14, v6")
    SZ = 12
    for gi in range(4):
        a(f"s_mov_b32 s38, {gi*7168}")
        a(f"buffer_load_dwordx2 {vr(SZ+gi*4,2)}, v6, s[20:23], s38 offen")
        a(f"buffer_load_dwordx2 {vr(SZ+gi*4+2,2)}, v6, s[24:27], s38 offen")
    a(f"s_mul_i32 s14, s4, {256*14336}")
    a("s_lshl_b32 s15, s12, 8")
    a("s_add_u32 s14, s14, s15")
    a(f"v_mul_u32_u24 v5, {8*14336}, v2")
    a("v_lshl_add_u32 v5, v10, 4, v5")
    a("v_add_u32 v5, s14, v5")
    a("s_lshl_b32 s14, s13, 5")
    a("s_lshl_b32 s15, s4, 3")
    a("s_add_u32 s14, s14, s15")
    a("s_lshl_b32 s14, s14, 12")
    a("v_lshlrev_b32 v7, 4, v1")
    a("v_add_u32 v7, s14, v7")
    SF = 28
    WF = 36
    QB = 52
    XB = 148
    DEPTH = 3
    def issue(t):
        b = t % DEPTH
        for i in range(8):
            a(f"s_mov_b32 s38, {hex((32*t+i)*14336)}")
            a(f"buffer_load_dwordx4 {vr(QB+b*32+i*4,4)}, v5, s[16:19], s38 offen")
        a(f"s_mov_b32 s38, {hex(t*4096)}")
        for mi in range(4):
            a(f"buffer_load_dwordx4 {vr(XB+b*16+mi*4,4)}, v7, s[28:31], s38 offen offset:{mi*1024}")
    for t in range(DEPTH):
        issue(t)
    for r in range(64):
        a(f"v_accvgpr_write_b32 a{r}, 0")
    for t in range(8):
        b = t % DEPTH
        later = min(7, t+DEPTH-1) - t
        a(f"s_waitcnt vmcnt({later*12})")
        if t % 2 == 0:
            gi = t//2
            for jj in range(4):
                src = SZ+gi*4+jj//2
                if jj % 2 == 0:
                    a(f"v_lshlrev_b32 v{SF+jj}, 16, v{src}")
                    a(f"v_lshlrev_b32 v{SF+4+jj}, 16, v{src+2}")
                else:
                    a(f"v_and_b32 v{SF+jj}, 0xffff0000, v{src}")
                    a(f"v_and_b32 v{SF+4+jj}, 0xffff0000, v{src+2}")
                a(f"v_mul_f32 v{SF+4+jj}, v{SF+4+jj}, v{SF+jj}")
        for i in range(8):
            for jj in range(4):
                q = QB+b*32+i*4+jj
                a(f"v_cvt_f32_i32 v{q}, v{q}")
                a(f"v_fma_f32 v{q}, v{q}, v{SF+jj}, -v{SF+4+jj}")
        for jj in range(4):
            for p in range(4):
                a(f"v_cvt_pk_bf16_f32 v{WF+jj*4+p}, v{QB+b*32+(2*p)*4+jj}, v{QB+b*32+(2*p+1)*4+jj}")
        a("s_nop 1")
        for jj in range(4):
            for mi in range(4):
                acc = ar((jj*4+mi)*4, 4)
                a(f"v_mfma_f32_16x16x32_bf16 {acc}, {vr(WF+jj*4,4)}, {vr(XB+b*16+mi*4,4)}, {acc}")
        if t+DEPTH < 8:
            issue(t+DEPTH)
    a("s_nop 7")
    reduce4(a, "a", 0, 64)
    pack_pieces(a, 64, 48)
    a("s_mul_i32 s14, s13, 56")
    a("s_add_u32 s14, s14, s12")
    a("s_lshl_b32 s14, s14, 2")
    a("s_add_u32 s14, s14, s4")
    a("s_lshl_b32 s14, s14, 11")
    a("buffer_store_dwordx4 v[48:51], v8, s[32:35], s14 offen")
    a("buffer_store_dwordx4 v[52:55], v8, s[32:35], s14 offen offset:1024")
    if STAMP:
        a("s_waitcnt vmcnt(0)")
        stamp(a, 82)
        a("s_waitcnt lgkmcnt(0)")
        stamp_store(a, 1, [80, 82])
    a.label("P2_done")
    a("s_endpgm")
    kernel_desc(a, name, 320, 102, 256)

def k3(a):
    name = "p3_kernel"
    kernel_begin(a, name)
    a("s_cmp_ge_u32 s2, 224")
    a("s_cbranch_scc1 P3_done")
    if STAMP: stamp(a, 80)
    a("s_load_dwordx4 s[8:11], s[0:1], 40")
    a("s_load_dwordx2 s[36:37], s[0:1], 64")
    common_ids(a)
    tile_ids(a)
    pi_c(a, "v10", "v3", "v11")
    a("s_waitcnt lgkmcnt(0)")
    srd(a, 16, 8, V_BYTES)
    srd(a, 20, 10, OUT_BYTES)
    srd(a, 32, 36, H_BYTES, H_OFF)
    a(f"s_mul_i32 s14, s4, {896*7168}")
    a("s_lshl_b32 s15, s12, 7")
    a("s_add_u32 s14, s14, s15")
    a(f"v_mul_u32_u24 v5, {8*7168}, v2")
    a("v_lshl_add_u32 v5, v10, 3, v5")
    a("v_add_u32 v5, s14, v5")
    a("s_mul_i32 s14, s13, 56")
    a("s_mul_i32 s15, s4, 14")
    a("s_add_u32 s14, s14, s15")
    a("s_lshl_b32 s14, s14, 13")
    a("v_lshlrev_b32 v7, 4, v1")
    a("v_add_u32 v7, s14, v7")
    a("s_mov_b32 s30, 0x05040100")
    a("s_mov_b32 s31, 0x07060302")
    VF = 12
    VB = 44
    HB = 140
    DEPTH = 3
    NB = 14
    def issue(t):
        b = t % DEPTH
        for f in range(2):
            for i in range(8):
                a(f"s_mov_b32 s38, {hex((64*t+32*f+i)*7168)}")
                a(f"buffer_load_dwordx2 {vr(VB+b*32+(f*8+i)*2,2)}, v5, s[16:19], s38 offen")
        for q in range(8):
            if q % 4 == 0:
                a(f"s_mov_b32 s38, {hex(t*8192+q*1024)}")
            a(f"buffer_load_dwordx4 {vr(HB+b*32+q*4,4)}, v7, s[32:35], s38 offen offset:{(q%4)*1024}")
    for t in range(DEPTH-1):
        issue(t)
    for r in range(64):
        a(f"v_accvgpr_write_b32 a{r}, 0")
    for t in range(NB):
        b = t % DEPTH
        if t+DEPTH-1 < NB:
            issue(t+DEPTH-1)
        later = min(NB-1, t+DEPTH-1) - t
        a(f"s_waitcnt vmcnt({later*24})")
        for f in range(2):
            for jj in range(4):
                for p in range(4):
                    lo = VB+b*32+(f*8+2*p)*2+jj//2
                    hi = lo+2
                    a(f"v_perm_b32 v{VF+(f*4+jj)*4+p}, v{hi}, v{lo}, s{30+jj%2}")
        a("s_nop 1")
        for f in range(2):
            for jj in range(4):
                for mi in range(4):
                    acc = ar((jj*4+mi)*4, 4)
                    a(f"v_mfma_f32_16x16x32_bf16 {acc}, {vr(VF+(f*4+jj)*4,4)}, {vr(HB+b*32+(mi*2+f)*4,4)}, {acc}")
    a("s_nop 7")
    reduce4(a, "a", 0, 64)
    pack_pieces(a, 64, 48)
    a("s_lshl_b32 s14, s13, 2")
    a("s_add_u32 s14, s14, s4")
    a(f"s_mul_i32 s14, s14, {16*7168}")
    a("s_lshl_b32 s15, s12, 7")
    a("s_add_u32 s14, s14, s15")
    a("v_mul_u32_u24 v9, 7168, v3")
    a("v_lshl_add_u32 v9, v2, 4, v9")
    a("buffer_store_dwordx4 v[48:51], v9, s[20:23], s14 offen")
    a("buffer_store_dwordx4 v[52:55], v9, s[20:23], s14 offen offset:64")
    if STAMP:
        a("s_waitcnt vmcnt(0)")
        stamp(a, 82)
        a("s_waitcnt lgkmcnt(0)")
        stamp_store(a, 2, [80, 82])
    a.label("P3_done")
    a("s_endpgm")
    kernel_desc(a, name, 320, 102, 256)

def nop_kernel(a):
    name = "nop_kernel"
    kernel_begin(a, name)
    a("s_endpgm")
    kernel_desc(a, name, 8, 8, 8)

def main(extra_nops=0):
    a = Asm()
    a.raw(HEADER.rstrip())
    for i in range(extra_nops):
        a.raw("; @launch kernel=nop_kernel grid=(256,1,1) block=(256,1,1) lds=0")
    a.raw("; @launch kernel=p1_kernel grid=(256,1,1) block=(256,1,1) lds=16384")
    a.raw("; @launch kernel=p2_kernel grid=(224,1,1) block=(256,1,1) lds=65536")
    a.raw("; @launch kernel=p3_kernel grid=(224,1,1) block=(256,1,1) lds=65536")
    a.raw('.amdgcn_target "amdgcn-amd-amdhsa--gfx950"')
    k1(a); k2(a); k3(a)
    if extra_nops:
        nop_kernel(a)
    return a.text()

if __name__ == "__main__":
    n = int(sys.argv[2]) if len(sys.argv) > 2 else 0
    STAMP = len(sys.argv) > 3
    open(sys.argv[1], "w").write(main(n))
```

```python
from asmlib import *
STAMP_OFF = 128 << 20
def stamp(a, sreg):
    a(f"s_memrealtime s[{sreg}:{sreg+1}]")
def stamp_store(a, kidx, sregs, nslots=8, wsptr_off=64, t0=90, vt=250, wave_s="s4"):
    lab = f"ST_skip_{kidx}_{len(a.lines)}"
    a(f"s_cmp_lg_u32 {wave_s}, 0")
    a(f"s_cbranch_scc1 {lab}")
    a(f"s_load_dwordx2 s[{t0}:{t0+1}], s[0:1], {wsptr_off}")
    a("s_waitcnt lgkmcnt(0)")
    srd(a, t0+2, t0, 1 << 20, STAMP_OFF)
    a(f"s_add_u32 s{t0}, s2, {kidx*256}")
    a(f"s_mul_i32 s{t0}, s{t0}, {nslots*8}")
    a(f"v_mov_b32 v{vt}, 0")
    for i, s in enumerate(sregs):
        a(f"v_mov_b32 v{vt+2}, s{s}")
        a(f"v_mov_b32 v{vt+3}, s{s+1}")
        a(f"buffer_store_dwordx2 v[{vt+2}:{vt+3}], v{vt}, s[{t0+2}:{t0+5}], s{t0} offen offset:{i*8}")
        a("s_nop 1")
    a.label(lab)
```

```python
import sys
import gen_base
from gen_base import *

def spin_until(a, s_start, s_dur, factor, tag):
    a(f"s_mul_i32 s{s_dur}, s{s_dur}, {factor}")
    a.label(f"SPIN_{tag}")
    a("s_sleep 4")
    a("s_memrealtime s[96:97]")
    a("s_waitcnt lgkmcnt(0)")
    a(f"s_sub_u32 s96, s96, s{s_start}")
    a(f"s_cmp_lt_u32 s96, s{s_dur}")
    a(f"s_cbranch_scc1 SPIN_{tag}")

def probe_stream(a, flags, buf=40, bufbytes=V_BYTES, kb=24, factor=100, what="dur"):
    name = "probe_kernel"
    kernel_begin(a, name)
    a("s_cmp_ge_u32 s2, 256")
    a("s_cbranch_scc1 PR_done")
    a("s_memrealtime s[80:81]")
    a("s_memtime s[84:85]")
    a(f"s_load_dwordx2 s[6:7], s[0:1], {buf}")
    a("v_lshrrev_b32 v4, 6, v0")
    a("v_and_b32 v1, 63, v0")
    a("v_readfirstlane_b32 s4, v4")
    a("v_lshlrev_b32 v5, 4, v1")
    a(f"s_mul_i32 s10, s2, {4*kb*1024}")
    a(f"s_mul_i32 s11, s4, {kb*1024}")
    a("s_add_u32 s10, s10, s11")
    a("s_waitcnt lgkmcnt(0)")
    srd(a, 16, 6, bufbytes)
    if what == "code":
        a("s_memrealtime s[80:81]")
        a("s_waitcnt lgkmcnt(0)")
        for i in range(kb*1024//4):
            a(f"v_mov_b32 v{16+i%8}, v0")
    elif what == "clock":
        a("s_mov_b32 s13, 200")
        a.label("PR_cl")
        for i in range(16):
            a("v_mfma_f32_16x16x32_bf16 v[16:19], v[20:23], v[24:27], v[16:19]")
        a("s_sub_u32 s13, s13, 1")
        a("s_cmp_lg_u32 s13, 0")
        a("s_cbranch_scc1 PR_cl")
    else:
        un = min(8, kb)
        a(f"s_mov_b32 s13, {kb//un}")
        a.label("PR_loop")
        for u in range(un):
            a(f"buffer_load_dwordx4 {vr(16+u*4,4)}, v5, s[16:19], s10 offen {flags}")
            a("s_add_u32 s10, s10, 1024")
        a("s_sub_u32 s13, s13, 1")
        a("s_cmp_lg_u32 s13, 0")
        a("s_cbranch_scc1 PR_loop")
        a("s_waitcnt vmcnt(0)")
    a("s_memrealtime s[82:83]")
    a("s_waitcnt lgkmcnt(0)")
    a("s_sub_u32 s82, s82, s80")
    spin_until(a, 80, 82, factor, "PR")
    a.label("PR_done")
    a("s_endpgm")
    kernel_desc(a, name, 64, 102, 64)

def build(probe_kw):
    a = Asm()
    a.raw(HEADER.rstrip())
    a.raw("; @launch kernel=probe_kernel grid=(256,1,1) block=(256,1,1) lds=81920")
    a.raw("; @launch kernel=p1_kernel grid=(256,1,1) block=(256,1,1) lds=16384")
    a.raw("; @launch kernel=p2_kernel grid=(224,1,1) block=(256,1,1) lds=65536")
    a.raw("; @launch kernel=p3_kernel grid=(224,1,1) block=(256,1,1) lds=65536")
    a.raw('.amdgcn_target "amdgcn-amd-amdhsa--gfx950"')
    probe_stream(a, **probe_kw)
    k1(a); k2(a); k3(a)
    return a.text()

if __name__ == "__main__":
    D = "cdna_kernels/"
    open(D+"d1.s","w").write(build(dict(flags="")))
    open(D+"d2.s","w").write(build(dict(flags="nt")))
    open(D+"d3.s","w").write(build(dict(flags="", kb=1)))
    open(D+"d4.s","w").write(build(dict(flags="", kb=16, what="code")))
    open(D+"d5.s","w").write(build(dict(flags="", what="clock", factor=20)))
    open(D+"d6.s","w").write(build(dict(flags="", kb=8)))
```

```python
import re
from gen_diag import *
import gen_base
def build(mode, factor=20):
    txt = gen_base.main(0)
    L = txt.split("\n")
    out = []
    def emit(fn):
        a = Asm(); fn(a); out.extend(a.lines)
    for i, ln in enumerate(L):
        m = re.match(r"\s*s_cbranch_scc1 (P\d)_done", ln)
        if m and L[i+1].strip().startswith("s_load"):
            out.append(ln)
            k = m.group(1)
            out.append("    s_memrealtime s[80:81]")
            if mode == "span" and k == "P1":
                def f(a):
                    a("s_load_dwordx2 s[90:91], s[0:1], 64")
                    a("s_waitcnt lgkmcnt(0)")
                    srd(a, 92, 90, 4096, 64 << 20)
                    a("v_mov_b32 v200, 0")
                    a("v_mov_b32 v201, s80")
                    a("s_cmp_lg_u32 s2, 0")
                    a("s_cbranch_scc1 NOST")
                    a("buffer_store_dword v201, v200, s[92:95], 0 offen")
                    a.label("NOST")
                emit(f)
            continue
        m = re.match(r"(P\d)_done:", ln)
        if m:
            k = m.group(1)
            if mode == k or (mode == "span" and k == "P3"):
                def f(a):
                    a("s_waitcnt vmcnt(0)")
                    if mode == "span":
                        a("s_load_dwordx2 s[90:91], s[0:1], 64")
                        a("s_waitcnt lgkmcnt(0)")
                        a("s_add_u32 s90, s90, 0x4000000")
                        a("s_addc_u32 s91, s91, 0")
                        a("s_memrealtime s[82:83]")
                        a("s_load_dword s80, s[90:91], 0")
                    else:
                        a("s_memrealtime s[82:83]")
                    a("s_waitcnt lgkmcnt(0)")
                    a("s_sub_u32 s82, s82, s80")
                    a("s_min_u32 s82, s82, 20000")
                    spin_until(a, 80, 82, factor, k)
                emit(f)
        out.append(ln)
    return "\n".join(out)
D = "cdna_kernels/"
for i, m in enumerate(["span", "P1", "P2", "P3"]):
    open(D + f"e{i+1}.s", "w").write(build(m))
```

```python
import sys
from asmlib import *

KNAME = "standalone__weight_only_int_quip__sampling_kernel"
XR_OFF   = 0
H_OFF    = 1 << 20
F1_OFF   = 3 << 20
F2_OFF   = F1_OFF + 4096
F3_OFF   = F1_OFF + 8192
EP_OFF   = F1_OFF + 16384
PART_OFF = 4 << 20
WS_BYTES = 8 << 20
STAMP_OFF = 128 << 20
OOB = 0x7f000000

P1R = 0
P2R = 16384
AREA = 65536
AREA_SZ = 24576
LDS_BYTES = 163840

S_WAVE = 4
SRD_X, SRD_QW, SRD_SC, SRD_Z, SRD_U, SRD_V, SRD_OUT, SRD_WS = 28, 32, 36, 40, 44, 48, 52, 56
S_XCD, S_HALF, S_I2, S_M32, S_N32, S_M64, S_T2, S_KS, S_T, S_TAG, S_EP = 60, 61, 62, 63, 64, 65, 66, 67, 68, 69, 5
T0, T1, T2, T3 = 70, 71, 72, 73
S_AREA = 74
B0 = 76
S_CNT = 92

def srdr(b): return f"s[{b}:{b+3}]"

class K:
    def __init__(self, opt):
        self.a = Asm()
        self.o = opt
        self.vm = []
        self.nst = 0
        self.stamps = []
        self.uid = 0
    def __call__(self, s): self.a(s)
    def vmem(self, s, tag):
        self.a(s); self.vm.append(tag)
    def wait(self, tag):
        idx = max(i for i, t in enumerate(self.vm) if t == tag)
        n = len(self.vm) - 1 - idx
        self.a(f"s_waitcnt vmcnt({min(n, 63)})")
    def stamp(self, name):
        if not self.o.get("stamp"): return
        regs = list(range(8, 28, 2)) + [94, 96, 98]
        r = regs[len(self.stamps)]
        self.stamps.append((name, r))
        self.a(f"s_memrealtime s[{r}:{r+1}]")
        self.a("s_waitcnt lgkmcnt(0)")
    def lab(self, p):
        self.uid += 1
        return f"{p}_{self.uid}"

    def poll(self, voff, soff, name):
        L = self.lab("POLL"); E = self.lab("POLLX")
        self(f"s_mov_b32 s{S_CNT}, 0")
        self.a.label(L)
        self(f"buffer_load_dword v9, {voff}, {srdr(SRD_WS)}, {soff} offen sc1")
        self(f"s_add_u32 s{S_CNT}, s{S_CNT}, 1")
        self("s_waitcnt vmcnt(0)")
        self(f"v_cmp_ne_u32 vcc, s{S_TAG}, v9")
        self(f"s_cmp_gt_u32 s{S_CNT}, 0x40000")
        self(f"s_cbranch_scc1 {E}")
        self(f"s_cbranch_vccz {E}")
        self("s_sleep 2")
        self(f"s_branch {L}")
        self.a.label(E)
        self.vm.append("poll")

    def flag(self, soff, voff="v0"):
        self(f"v_mov_b32 v9, s{S_TAG}")
        self("s_mov_b64 exec, 1")
        self.vmem(f"buffer_store_dword v9, {voff}, {srdr(SRD_WS)}, {soff} offen sc1", "flag")
        self("s_mov_b64 exec, -1")

def build(opt):
    k = K(opt); a = k.a
    a.raw(HEADER.rstrip())
    a.raw(f"; @launch grid=(256,1,1) block=(256,1,1) lds={LDS_BYTES}")
    a.raw('.amdgcn_target "amdgcn-amd-amdhsa--gfx950"')
    kernel_begin(a, KNAME)
    k("s_cmp_ge_u32 s2, 256")
    k("s_cbranch_scc1 DONE")
    if opt.get("stamp"):
        k("s_memrealtime s[100:101]")
    k("s_load_dwordx16 s[8:23], s[0:1], 0")
    k("s_load_dwordx2 s[24:25], s[0:1], 64")
    k("v_lshrrev_b32 v4, 6, v0")
    k("v_and_b32 v1, 63, v0")
    k(f"v_readfirstlane_b32 s{S_WAVE}, v4")
    k("v_lshrrev_b32 v2, 4, v1")
    k("v_and_b32 v3, 15, v1")
    k("v_lshlrev_b32 v4, 4, v1")
    k("v_mov_b32 v0, 0")
    k(f"s_and_b32 s{S_XCD}, s2, 7")
    k(f"s_lshr_b32 s{T0}, s2, 3")
    k(f"s_and_b32 s{S_HALF}, s{T0}, 1")
    k(f"s_lshr_b32 s{S_I2}, s{T0}, 1")
    k(f"s_and_b32 s{T0}, s{S_I2}, 3")
    k(f"s_lshl_b32 s{S_N32}, s{S_XCD}, 2")
    k(f"s_add_u32 s{S_N32}, s{S_N32}, s{T0}")
    k(f"s_lshr_b32 s{T0}, s{S_I2}, 2")
    k(f"s_lshl_b32 s{S_M32}, s{S_HALF}, 2")
    k(f"s_add_u32 s{S_M32}, s{S_M32}, s{T0}")
    k(f"s_and_b32 s{T0}, s{S_I2}, 1")
    k(f"s_lshl_b32 s{S_M64}, s{S_HALF}, 1")
    k(f"s_add_u32 s{S_M64}, s{S_M64}, s{T0}")
    k(f"s_lshr_b32 s{T0}, s{S_I2}, 1")
    k(f"s_mul_i32 s{S_T2}, s{S_XCD}, 7")
    k(f"s_add_u32 s{S_T2}, s{S_T2}, s{T0}")
    k(f"s_and_b32 s{S_KS}, s{S_XCD}, 1")
    k(f"s_lshr_b32 s{T0}, s{S_XCD}, 1")
    k(f"s_mul_i32 s{S_T}, s{T0}, 14")
    k(f"s_add_u32 s{S_T}, s{S_T}, s{S_I2}")
    k(f"s_mul_i32 s{S_AREA}, s{S_WAVE}, {AREA_SZ}")
    k(f"s_add_u32 s{S_AREA}, s{S_AREA}, {AREA}")
    k("v_lshlrev_b32 v5, 11, v3")
    k("v_lshl_add_u32 v5, v2, 4, v5")
    k(f"s_lshl_b32 s{T0}, s{S_M32}, 16")
    k(f"v_add_u32 v5, s{T0}, v5")
    k("v_add_u32 v6, 0x8000, v5")
    k("v_lshrrev_b32 v7, 2, v1")
    k("v_lshlrev_b32 v7, 11, v7")
    k("v_lshrrev_b32 v8, 4, v1")
    k("v_and_b32 v8, 2, v8")
    k("v_and_b32 v9, 3, v1")
    k("v_xor_b32 v8, v8, v9")
    k("v_lshl_add_u32 v7, v8, 4, v7")
    k(f"s_lshl_b32 s{T0}, s{S_N32}, 6")
    k(f"v_add_u32 v7, s{T0}, v7")
    k("s_waitcnt lgkmcnt(0)")
    srd(a, SRD_U, 16, U_BYTES)
    srd(a, SRD_X, 8, X_BYTES)
    k(f"s_lshl_b32 s{T0}, s{S_HALF}, 7")
    k(f"s_add_u32 s{T0}, s{T0}, {hex(EP_OFF)}")
    k(f"s_load_dword s{S_EP}, s[24:25], s{T0}")
    RX, RU = B0, B0+1
    k(f"s_and_b32 s{RX}, s{S_I2}, 3")
    k(f"s_lshl_b32 s{RX}, s{RX}, 1")
    k(f"s_lshl_b32 s{B0+2}, s{S_WAVE}, 19")
    k(f"s_lshl_b32 s{B0+3}, s{S_WAVE}, 9")
    def u_load(i):
        k(f"s_add_u32 s{T0}, s{S_M32}, {i}")
        k(f"s_and_b32 s{T0}, s{T0}, 7")
        k(f"s_sub_u32 s{T1}, s{T0}, s{RX}")
        k(f"s_and_b32 s{T1}, s{T1}, 7")
        k(f"s_lshl_b32 s{T1}, s{T1}, 11")
        k(f"s_add_u32 m0, s{T1}, s{S_AREA}")
        k(f"s_lshl_b32 s{T0}, s{T0}, 16")
        k(f"s_add_u32 s{T0}, s{T0}, s{B0+2}")
        k.vmem(f"buffer_load_dwordx4 v7, {srdr(SRD_U)}, s{T0} offen lds", "p1")
        k(f"s_add_u32 m0, m0, 1024")
        k(f"s_add_u32 s{T0}, s{T0}, 0x8000")
        k.vmem(f"buffer_load_dwordx4 v7, {srdr(SRD_U)}, s{T0} offen lds", "p1")
    def x_load(jp):
        k(f"s_add_u32 s{T0}, s{RX}, {2*jp}")
        k(f"s_and_b32 s{T0}, s{T0}, 7")
        k(f"s_lshl_b32 s{T0}, s{T0}, 6")
        k(f"s_add_u32 s{T0}, s{T0}, s{B0+3}")
        for mi in range(2):
            for u in range(2):
                k.vmem(f"buffer_load_dwordx4 {ar(((2*jp+u)*2+mi)*4,4)}, v{5+mi}, {srdr(SRD_X)}, s{T0} offen offset:{64*u}", "p1")
    u_load(0); x_load(0)
    for i in range(1, 8):
        u_load(i)
        if i % 2 == 0: x_load(i//2)
    srd(a, SRD_QW, 10, QW_BYTES)
    srd(a, SRD_SC, 12, SC_BYTES)
    srd(a, SRD_Z, 14, SC_BYTES)
    srd(a, SRD_V, 18, V_BYTES)
    srd(a, SRD_OUT, 20, OUT_BYTES)
    srd(a, SRD_WS, 24, WS_BYTES)
    k("s_setreg_imm32_b32 hwreg(HW_REG_MODE, 4, 2), 3")
    k("v_lshrrev_b32 v10, 2, v3")
    k("v_lshlrev_b32 v10, 1, v10")
    k("v_and_b32 v11, 1, v3")
    k("v_or_b32 v10, v10, v11")
    k("v_and_b32 v11, 2, v3")
    k("v_lshlrev_b32 v11, 2, v11")
    k("v_or_b32 v10, v10, v11")
    k(f"s_cmp_lt_u32 s{S_I2}, 14")
    k(f"s_cselect_b32 s{T3}, 0, {hex(OOB)}")
    k(f"v_mul_u32_u24 v8, {4*14336}, v2")
    k("v_lshl_add_u32 v8, v10, 4, v8")
    k(f"s_lshl_b32 s{T0}, s{S_T2}, 8")
    k(f"s_add_u32 s{T0}, s{T0}, s{T3}")
    k(f"v_add_u32 v8, s{T0}, v8")
    k("v_mul_u32_u24 v9, 7168, v2")
    k("v_lshl_add_u32 v9, v10, 3, v9")
    k(f"s_mul_i32 s{T0}, s{S_WAVE}, {4*7168}")
    k(f"s_lshl_b32 s{T1}, s{S_T2}, 7")
    k(f"s_add_u32 s{T0}, s{T0}, s{T1}")
    k(f"v_add_u32 v9, s{T3}, v9")
    RAW = 252
    k.vmem(f"buffer_load_dwordx2 v[{RAW}:{RAW+1}], v9, {srdr(SRD_SC)}, s{T0} offen", "sz")
    k.vmem(f"buffer_load_dwordx2 v[{RAW+2}:{RAW+3}], v9, {srdr(SRD_Z)}, s{T0} offen", "sz")
    QB, GI = B0+4, B0+8
    for j in range(4):
        k(f"s_add_u32 s{GI+j}, s{S_M64}, {j}")
        k(f"s_and_b32 s{GI+j}, s{GI+j}, 3")
        k(f"s_lshl_b32 s{T0}, s{S_WAVE}, 2")
        k(f"s_add_u32 s{T0}, s{T0}, s{GI+j}")
        k(f"s_mul_i32 s{QB+j}, s{T0}, {64*14336}")
    STG = 144
    def q_issue(st):
        j, u = st//2, st % 2
        b = STG + (st % 3)*32
        for i in range(8):
            ro = 32*u + (i if i < 4 else 12+i)
            if ro:
                k(f"s_add_u32 s{T0}, s{QB+j}, {hex(ro*14336)}")
                so = f"s{T0}"
            else:
                so = f"s{QB+j}"
            k.vmem(f"buffer_load_dwordx4 {vr(b+4*i,4)}, v8, {srdr(SRD_QW)}, {so} offen", f"q{st}")
    q_issue(0); q_issue(1)
    k("v_lshrrev_b32 v12, 2, v3")
    k("v_lshl_add_u32 v12, v2, 3, v12")
    k("v_lshlrev_b32 v12, 6, v12")
    k("v_and_b32 v13, 1, v2")
    k("v_lshl_add_u32 v12, v13, 5, v12")
    k("v_and_b32 v13, 3, v1")
    k("v_lshl_add_u32 v12, v13, 3, v12")
    k(f"v_add_u32 v12, s{S_AREA}, v12")
    k("v_xor_b32 v13, 32, v12")
    k("s_waitcnt lgkmcnt(0)")
    k(f"s_mul_i32 s{S_TAG}, s{S_EP}, 0x9e3779b1")
    k(f"s_add_u32 s{S_TAG}, s{S_TAG}, 0x7f4a7c15")
    k(f"s_lshr_b32 s{T0}, s{S_TAG}, 15")
    k(f"s_xor_b32 s{S_TAG}, s{S_TAG}, s{T0}")
    k(f"s_mul_i32 s{S_TAG}, s{S_TAG}, 0x85ebca6b")
    k.wait("p1")
    k.stamp("p1_loaded")
    UF, A1 = 64, 128
    for j in range(8):
        for jj in range(2):
            for h in range(2):
                k(f"ds_read_b64_tr_b16 {ar(UF+(j*2+jj)*4+2*h,2)}, v{12+jj} offset:{j*2048+h*256}")
        if j >= 2:
            jm = j-2
            k("s_waitcnt lgkmcnt(8)")
            for jj in range(2):
                for mi in range(2):
                    acc = ar(A1+(jj*2+mi)*4, 4)
                    k(f"v_mfma_f32_16x16x32_bf16 {acc}, {ar(UF+(jm*2+jj)*4,4)}, {ar((jm*2+mi)*4,4)}, {'0' if jm == 0 else acc}")
    for jm in (6, 7):
        k(f"s_waitcnt lgkmcnt({4 if jm == 6 else 0})")
        for jj in range(2):
            for mi in range(2):
                acc = ar(A1+(jj*2+mi)*4, 4)
                k(f"v_mfma_f32_16x16x32_bf16 {acc}, {ar(UF+(jm*2+jj)*4,4)}, {ar((jm*2+mi)*4,4)}, {acc}")
    k(f"s_lshl_b32 s{T0}, s{S_WAVE}, 12")
    k(f"v_add_u32 v14, s{T0}, v4")
    k(f"s_and_b32 s{T1}, s{S_WAVE}, 1")
    k(f"s_lshl_b32 s{T0}, s{T1}, 10")
    k(f"v_add_u32 v15, s{T0}, v4")
    k("s_nop 3")
    for q in range(4):
        k(f"ds_write_b128 v14, {ar(A1+q*4,4)} offset:{P1R+q*1024}")
    k("s_waitcnt lgkmcnt(0)")
    k("s_barrier")
    R = 16
    for w in range(4):
        for jj in range(2):
            k(f"ds_read_b128 {vr(R+(w*2+jj)*4,4)}, v15 offset:{P1R+w*4096+jj*2048}")
    k(f"s_lshl_b32 s{T0}, s{S_M32}, 1")
    k(f"s_add_u32 s{T0}, s{T0}, s{T1}")
    k(f"s_lshl_b32 s{T2}, s{T0}, 5")
    k(f"s_add_u32 s{T2}, s{T2}, s{S_N32}")
    k(f"s_lshl_b32 s{T2}, s{T2}, 10")
    k(f"s_lshr_b32 s{T1}, s{T0}, 2")
    k(f"s_lshl_b32 s{T1}, s{T1}, 5")
    k(f"s_add_u32 s{T1}, s{T1}, s{S_N32}")
    k(f"s_lshl_b32 s{T1}, s{T1}, 2")
    k(f"s_and_b32 s{T0}, s{T0}, 3")
    k(f"s_add_u32 s{T1}, s{T1}, s{T0}")
    k(f"s_lshl_b32 s{T1}, s{T1}, 2")
    k(f"s_add_u32 s{T1}, s{T1}, {hex(F1_OFF)}")
    k(f"s_cmp_lt_u32 s{S_WAVE}, 2")
    k(f"s_cselect_b32 s{T0}, 0, {hex(OOB)}")
    FL1 = B0+12
    k(f"s_mov_b32 s{FL1}, s{T1}")
    k(f"v_add_u32 v7, s{T0}, v4")
    k("s_waitcnt lgkmcnt(0)")
    for q in range(4):
        d = R+2*q
        k(f"v_pk_add_f32 v[{d}:{d+1}], v[{d}:{d+1}], v[{d+8}:{d+9}]")
        k(f"v_pk_add_f32 v[{d+16}:{d+17}], v[{d+16}:{d+17}], v[{d+24}:{d+25}]")
    for q in range(4):
        d = R+2*q
        k(f"v_pk_add_f32 v[{d}:{d+1}], v[{d}:{d+1}], v[{d+16}:{d+17}]")
    for q in range(4):
        k(f"v_cvt_pk_bf16_f32 v{R+32+q}, v{R+2*q}, v{R+2*q+1}")
    k.vmem(f"buffer_store_dwordx4 v[{R+32}:{R+35}], v7, {srdr(SRD_WS)}, s{T2} offen sc1", "xrst")
    k.stamp("p1_done")
    k(f"s_cmp_lt_u32 s{S_I2}, 14")
    k("s_cbranch_scc1 WORKER")
    k("s_waitcnt vmcnt(0)")
    vm_save = list(k.vm)
    k.flag(f"s{FL1}", "v7")
    NPF = opt.get("npf", 4)
    if NPF:
        k("v_mul_u32_u24 v5, 7168, v2")
        k("v_lshl_add_u32 v5, v3, 4, v5")
        k(f"s_mul_i32 s{T0}, s{S_KS}, 1792")
        k(f"s_mul_i32 s{T1}, s{S_WAVE}, 448")
        k(f"s_add_u32 s{T0}, s{T0}, s{T1}")
        k(f"s_mul_i32 s{T1}, s{S_HALF}, 224")
        k(f"s_add_u32 s{T0}, s{T0}, s{T1}")
        k(f"s_sub_u32 s{T1}, s{S_I2}, 14")
        k(f"s_lshl_b32 s{T1}, s{T1}, 4")
        k(f"s_add_u32 s{T0}, s{T0}, s{T1}")
        k(f"s_add_u32 s{T0}, s{T0}, 192")
        k(f"s_mul_i32 s{T0}, s{T0}, 7168")
        k(f"s_lshr_b32 s{T1}, s{S_XCD}, 1")
        k(f"s_mul_i32 s{T1}, s{T1}, 1792")
        k(f"s_add_u32 s{T0}, s{T0}, s{T1}")
        k(f"s_mov_b32 s{S_CNT}, {NPF}")
        a.label("PF_LOOP")
        for rr in range(4):
            for t in range(7):
                k(f"buffer_load_dwordx4 {vr(16+(rr*7+t)*4,4)}, v5, {srdr(SRD_V)}, s{T0} offen offset:{256*t}")
            k(f"s_add_u32 s{T0}, s{T0}, {4*7168}")
        k(f"s_sub_u32 s{T0}, s{T0}, {48*7168}")
        k(f"s_sub_u32 s{S_CNT}, s{S_CNT}, 1")
        k(f"s_cmp_lg_u32 s{S_CNT}, 0")
        k("s_cbranch_scc1 PF_LOOP")
    k("s_waitcnt vmcnt(0)")
    k("s_branch FINISH")
    k.vm = vm_save
    a.label("WORKER")
    q_issue(2)
    SZ = 240
    WQ = 16
    k(f"s_mov_b32 s{T2}, 0x71800000")
    k(f"s_mov_b32 s{T3}, 0xa7000000")
    C100, CM49 = B0+13, B0+14
    k(f"s_mov_b32 s{C100}, s{T2}")
    k(f"s_mov_b32 s{CM49}, s{T3}")
    def sz_prep(j):
        k(f"s_lshl_b32 s{T0}, s{GI+j}, 6")
        k(f"v_lshl_add_u32 v9, v3, 2, s{T0}")
        for q in range(4):
            k(f"ds_bpermute_b32 v{248+q}, v9, v{RAW+q}")
        k("s_waitcnt lgkmcnt(0)")
        for jj in range(4):
            if jj % 2 == 0:
                k(f"v_lshlrev_b32 v{SZ+jj}, 16, v{248+jj//2}")
                k(f"v_lshlrev_b32 v{SZ+4+jj}, 16, v{250+jj//2}")
            else:
                k(f"v_and_b32 v{SZ+jj}, 0xffff0000, v{248+jj//2}")
                k(f"v_and_b32 v{SZ+4+jj}, 0xffff0000, v{250+jj//2}")
        for jj in range(4):
            k(f"v_mul_f32 v{SZ+4+jj}, v{SZ+4+jj}, v{SZ+jj}")
        for jj in range(4):
            k(f"v_mul_f32 v{SZ+jj}, s{C100}, v{SZ+jj}")
            k(f"v_mul_f32 v{SZ+4+jj}, s{CM49}, v{SZ+4+jj}")
    def dequant(st):
        b = STG + (st % 3)*32
        for i in range(8):
            for hh in range(2):
                q = b+4*i+2*hh
                k(f"v_pk_fma_f32 v[{q}:{q+1}], v[{q}:{q+1}], v[{SZ+2*hh}:{SZ+2*hh+1}], v[{SZ+4+2*hh}:{SZ+4+2*hh+1}]")
        for jj in range(4):
            for p in range(4):
                k(f"v_cvt_pk_bf16_f32 v{WQ+(st*4+jj)*4+p}, v{b+4*(2*p)+jj}, v{b+4*(2*p+1)+jj}")
    k.wait("sz")
    for st in range(8):
        if st % 2 == 0: sz_prep(st//2)
        k.wait(f"q{st}")
        if st == 1:
            k.stamp("q_own")
        if st == 2:
            k.flag(f"s{FL1}", "v7")
        dequant(st)
        if st+3 < 8: q_issue(st+3)
    k.stamp("q_all")
    k("v_lshrrev_b32 v10, 3, v1")
    k("v_mul_u32_u24 v10, 7168, v10")
    k("v_lshrrev_b32 v11, 3, v1")
    k("v_and_b32 v11, 2, v11")
    k("v_and_b32 v9, 7, v1")
    k("v_xor_b32 v11, v11, v9")
    k("v_lshl_add_u32 v10, v11, 4, v10")
    k(f"s_lshl_b32 s{T0}, s{S_T}, 7")
    k(f"v_add_u32 v10, s{T0}, v10")
    k("v_xor_b32 v11, 64, v10")
    k("v_lshrrev_b32 v12, 2, v3")
    k("v_lshrrev_b32 v13, 1, v12")
    k("v_and_b32 v14, 1, v2")
    k("v_lshl_add_u32 v13, v14, 1, v13")
    k("v_lshl_add_u32 v12, v2, 3, v12")
    k("v_lshlrev_b32 v12, 7, v12")
    k("v_lshl_add_u32 v12, v13, 5, v12")
    k("v_and_b32 v13, 3, v1")
    k("v_lshl_add_u32 v12, v13, 3, v12")
    k(f"v_add_u32 v12, s{S_AREA}, v12")
    k("v_xor_b32 v13, 32, v12")
    k("v_xor_b32 v14, 64, v12")
    k("v_xor_b32 v15, 96, v12")
    VB0, VB1 = B0, B0+1
    k(f"s_mul_i32 s{T0}, s{S_KS}, 1792")
    k(f"s_mul_i32 s{T1}, s{S_WAVE}, 448")
    k(f"s_add_u32 s{T0}, s{T0}, s{T1}")
    k(f"s_mul_i32 s{T1}, s{S_HALF}, 224")
    k(f"s_add_u32 s{VB0}, s{T0}, s{T1}")
    k(f"s_sub_u32 s{VB1}, s{T0}, s{T1}")
    k(f"s_add_u32 s{VB1}, s{VB1}, 224")
    k(f"s_mul_i32 s{VB0}, s{VB0}, 7168")
    k(f"s_mul_i32 s{VB1}, s{VB1}, 7168")
    RING = 6
    def v_issue(j):
        base = VB0 if j < 7 else VB1
        for q in range(4):
            k(f"s_add_u32 m0, s{S_AREA}, {(j % RING)*4096 + q*1024}")
            k(f"s_add_u32 s{T0}, s{base}, {hex((32*(j % 7) + 8*q)*7168)}")
            k.vmem(f"buffer_load_dwordx4 v{10+(q&1)}, {srdr(SRD_V)}, s{T0} offen lds", f"v{j}")
    def v_fetch(j):
        k.wait(f"v{j}")
        for jj in range(4):
            for h in range(2):
                k(f"ds_read_b64_tr_b16 {ar((j*4+jj)*4+2*h,2)}, v{12+jj} offset:{(j % RING)*4096 + h*512}")
    k("v_and_b32 v5, 31, v1")
    k("v_lshlrev_b32 v5, 2, v5")
    k(f"s_lshl_b32 s{T0}, s{S_M64}, 9")
    k(f"s_lshl_b32 s{T1}, s{S_WAVE}, 7")
    k(f"s_add_u32 s{T0}, s{T0}, s{T1}")
    k(f"s_add_u32 s{T2}, s{T0}, {hex(F1_OFF)}")
    k.poll("v5", f"s{T2}", "h1")
    k.stamp("h1_seen")
    XB = B0+2
    def xr_issue(p):
        b = STG + (p % 3)*32
        k(f"s_add_u32 s{T1}, s{S_WAVE}, s{S_T2}")
        k(f"s_add_u32 s{T1}, s{T1}, {p+1}")
        k(f"s_and_b32 s{T1}, s{T1}, 3")
        k(f"s_lshl_b32 s{T2}, s{S_M64}, 2")
        k(f"s_add_u32 s{T1}, s{T1}, s{T2}")
        k(f"s_lshl_b32 s{T1}, s{T1}, 2")
        k(f"s_add_u32 s{T1}, s{T1}, s{S_WAVE}")
        k(f"s_lshl_b32 s{T1}, s{T1}, 13")
        for j in range(4):
            k(f"s_lshl_b32 s{T0}, s{GI+j}, 11")
            k(f"s_add_u32 s{T0}, s{T0}, s{T1}")
            for u in range(2):
                k.vmem(f"buffer_load_dwordx4 {vr(b+(j*2+u)*4,4)}, v4, {srdr(SRD_WS)}, s{T0} offen offset:{u*1024} sc1", f"x{p}_{j}")
    for p in range(3): xr_issue(p)
    k(f"s_mul_i32 s{T0}, s{S_WAVE}, 12288")
    k(f"v_add_u32 v6, s{T0}, v4")
    OWN = 240
    def accname(p, jj, own):
        return vr(OWN+jj*4, 4) if own else ar(224+(p % 2)*16+jj*4, 4)
    VPRE = opt.get("vpre", 1)
    for p in range(4):
        b = STG + (p % 3)*32
        for st in range(8):
            if st % 2 == 0: k.wait(f"x{p}_{st//2}")
            for jj in range(4):
                acc = accname(p, jj, p == 3)
                k(f"v_mfma_f32_16x16x32_bf16 {acc}, {vr(WQ+(st*4+jj)*4,4)}, {vr(b+st*4,4)}, {'0' if st == 0 else acc}")
            if p >= 1 and st == 2:
                for jj in range(4):
                    k(f"ds_write_b128 v6, {accname(p-1, jj, False)} offset:{P2R+(p-1)*4096+jj*1024}")
        if p == 0:
            xr_issue(3)
            for j in range(VPRE): v_issue(j)
    k.stamp("p2_mfma")
    RT = 144
    def reduce_read(base_of_src, RT):
        for p in range(3):
            k(f"s_sub_u32 s{T1}, s{S_WAVE}, {p+1}")
            k(f"s_and_b32 s{T1}, s{T1}, 3")
            off = base_of_src(T1)
            k(f"v_add_u32 v5, s{T0}, v4")
            for jj in range(4):
                k(f"ds_read_b128 {vr(RT+(p*4+jj)*4,4)}, v5 offset:{off+p*4096+jj*1024}")
    def p2_base(s):
        k(f"s_mul_i32 s{T0}, s{s}, 12288")
        return P2R
    k("s_waitcnt lgkmcnt(0)")
    k("s_barrier")
    reduce_read(p2_base, RT)
    k(f"s_add_u32 s{T1}, s{S_WAVE}, s{S_T2}")
    k(f"s_and_b32 s{T1}, s{T1}, 3")
    k(f"s_lshl_b32 s{T2}, s{S_M64}, 2")
    k(f"s_add_u32 s{T2}, s{T2}, s{T1}")
    k(f"s_mul_i32 s{T2}, s{T2}, 112")
    k(f"s_lshl_b32 s{T0}, s{S_T2}, 1")
    k(f"s_add_u32 s{T2}, s{T2}, s{T0}")
    k(f"s_lshl_b32 s{T2}, s{T2}, 10")
    k(f"s_add_u32 s{T2}, s{T2}, {hex(H_OFF)}")
    FL2 = B0+2
    k(f"s_mul_i32 s{FL2}, s{S_HALF}, 56")
    k(f"s_add_u32 s{FL2}, s{FL2}, s{S_T2}")
    k(f"s_lshl_b32 s{FL2}, s{FL2}, 1")
    k(f"s_and_b32 s{T0}, s{S_M64}, 1")
    k(f"s_add_u32 s{FL2}, s{FL2}, s{T0}")
    k(f"s_lshl_b32 s{FL2}, s{FL2}, 2")
    k(f"s_add_u32 s{FL2}, s{FL2}, s{T1}")
    k(f"s_lshl_b32 s{FL2}, s{FL2}, 2")
    k(f"s_add_u32 s{FL2}, s{FL2}, {hex(F2_OFF)}")
    def reduce_add(RT):
        k("s_waitcnt lgkmcnt(8)")
        for q in range(8):
            k(f"v_pk_add_f32 v[{OWN+2*q}:{OWN+2*q+1}], v[{OWN+2*q}:{OWN+2*q+1}], v[{RT+2*q}:{RT+2*q+1}]")
        k("s_waitcnt lgkmcnt(0)")
        for q in range(8):
            k(f"v_pk_add_f32 v[{RT+16+2*q}:{RT+16+2*q+1}], v[{RT+16+2*q}:{RT+16+2*q+1}], v[{RT+32+2*q}:{RT+32+2*q+1}]")
        for q in range(8):
            k(f"v_pk_add_f32 v[{OWN+2*q}:{OWN+2*q+1}], v[{OWN+2*q}:{OWN+2*q+1}], v[{RT+16+2*q}:{RT+16+2*q+1}]")
    reduce_add(RT)
    k(f"s_mov_b32 s{T0}, 0x58000000")
    for q in range(16):
        k(f"v_mul_f32 v{OWN+q}, s{T0}, v{OWN+q}")
    PK = RT
    for f in range(2):
        for rr in range(2):
            r = 2*f+rr
            for hh in range(2):
                k(f"v_cvt_pk_bf16_f32 v{PK+f*4+rr*2+hh}, v{OWN+(2*hh)*4+r}, v{OWN+(2*hh+1)*4+r}")
    k.vmem(f"buffer_store_dwordx4 v[{PK}:{PK+3}], v4, {srdr(SRD_WS)}, s{T2} offen sc1", "hst")
    k.vmem(f"buffer_store_dwordx4 v[{PK+4}:{PK+7}], v4, {srdr(SRD_WS)}, s{T2} offen offset:1024 sc1", "hst")
    k.stamp("h_stored")
    VMID = opt.get("vmid", 3)
    for j in range(VPRE, VMID): v_issue(j)
    k.wait("hst")
    k.flag(f"s{FL2}")
    k.stamp("h_flag")
    for j in range(VMID, RING): v_issue(j)
    for j in range(14):
        v_fetch(j)
        if j+RING < 14:
            k("s_waitcnt lgkmcnt(0)")
            v_issue(j+RING)
    k("s_waitcnt lgkmcnt(0)")
    k.stamp("v_done")
    k("v_min_u32 v5, 55, v1")
    k("v_lshlrev_b32 v5, 2, v5")
    k(f"s_mul_i32 s{T0}, s{S_HALF}, 56")
    k(f"s_mul_i32 s{T1}, s{S_KS}, 28")
    k(f"s_add_u32 s{T0}, s{T0}, s{T1}")
    k(f"s_mul_i32 s{T1}, s{S_WAVE}, 7")
    k(f"s_add_u32 s{T0}, s{T0}, s{T1}")
    k(f"s_lshl_b32 s{T0}, s{T0}, 5")
    k(f"s_add_u32 s{T2}, s{T0}, {hex(F2_OFF)}")
    k.poll("v5", f"s{T2}", "h2")
    k.stamp("h2_seen")
    HB0, HB1 = B0, B0+1
    k(f"s_mul_i32 s{T0}, s{S_KS}, 56")
    k(f"s_mul_i32 s{T1}, s{S_WAVE}, 14")
    k(f"s_add_u32 s{T0}, s{T0}, s{T1}")
    k(f"s_mul_i32 s{T1}, s{S_HALF}, 7")
    k(f"s_add_u32 s{HB0}, s{T0}, s{T1}")
    k(f"s_sub_u32 s{HB1}, s{T0}, s{T1}")
    k(f"s_add_u32 s{HB1}, s{HB1}, 7")
    k(f"s_lshl_b32 s{HB0}, s{HB0}, 10")
    k(f"s_lshl_b32 s{HB1}, s{HB1}, 10")
    k(f"s_add_u32 s{HB0}, s{HB0}, {hex(H_OFF)}")
    k(f"s_add_u32 s{HB1}, s{HB1}, {hex(H_OFF)}")
    MOTH, MOWN = B0+3, B0+4
    k(f"s_lshl_b32 s{T0}, s{S_HALF}, 1")
    k(f"s_add_u32 s{MOWN}, s{T0}, s{S_KS}")
    k(f"s_xor_b32 s{MOTH}, s{MOWN}, 1")
    k(f"s_lshl_b32 s{MOWN}, s{MOWN}, 2")
    k(f"s_lshl_b32 s{MOTH}, s{MOTH}, 2")
    WT = B0+5
    k(f"s_add_u32 s{WT}, s{S_WAVE}, s{S_T}")
    HR = 16
    def h_issue(p):
        b = HR + (p % 3)*56
        k(f"s_add_u32 s{T1}, s{WT}, {(p % 4)+1}")
        k(f"s_and_b32 s{T1}, s{T1}, 3")
        k(f"s_add_u32 s{T1}, s{T1}, s{MOTH if p < 4 else MOWN}")
        k(f"s_mul_i32 s{T1}, s{T1}, {112*1024}")
        for j in range(14):
            jj7 = j % 7
            if jj7 == 0:
                k(f"s_add_u32 s{T0}, s{T1}, s{HB0 if j < 7 else HB1}")
            if jj7 == 4:
                k(f"s_add_u32 s{T0}, s{T0}, 4096")
            k.vmem(f"buffer_load_dwordx4 {vr(b+j*4,4)}, v4, {srdr(SRD_WS)}, s{T0} offen offset:{(jj7 % 4)*1024} sc1", f"h{p}_{j//2}")
    for p in range(3): h_issue(p)
    k(f"v_add_u32 v6, s{S_AREA}, v4")
    PA, PB, FL3A, FL3B = B0+6, B0+7, B0+8, B0+9
    k(f"s_mul_i32 s{T0}, s{S_HALF}, 56")
    k(f"s_add_u32 s{T0}, s{T0}, s{S_T}")
    k(f"s_lshl_b32 s{T0}, s{T0}, 1")
    k(f"s_add_u32 s{T0}, s{T0}, s{S_KS}")
    k(f"s_lshl_b32 s{T0}, s{T0}, 2")
    k(f"s_add_u32 s{T0}, s{T0}, s{S_WAVE}")
    k(f"s_xor_b32 s{T1}, s{T0}, 4")
    k(f"s_lshl_b32 s{PA}, s{T0}, 12")
    k(f"s_add_u32 s{PA}, s{PA}, {hex(PART_OFF)}")
    k(f"s_lshl_b32 s{PB}, s{T1}, 12")
    k(f"s_add_u32 s{PB}, s{PB}, {hex(PART_OFF)}")
    k(f"s_lshl_b32 s{FL3A}, s{T0}, 2")
    k(f"s_add_u32 s{FL3A}, s{FL3A}, {hex(F3_OFF)}")
    k(f"s_lshl_b32 s{FL3B}, s{T1}, 2")
    k(f"s_add_u32 s{FL3B}, s{FL3B}, {hex(F3_OFF)}")
    RT3 = 184
    def p3_base(passno):
        def f(s):
            k(f"s_mul_i32 s{T0}, s{s}, {AREA_SZ}")
            k(f"s_add_u32 s{T0}, s{T0}, {AREA}")
            return passno*12288
        return f
    for p in range(8):
        b = HR + (p % 3)*56
        own = (p % 4 == 3)
        for j in range(14):
            if j % 2 == 0: k.wait(f"h{p}_{j//2}")
            for jj in range(4):
                acc = accname(p, jj, own)
                k(f"v_mfma_f32_16x16x32_bf16 {acc}, {ar((j*4+jj)*4,4)}, {vr(b+j*4,4)}, {'0' if j == 0 else acc}")
            if j == 2 and p % 4 != 0:
                for jj in range(4):
                    k(f"ds_write_b128 v6, {accname(p-1, jj, False)} offset:{(p//4)*12288+((p-1) % 4)*4096+jj*1024}")
            if p == 4 and j == 2:
                k("s_waitcnt lgkmcnt(0)")
                k("s_barrier")
                reduce_read(p3_base(0), RT3)
            if p == 4 and j == 5:
                reduce_add(RT3)
                for jj in range(4):
                    k.vmem(f"buffer_store_dwordx4 {vr(OWN+jj*4,4)}, v4, {srdr(SRD_WS)}, s{PA} offen offset:{jj*1024} sc1", "pst")
                k.stamp("part_st")
            if p == 6 and j == 0:
                k.wait("pst")
                k.flag(f"s{FL3A}")
        if p+3 < 8: h_issue(p+3)
    k.stamp("p3_mfma")
    k("s_waitcnt lgkmcnt(0)")
    k("s_barrier")
    reduce_read(p3_base(1), RT3)
    k.poll("v0", f"s{FL3B}", "h3")
    for jj in range(4):
        k.vmem(f"buffer_load_dwordx4 {vr(16+jj*4,4)}, v4, {srdr(SRD_WS)}, s{PB} offen offset:{jj*1024} sc1", "pld")
    reduce_add(RT3)
    k(f"s_and_b32 s{T1}, s{WT}, 3")
    k(f"s_add_u32 s{T1}, s{T1}, s{MOWN}")
    k(f"s_mul_i32 s{T1}, s{T1}, {16*7168}")
    k(f"s_lshl_b32 s{T0}, s{S_T}, 7")
    k(f"s_add_u32 s{T1}, s{T1}, s{T0}")
    k("v_mul_u32_u24 v5, 7168, v3")
    k("v_lshl_add_u32 v5, v2, 3, v5")
    k.wait("pld")
    for q in range(8):
        k(f"v_pk_add_f32 v[{OWN+2*q}:{OWN+2*q+1}], v[{OWN+2*q}:{OWN+2*q+1}], v[{16+2*q}:{16+2*q+1}]")
    for q in range(8):
        k(f"v_cvt_pk_bf16_f32 v{32+q}, v{OWN+2*q}, v{OWN+2*q+1}")
    for jj in range(4):
        k(f"buffer_store_dwordx2 v[{32+2*jj}:{33+2*jj}], v5, {srdr(SRD_OUT)}, s{T1} offen offset:{32*jj}")
    k(f"s_or_b32 s{T0}, s{S_XCD}, s{S_I2}")
    k(f"s_or_b32 s{T0}, s{T0}, s{S_WAVE}")
    k(f"s_cmp_lg_u32 s{T0}, 0")
    k("s_cbranch_scc1 FINISH")
    k(f"s_add_u32 s{T0}, s{S_EP}, 1")
    k(f"v_mov_b32 v9, s{T0}")
    k(f"s_lshl_b32 s{T0}, s{S_HALF}, 7")
    k(f"s_add_u32 s{T0}, s{T0}, {hex(EP_OFF)}")
    k("s_mov_b64 exec, 1")
    k(f"buffer_store_dword v9, v0, {srdr(SRD_WS)}, s{T0} offen sc1")
    k("s_mov_b64 exec, -1")
    a.label("FINISH")
    if opt.get("stamp"):
        k("s_waitcnt vmcnt(0)")
        k("s_memrealtime s[6:7]")
        k("s_load_dwordx2 s[70:71], s[0:1], 64")
        k("s_waitcnt lgkmcnt(0)")
        srd(a, 76, 70, 1 << 20, STAMP_OFF)
        k("s_lshl_b32 s70, s2, 2")
        k(f"s_add_u32 s70, s70, s{S_WAVE}")
        k("s_lshl_b32 s70, s70, 7")
        regs = [100] + [r for _, r in k.stamps] + [6]
        k("s_mov_b64 exec, 1")
        for i, r in enumerate(regs):
            k(f"v_mov_b32 v16, s{r}")
            k(f"v_mov_b32 v17, s{r+1}")
            k(f"buffer_store_dwordx2 v[16:17], v0, s[76:79], s70 offen offset:{i*8}")
            k("s_nop 1")
    a.label("DONE")
    k("s_endpgm")
    kernel_desc(a, KNAME, 512, 102, 256)
    return a.text(), ["start"] + [n for n, _ in k.stamps] + ["end"]

if __name__ == "__main__":
    opt = {}
    for s in sys.argv[2:]:
        kk, v = s.split("=")
        opt[kk] = int(v)
    txt, names = build(opt)
    open(sys.argv[1], "w").write(txt)
    print(names, len(txt))
```

```python
import sys
from asmlib import *

KNAME = "standalone__weight_only_int_quip__sampling_kernel"
XR_OFF   = 0
H_OFF    = 1 << 20
F1_OFF   = 3 << 20
F2_OFF   = F1_OFF + 4096
F3_OFF   = F1_OFF + 8192
EP_OFF   = F1_OFF + 16384
PART_OFF = 4 << 20
WS_BYTES = 8 << 20
STAMP_OFF = 128 << 20
OOB = 0x7f000000
AREA_SZ = 40960
P2R = 20480
P1R = 32768
LDS_BYTES = 163840
RING = 5

S_WAVE, S_EP = 4, 5
SRD_X, SRD_QW, SRD_SC, SRD_Z, SRD_U, SRD_V, SRD_OUT, SRD_WS = 28, 32, 36, 40, 44, 48, 52, 56
S_XCD, S_HALF, S_I2, S_M32, S_N64, S_M64, S_T2, S_KS, S_T, S_TAG = 60, 61, 62, 63, 64, 65, 66, 67, 68, 69
T0, T1, T2, T3 = 70, 71, 72, 73
S_AREA, S_CNT = 74, 75
L0, L1 = 76, 77
QB, GI = 78, 82
FL1, VB, XST_, XRB, HB, RHO, MOTH, MOWN, WT = 86, 87, 88, 89, 90, 91, 92, 93, 3
PF1, PF2, FL2, HST = 6, 7, 26, 27
PA, PB, FL3A, FL3B = 94, 95, 96, 97

V_L16, V_X0, V_X1, V_T2, V_Q, V_T, V_VD0, V_VD1, V_TR = 4, 5, 6, 7, 8, 9, 10, 11, 12
WQ, STG, SZ, RAW, OWN = 16, 144, 240, 252, 240
QR = 20
V_U0, V_U1, V_XR0, V_XR1 = 224, 225, 226, 227
V_DUM = 228
V_RW, V_RR = 232, 233
V_P1, V_P2, V_PR = 236, 237, 238
RT, PK, PLD = 144, 192, 208
STAMP_REGS = list(range(8, 26, 2)) + [28, 30, 44, 46, 36]
STAMP_NAMES = ["p1_loaded", "p1_done", "q_half", "v1_done", "h1_seen", "q_all", "p2_mfma", "h_flag", "h2_seen", "v_done", "part_st", "p3_mfma"]

def TIMER(o): return "s_memtime" if o.get("cyc") else "s_memrealtime"
def srdr(b): return f"s[{b}:{b+3}]"
def vslot(j): return 128 + 16*j if j < 6 else 16*(j-6)

class K:
    uid = 0
    def __init__(self, a, opt):
        self.a = a; self.o = opt
        self.vm = []; self.done = 0
        self.stream = []; self.sp = 0; self.gates = set()
        self.L = opt.get("L", 12)
    def __call__(self, s): self.a(s)
    def vmem(self, s, tag):
        self.a(s); self.vm.append(tag)
    def isdone(self, tag):
        return tag in self.vm and tag not in [t for t, _, _ in self.stream[self.sp:]] and self.done > max(i for i, t in enumerate(self.vm) if t == tag)
    def wait(self, tag):
        while tag in [t for t, _, _ in self.stream[self.sp:]]:
            assert self.issue_one(force=True), f"gate closed while waiting for {tag}: {self.stream[self.sp]}"
        idx = max(i for i, t in enumerate(self.vm) if t == tag)
        if idx < self.done: return
        n = len(self.vm) - 1 - idx
        self.a(f"s_waitcnt vmcnt({min(n, 63)})")
        self.done = idx + 1
    def add(self, tag, fn, *gates): self.stream.append((tag, fn, [g for g in gates if g]))
    def issue_one(self, force=False):
        if self.sp >= len(self.stream): return False
        tag, fn, gates = self.stream[self.sp]
        if any(g not in self.gates for g in gates): return False
        if not force and len(self.vm) - self.done >= self.L: return False
        self.sp += 1
        fn(tag)
        return True
    def pump(self, n=99):
        while n > 0 and self.issue_one(): n -= 1
    def open(self, g): self.gates.add(g)
    def stamp(self, name):
        if not self.o.get("stamp"): return
        r = STAMP_REGS[STAMP_NAMES.index(name)]
        self.a(f"{TIMER(self.o)} s[{r}:{r+1}]")
        self.a("s_waitcnt lgkmcnt(0)")
    def lab(self, p):
        K.uid += 1
        return f"{p}_{K.uid}"
    def poll_item(self, voff, soff):
        return lambda tag: self.vmem(f"buffer_load_dword v{V_PR}, {voff}, {srdr(SRD_WS)}, {soff} offen sc1", tag)
    def poll_check(self, tag, voff, soff):
        self.wait(tag)
        L = self.lab("POLL"); E = self.lab("POLLX")
        self(f"v_cmp_ne_u32 vcc, s{S_TAG}, v{V_PR}")
        self(f"s_mov_b32 s{S_CNT}, 0")
        self(f"s_cbranch_vccz {E}")
        self.a.label(L)
        self(f"buffer_load_dword v{V_PR}, {voff}, {srdr(SRD_WS)}, {soff} offen sc1")
        self(f"s_add_u32 s{S_CNT}, s{S_CNT}, 1")
        self("s_waitcnt vmcnt(0)")
        self(f"v_cmp_ne_u32 vcc, s{S_TAG}, v{V_PR}")
        self(f"s_cmp_gt_u32 s{S_CNT}, 0x40000")
        self(f"s_cbranch_scc1 {E}")
        self(f"s_cbranch_vccnz {L}")
        self.a.label(E)
    def flag(self, soff):
        self(f"v_mov_b32 v{V_T2}, s{S_TAG}")
        self("s_mov_b64 exec, 1")
        self.vmem(f"buffer_store_dword v{V_T2}, v0, {srdr(SRD_WS)}, {soff} offen sc1", "flag")
        self("s_mov_b64 exec, -1")

def dma_voff(k, d0, d1, rowbytes, s_add):
    k(f"v_lshrrev_b32 v{d0}, 3, v1")
    k(f"v_and_b32 v{d1}, 2, v{d0}")
    k(f"v_mul_u32_u24 v{d0}, {rowbytes}, v{d0}")
    k(f"v_and_b32 v{V_T2}, 7, v1")
    k(f"v_xor_b32 v{d1}, v{d1}, v{V_T2}")
    k(f"v_lshl_add_u32 v{d0}, v{d1}, 4, v{d0}")
    k(f"v_add_u32 v{d0}, s{s_add}, v{d0}")
    k(f"v_xor_b32 v{d1}, 64, v{d0}")

def tr_addrs(k):
    k("v_lshrrev_b32 v12, 2, v3")
    k("v_lshrrev_b32 v13, 1, v12")
    k("v_and_b32 v14, 1, v2")
    k("v_lshl_add_u32 v13, v14, 1, v13")
    k("v_lshl_add_u32 v12, v2, 3, v12")
    k("v_lshlrev_b32 v12, 7, v12")
    k("v_lshl_add_u32 v12, v13, 5, v12")
    k("v_and_b32 v13, 3, v1")
    k("v_lshl_add_u32 v12, v13, 3, v12")
    k(f"v_add_u32 v12, s{S_AREA}, v12")
    k("v_xor_b32 v13, 32, v12")
    k("v_xor_b32 v14, 64, v12")
    k("v_xor_b32 v15, 96, v12")

def role_ids(k):
    k(f"s_and_b32 s{T0}, s{S_I2}, 1")
    k(f"s_lshl_b32 s{S_M64}, s{S_HALF}, 1")
    k(f"s_add_u32 s{S_M64}, s{S_M64}, s{T0}")
    k(f"s_lshr_b32 s{T0}, s{S_I2}, 1")
    k(f"s_mul_i32 s{S_T2}, s{S_XCD}, 7")
    k(f"s_add_u32 s{S_T2}, s{S_T2}, s{T0}")

def q_setup(k, oob):
    if oob:
        k(f"s_cmp_lt_u32 s{S_I2}, 14")
        k(f"s_cselect_b32 s{T2}, 0, {hex(OOB)}")
    k(f"v_mul_u32_u24 v{V_Q}, {4*14336}, v2")
    k(f"v_lshl_add_u32 v{V_Q}, v3, 4, v{V_Q}")
    k(f"s_lshl_b32 s{T0}, s{S_T2}, 8")
    if oob: k(f"s_add_u32 s{T0}, s{T0}, s{T2}")
    k(f"v_add_u32 v{V_Q}, s{T0}, v{V_Q}")
    k(f"v_mul_u32_u24 v{V_T}, 7168, v2")
    k(f"v_lshl_add_u32 v{V_T}, v3, 3, v{V_T}")
    k(f"s_mul_i32 s{T0}, s{S_WAVE}, {4*7168}")
    k(f"s_lshl_b32 s{T1}, s{S_T2}, 7")
    k(f"s_add_u32 s{T0}, s{T0}, s{T1}")
    if oob: k(f"s_add_u32 s{T0}, s{T0}, s{T2}")
    k(f"v_add_u32 v{V_T}, s{T0}, v{V_T}")
    k(f"s_lshl_b32 s{T1}, s{S_HALF}, 1")
    for j in range(4):
        k(f"s_xor_b32 s{GI+j}, s{T1}, {j}")
        k(f"s_lshl_b32 s{T0}, s{S_WAVE}, 2")
        k(f"s_add_u32 s{T0}, s{T0}, s{GI+j}")
        k(f"s_mul_i32 s{QB+j}, s{T0}, {64*14336}")

def epoch_load(k):
    k(f"s_lshl_b32 s{T0}, s{S_HALF}, 7")
    k(f"s_add_u32 s{T0}, s{T0}, {hex(EP_OFF)}")
    k(f"s_load_dword s{S_EP}, s[24:25], s{T0}")

def tag_calc(k):
    k("s_waitcnt lgkmcnt(0)")
    k(f"s_mul_i32 s{S_TAG}, s{S_EP}, 0x9e3779b1")
    k(f"s_add_u32 s{S_TAG}, s{S_TAG}, 0x7f4a7c15")
    k(f"s_lshr_b32 s{T0}, s{S_TAG}, 15")
    k(f"s_xor_b32 s{S_TAG}, s{S_TAG}, s{T0}")
    k(f"s_mul_i32 s{S_TAG}, s{S_TAG}, 0x85ebca6b")

def red_addrs(k, add):
    k(f"s_add_u32 s{T0}, s{S_AREA}, {add}")
    k(f"v_add_u32 v{V_RW}, s{T0}, v{V_L16}")
    for p in range(3):
        k(f"s_sub_u32 s{T1}, s{S_WAVE}, {p+1}")
        k(f"s_and_b32 s{T1}, s{T1}, 3")
        k(f"s_mul_i32 s{T1}, s{T1}, {AREA_SZ}")
        k(f"s_add_u32 s{T1}, s{T1}, {add+p*4096}")
        k(f"v_add_u32 v{V_RR+p}, s{T1}, v{V_L16}")

def late_setup(k):
    k(f"s_and_b32 s{S_KS}, s{S_XCD}, 1")
    k(f"s_lshr_b32 s{T0}, s{S_XCD}, 1")
    k(f"s_mul_i32 s{S_T}, s{T0}, 14")
    k(f"s_xor_b32 s{T0}, s{S_I2}, s{S_HALF}")
    k(f"s_add_u32 s{S_T}, s{S_T}, s{T0}")
    k(f"s_add_u32 s{XRB}, s{S_WAVE}, s{S_T2}")
    k(f"s_lshl_b32 s{T0}, s{S_T}, 7")
    dma_voff(k, V_VD0, V_VD1, 7168, T0)
    k(f"s_mul_i32 s{T0}, s{S_KS}, 56")
    k(f"s_mul_i32 s{T1}, s{S_WAVE}, 14")
    k(f"s_add_u32 s{HB}, s{T0}, s{T1}")
    k(f"s_mul_i32 s{VB}, s{HB}, {32*7168}")
    k(f"s_lshl_b32 s{HB}, s{HB}, 10")
    k(f"s_add_u32 s{HB}, s{HB}, {hex(H_OFF)}")
    k(f"s_lshl_b32 s{T0}, s{S_HALF}, 1")
    k(f"s_add_u32 s{MOWN}, s{T0}, s{S_KS}")
    k(f"s_xor_b32 s{MOTH}, s{MOWN}, 1")
    k(f"s_lshl_b32 s{MOWN}, s{MOWN}, 2")
    k(f"s_lshl_b32 s{MOTH}, s{MOTH}, 2")
    k(f"s_add_u32 s{WT}, s{S_WAVE}, s{S_T}")
    k(f"v_and_b32 v{V_P1}, 31, v1")
    k(f"v_lshlrev_b32 v{V_P1}, 2, v{V_P1}")
    k(f"s_lshl_b32 s{T0}, s{S_M64}, 9")
    k(f"s_lshl_b32 s{T1}, s{S_WAVE}, 7")
    k(f"s_add_u32 s{T0}, s{T0}, s{T1}")
    k(f"s_add_u32 s{PF1}, s{T0}, {hex(F1_OFF)}")
    k(f"v_min_u32 v{V_P2}, 55, v1")
    k(f"v_lshlrev_b32 v{V_P2}, 2, v{V_P2}")
    k(f"s_mul_i32 s{T0}, s{S_HALF}, 56")
    k(f"s_mul_i32 s{T1}, s{S_KS}, 28")
    k(f"s_add_u32 s{T1}, s{T0}, s{T1}")
    k(f"s_mul_i32 s{T2}, s{S_WAVE}, 7")
    k(f"s_add_u32 s{T1}, s{T1}, s{T2}")
    k(f"s_lshl_b32 s{T1}, s{T1}, 5")
    k(f"s_add_u32 s{PF2}, s{T1}, {hex(F2_OFF)}")
    k(f"s_and_b32 s{T1}, s{XRB}, 3")
    k(f"s_lshl_b32 s{T2}, s{S_M64}, 2")
    k(f"s_add_u32 s{T2}, s{T2}, s{T1}")
    k(f"s_mul_i32 s{T2}, s{T2}, 112")
    k(f"s_lshl_b32 s{T3}, s{S_T2}, 1")
    k(f"s_add_u32 s{T2}, s{T2}, s{T3}")
    k(f"s_lshl_b32 s{T2}, s{T2}, 10")
    k(f"s_add_u32 s{HST}, s{T2}, {hex(H_OFF)}")
    k(f"s_add_u32 s{FL2}, s{T0}, s{S_T2}")
    k(f"s_lshl_b32 s{FL2}, s{FL2}, 1")
    k(f"s_and_b32 s{T2}, s{S_M64}, 1")
    k(f"s_add_u32 s{FL2}, s{FL2}, s{T2}")
    k(f"s_lshl_b32 s{FL2}, s{FL2}, 2")
    k(f"s_add_u32 s{FL2}, s{FL2}, s{T1}")
    k(f"s_lshl_b32 s{FL2}, s{FL2}, 2")
    k(f"s_add_u32 s{FL2}, s{FL2}, {hex(F2_OFF)}")
    k(f"s_add_u32 s{T0}, s{T0}, s{S_T}")
    k(f"s_lshl_b32 s{T0}, s{T0}, 1")
    k(f"s_add_u32 s{T0}, s{T0}, s{S_KS}")
    k(f"s_lshl_b32 s{T0}, s{T0}, 2")
    k(f"s_add_u32 s{T0}, s{T0}, s{S_WAVE}")
    k(f"s_xor_b32 s{T1}, s{T0}, 4")
    k(f"s_lshl_b32 s{PA}, s{T0}, 12")
    k(f"s_add_u32 s{PA}, s{PA}, {hex(PART_OFF)}")
    k(f"s_lshl_b32 s{PB}, s{T1}, 12")
    k(f"s_add_u32 s{PB}, s{PB}, {hex(PART_OFF)}")
    k(f"s_lshl_b32 s{FL3A}, s{T0}, 2")
    k(f"s_add_u32 s{FL3A}, s{FL3A}, {hex(F3_OFF)}")
    k(f"s_lshl_b32 s{FL3B}, s{T1}, 2")
    k(f"s_add_u32 s{FL3B}, s{FL3B}, {hex(F3_OFF)}")

def pkadd(k, d, s, n=8):
    for q in range(n):
        k(f"v_pk_add_f32 v[{d+2*q}:{d+2*q+1}], v[{d+2*q}:{d+2*q+1}], v[{s+2*q}:{s+2*q+1}]")

def sz_items(k, *g):
    k.add("sz", lambda t: k.vmem(f"buffer_load_dwordx2 v[{RAW}:{RAW+1}], v{V_T}, {srdr(SRD_SC)}, 0 offen", t), *g)
    k.add("sz", lambda t: k.vmem(f"buffer_load_dwordx2 v[{RAW+2}:{RAW+3}], v{V_T}, {srdr(SRD_Z)}, 0 offen", t))
def q_item(k, n):
    st, i = n//8, n % 8
    j, u = st//2, st % 2
    ro = 32*u + (i if i < 4 else 12+i)
    def f(tag):
        so = f"s{QB+j}"
        if ro:
            k(f"s_add_u32 s{L0}, s{QB+j}, {hex(ro*14336)}")
            so = f"s{L0}"
        k.vmem(f"buffer_load_dwordx4 {vr(STG+4*(n % QR),4)}, v{V_Q}, {srdr(SRD_QW)}, {so} offen", tag)
    k.add(f"q{n//2}", f, f"qfree{n-QR}" if n >= QR else None)
def xpf_item(k, i):
    def f(tag):
        k(f"s_lshr_b32 s{L0}, s{S_I2}, 1")
        k(f"s_add_u32 s{L0}, s{L0}, {7*i}")
        k(f"s_min_u32 s{L0}, s{L0}, 31")
        k(f"s_lshr_b32 s{L1}, s{L0}, 3")
        k(f"s_mul_i32 s{L1}, s{L1}, 24")
        k(f"s_add_u32 s{L0}, s{L0}, s{L1}")
        k(f"s_lshl_b32 s{L1}, s{S_M64}, 4")
        k(f"s_add_u32 s{L1}, s{L1}, s{S_WAVE}")
        k(f"s_lshl_b32 s{L1}, s{L1}, 3")
        k(f"s_add_u32 s{L0}, s{L0}, s{L1}")
        k(f"s_lshl_b32 s{L0}, s{L0}, 10")
        k.vmem(f"buffer_load_dwordx4 {vr(V_DUM,4)}, v{V_L16}, {srdr(SRD_WS)}, s{L0} offen sc1", tag)
    k.add("xpf", f, "h1")
def xr_item(k, p, st):
    j, u = st//2, st % 2
    def f(tag):
        if st == 0:
            k(f"s_add_u32 s{L1}, s{XRB}, {p+1}")
            k(f"s_and_b32 s{L1}, s{L1}, 3")
            k(f"s_lshl_b32 s{L0}, s{S_M64}, 2")
            k(f"s_add_u32 s{L1}, s{L1}, s{L0}")
            k(f"s_lshl_b32 s{L1}, s{L1}, 2")
            k(f"s_add_u32 s{L1}, s{L1}, s{S_WAVE}")
            k(f"s_lshl_b32 s{L1}, s{L1}, 13")
        if u == 0:
            k(f"s_lshl_b32 s{L0}, s{GI+j}, 11")
            k(f"s_add_u32 s{L0}, s{L0}, s{L1}")
        k.vmem(f"buffer_load_dwordx4 {ar((p*8+st)*4,4)}, v{V_L16}, {srdr(SRD_WS)}, s{L0} offen offset:{u*1024} sc1", tag)
    k.add(f"x{p}_{st}", f, "h1")
def v_item(k, n, j, q, *g):
    def f(tag):
        k(f"s_add_u32 m0, s{S_AREA}, {(n % RING)*4096 + q*1024}")
        k(f"s_add_u32 s{L0}, s{VB}, {hex((64*(j >> 1) + 8*(j & 1) + 16*q)*7168)}")
        k.vmem(f"buffer_load_dwordx4 v{V_VD0+(q&1)}, {srdr(SRD_V)}, s{L0} offen lds", tag)
    k.add(f"v{n}", f, f"vfree{n-RING}" if (n >= RING and q == 0) else None, *g)
def hpf_item(k, i):
    def f(tag):
        if i == 0:
            k(f"s_xor_b32 s{L1}, s{S_I2}, s{S_HALF}")
            k(f"s_lshl_b32 s{L1}, s{L1}, 10")
            k(f"s_add_u32 s{L1}, s{L1}, s{HB}")
        k(f"s_add_u32 s{L0}, s{MOTH if i < 4 else MOWN}, {i % 4}")
        k(f"s_mul_i32 s{L0}, s{L0}, {112*1024}")
        k(f"s_add_u32 s{L0}, s{L0}, s{L1}")
        k.vmem(f"buffer_load_dwordx4 {vr(V_DUM,4)}, v{V_L16}, {srdr(SRD_WS)}, s{L0} offen sc1", tag)
    k.add("hpf", f, "h2")
HRN = 32
def h_item(k, p, j):
    n = p*14+j
    def f(tag):
        if j == 0:
            k(f"s_add_u32 s{L1}, s{WT}, {(p % 4)+1}")
            k(f"s_and_b32 s{L1}, s{L1}, 3")
            k(f"s_add_u32 s{L1}, s{L1}, s{MOTH if p < 4 else MOWN}")
            k(f"s_mul_i32 s{L1}, s{L1}, {112*1024}")
            k(f"s_add_u32 s{L1}, s{L1}, s{HB}")
        elif j % 4 == 0:
            k(f"s_add_u32 s{L1}, s{L1}, 4096")
        k.vmem(f"buffer_load_dwordx4 {vr(WQ+4*(n % HRN),4)}, v{V_L16}, {srdr(SRD_WS)}, s{L1} offen offset:{(j % 4)*1024} sc1", tag)
    k.add(f"h{p}_{j}", f, "h2")

def sz_prep(k, j):
    k(f"s_lshl_b32 s{T0}, s{GI+j}, 6")
    k(f"v_lshl_add_u32 v{V_X0}, v3, 2, s{T0}")
    for q in range(4):
        k(f"ds_bpermute_b32 v{248+q}, v{V_X0}, v{RAW+q}")
    k(f"s_mov_b32 s{T2}, 0x71800000")
    k(f"s_mov_b32 s{T3}, 0xa7000000")
    k("s_waitcnt lgkmcnt(0)")
    for jj in range(4):
        if jj % 2 == 0:
            k(f"v_lshlrev_b32 v{SZ+jj}, 16, v{248+jj//2}")
            k(f"v_lshlrev_b32 v{SZ+4+jj}, 16, v{250+jj//2}")
        else:
            k(f"v_and_b32 v{SZ+jj}, 0xffff0000, v{248+jj//2}")
            k(f"v_and_b32 v{SZ+4+jj}, 0xffff0000, v{250+jj//2}")
    for jj in range(4):
        k(f"v_mul_f32 v{SZ+4+jj}, v{SZ+4+jj}, v{SZ+jj}")
    for jj in range(4):
        k(f"v_mul_f32 v{SZ+jj}, s{T2}, v{SZ+jj}")
        k(f"v_mul_f32 v{SZ+4+jj}, s{T3}, v{SZ+4+jj}")

def events(k):
    if "xrst" in k.vm and "f1" not in k.gates and k.isdone("xrst"):
        k.flag(f"s{FL1}"); k.open("f1")
    if "h1" not in k.gates and k.isdone("poll1"):
        k.poll_check("poll1", f"v{V_P1}", f"s{PF1}"); k.open("h1"); k.stamp("h1_seen")
    if "h2" not in k.gates and k.isdone("poll2"):
        k.poll_check("poll2", f"v{V_P2}", f"s{PF2}"); k.open("h2"); k.stamp("h2_seen")
    if "pst" in k.vm and "f3" not in k.gates and k.isdone("pst"):
        k.flag(f"s{FL3A}"); k.open("f3")
    if "h3" not in k.gates and k.isdone("poll3"):
        k.poll_check("poll3", "v0", f"s{FL3B}"); k.open("h3")

def need(k, tag):
    while tag in [t for t, _, _ in k.stream[k.sp:]]:
        if k.issue_one(force=True): continue
        g = [g for g in k.stream[k.sp][2] if g not in k.gates][0]
        k.wait({"h1": "poll1", "h2": "poll2", "h3": "poll3"}[g])
        events(k)
    k.wait(tag)
    events(k)

def dequant_pair(k, pr):
    st, p = pr//4, pr % 4
    if pr % 8 == 0: sz_prep(k, pr//8)
    need(k, f"q{pr}")
    k.pump()
    r0, r1 = STG+4*((2*pr) % QR), STG+4*((2*pr+1) % QR)
    for r in (r0, r1):
        for hh in range(2):
            q = r+2*hh
            k(f"v_pk_fma_f32 v[{q}:{q+1}], v[{q}:{q+1}], v[{SZ+2*hh}:{SZ+2*hh+1}], v[{SZ+4+2*hh}:{SZ+4+2*hh+1}]")
    for jj in range(4):
        k(f"v_cvt_pk_bf16_f32 v{WQ+(st*4+jj)*4+p}, v{r0+jj}, v{r1+jj}")
    k.open(f"qfree{2*pr}"); k.open(f"qfree{2*pr+1}")

def v_fetch(k, n, j):
    need(k, f"v{n}")
    if n >= 1 and f"vfree{n-1}" not in k.gates:
        k("s_waitcnt lgkmcnt(0)")
        k.open(f"vfree{n-1}")
    for jj in range(4):
        for h in range(2):
            k(f"ds_read_b64_tr_b16 {ar(vslot(j)+jj*4+2*h,2)}, v{V_TR+jj} offset:{(n % RING)*4096 + h*512}")
    k.pump()

def accname(p, jj, own):
    return vr(OWN+jj*4, 4) if own else ar(224+(p % 2)*16+jj*4, 4)
def red_read(k, off):
    for p in range(3):
        for jj in range(4):
            k(f"ds_read_b128 {vr(RT+(p*4+jj)*4,4)}, v{V_RR+p} offset:{off+jj*1024}")

def tail_stream(k, vorder, nv1, o, role):
    for p in range(4):
        for st in range(8): xr_item(k, p, st)
    vpre, vmid = o.get("vpre"+role, 4), o.get("vmid"+role, 10)
    p2back = o.get("p2back"+role, 16)
    rest = [(n, j, q) for n, j in enumerate(vorder) if n >= nv1 for q in range(4)]
    for i, (n, j, q) in enumerate(rest):
        if i == len(rest) - p2back:
            k.add("poll2", k.poll_item(f"v{V_P2}", f"s{PF2}"), "hflag")
        if o.get("hpf", 1) and i == len(rest) - p2back + o.get("pgap", 8):
            for t in range(8): hpf_item(k, t)
        v_item(k, n, j, q, "hstored" if i == vpre else None, "hflag" if i == vmid else None)
    for p in range(8):
        for j in range(14):
            if p == 7 and j == 0: k.add("poll3", k.poll_item("v0", f"s{FL3B}"), "f3")
            if p == 7 and j == 10:
                for jj in range(4):
                    k.add("pld", (lambda jj: lambda t: k.vmem(f"buffer_load_dwordx4 {vr(PLD+jj*4,4)}, v{V_L16}, {srdr(SRD_WS)}, s{PB} offen offset:{jj*1024} sc1", t))(jj), "h3")
            h_item(k, p, j)

def q_stream(k, lo, hi, o, role):
    p1pos = o.get("p1pos"+role, 44)
    for n in range(lo, hi):
        if n == p1pos: k.add("poll1", k.poll_item(f"v{V_P1}", f"s{PF1}"), "setup")
        if o.get("xpf", 1) and n == p1pos + o.get("pgap", 8):
            for i in range(5): xpf_item(k, i)
        q_item(k, n)

def tail_main(k, vorder, nv1, o):
    k.stamp("q_all")
    for p in range(4):
        for st in range(8):
            need(k, f"x{p}_{st}")
            k.pump()
            for jj in range(4):
                acc = accname(p, jj, p == 3)
                k(f"v_mfma_f32_16x16x32_bf16 {acc}, {vr(WQ+(st*4+jj)*4,4)}, {ar((p*8+st)*4,4)}, {'0' if st == 0 else acc}")
            if p >= 1 and st == 1:
                for jj in range(4):
                    k(f"ds_write_b128 v{V_RW}, {accname(p-1, jj, False)} offset:{P2R+(p-1)*4096+jj*1024}")
            if p == 3 and st == 3:
                k("s_waitcnt lgkmcnt(0)")
                k("s_barrier")
                red_read(k, P2R)
            if p == 3 and st == 5:
                k("s_waitcnt lgkmcnt(4)")
                pkadd(k, RT, RT+16)
            if p == 3 and st == 6:
                k("s_waitcnt lgkmcnt(0)")
                pkadd(k, RT, RT+32)
    k.stamp("p2_mfma")
    k("s_nop 4")
    pkadd(k, OWN, RT)
    for f in range(2):
        for rr in range(2):
            r = 2*f+rr
            for hh in range(2):
                k(f"v_cvt_pk_bf16_f32 v{PK+f*4+rr*2+hh}, v{OWN+(2*hh)*4+r}, v{OWN+(2*hh+1)*4+r}")
    k.vmem(f"buffer_store_dwordx4 v[{PK}:{PK+3}], v{V_L16}, {srdr(SRD_WS)}, s{HST} offen sc1", "hst")
    k.vmem(f"buffer_store_dwordx4 v[{PK+4}:{PK+7}], v{V_L16}, {srdr(SRD_WS)}, s{HST} offen offset:1024 sc1", "hst")
    k.open("hstored")
    k.pump()
    k.wait("hst")
    k.flag(f"s{FL2}")
    k.stamp("h_flag")
    k.open("hflag")
    k.pump()
    for n, j in enumerate(vorder):
        if n >= nv1: v_fetch(k, n, j)
    k("s_waitcnt lgkmcnt(0)")
    k.stamp("v_done")
    for p in range(8):
        own = (p % 4 == 3)
        off = 0 if p < 4 else P2R
        for j in range(14):
            n = p*14+j
            need(k, f"h{p}_{j}")
            k.pump()
            for jj in range(4):
                acc = accname(p, jj, own)
                k(f"v_mfma_f32_16x16x32_bf16 {acc}, {ar(vslot(j)+jj*4,4)}, {vr(WQ+4*(n % HRN),4)}, {'0' if j == 0 else acc}")
            if j == 1 and p % 4 != 0:
                for jj in range(4):
                    k(f"ds_write_b128 v{V_RW}, {accname(p-1, jj, False)} offset:{off+((p-1) % 4)*4096+jj*1024}")
            if own and j == 6:
                k("s_waitcnt lgkmcnt(0)")
                k("s_barrier")
                red_read(k, off)
            if own and j == 9:
                k("s_waitcnt lgkmcnt(4)")
                pkadd(k, RT, RT+16)
            if own and j == 11:
                k("s_waitcnt lgkmcnt(0)")
                pkadd(k, RT, RT+32)
            if p == 7 and j == 12:
                assert k.isdone("pld")
                pkadd(k, RT, PLD)
            if p == 4 and j == 1:
                pkadd(k, RT, OWN)
                for jj in range(4):
                    k.vmem(f"buffer_store_dwordx4 {vr(RT+jj*4,4)}, v{V_L16}, {srdr(SRD_WS)}, s{PA} offen offset:{jj*1024} sc1", "pst")
                k.stamp("part_st")
            if p == 6 and j == 3:
                k(f"s_and_b32 s{T1}, s{WT}, 3")
                k(f"s_add_u32 s{T1}, s{T1}, s{MOWN}")
                k(f"s_mul_i32 s{T1}, s{T1}, {16*7168}")
                k(f"s_lshl_b32 s{T0}, s{S_T}, 7")
                k(f"s_add_u32 s{T1}, s{T1}, s{T0}")
                k("v_mul_u32_u24 v5, 7168, v3")
                k("v_and_b32 v6, 1, v2")
                k("v_lshl_add_u32 v5, v6, 5, v5")
                k("v_lshrrev_b32 v6, 1, v2")
                k("v_lshl_add_u32 v5, v6, 4, v5")
    k.stamp("p3_mfma")
    k("s_nop 4")
    pkadd(k, OWN, RT)
    for q in range(8):
        k(f"v_cvt_pk_bf16_f32 v{PK+q}, v{OWN+2*q}, v{OWN+2*q+1}")
    k("s_nop 1")
    for pr in range(2):
        k(f"v_permlane16_swap_b32 v{PK+4*pr}, v{PK+4*pr+2}")
        k(f"v_permlane16_swap_b32 v{PK+4*pr+1}, v{PK+4*pr+3}")
    yfl = o.get("yfl", "")
    for pr in range(2):
        k(f"buffer_store_dwordx4 v[{PK+4*pr}:{PK+4*pr+3}], v5, {srdr(SRD_OUT)}, s{T1} offen offset:{64*pr} {yfl}")
    assert k.sp == len(k.stream)

def prefetch_loop(k, first_chunk, count, label):
    k("v_mul_u32_u24 v5, 7168, v2")
    k("v_lshl_add_u32 v5, v3, 4, v5")
    k(f"s_and_b32 s{T0}, s{S_XCD}, 1")
    k(f"s_mul_i32 s{T0}, s{T0}, 1792")
    k(f"s_mul_i32 s{T1}, s{S_WAVE}, 448")
    k(f"s_add_u32 s{T0}, s{T0}, s{T1}")
    k(f"s_lshl_b32 s{T1}, s{S_HALF}, 4")
    k(f"s_sub_u32 s{T0}, s{T0}, s{T1}")
    k(f"s_add_u32 s{T0}, s{T0}, {16*first_chunk}")
    k(f"s_mul_i32 s{T0}, s{T0}, 7168")
    k(f"s_lshr_b32 s{T1}, s{S_XCD}, 1")
    k(f"s_mul_i32 s{T1}, s{T1}, 1792")
    k(f"s_add_u32 s{T0}, s{T0}, s{T1}")
    k(f"s_mov_b32 s{S_CNT}, {count}")
    k.a.label(label)
    for rr in range(4):
        for t in range(7):
            k(f"buffer_load_dwordx4 {vr(16+(rr*7+t)*4,4)}, v5, {srdr(SRD_V)}, s{T0} offen offset:{256*t}")
        k(f"s_add_u32 s{T0}, s{T0}, {4*7168}")
    k(f"s_sub_u32 s{T0}, s{T0}, {48*7168}")
    k(f"s_sub_u32 s{S_CNT}, s{S_CNT}, 1")
    k(f"s_cmp_lg_u32 s{S_CNT}, 0")
    k(f"s_cbranch_scc1 {label}")
    k("s_waitcnt vmcnt(0)")

def role_a(a, o):
    k = K(a, o)
    a.label("ROLE_A")
    k(f"s_lshr_b32 s{T0}, s{S_I2}, 1")
    k(f"s_and_b32 s{T1}, s{T0}, 1")
    k(f"s_lshl_b32 s{S_N64}, s{S_XCD}, 1")
    k(f"s_add_u32 s{S_N64}, s{S_N64}, s{T1}")
    k(f"s_lshr_b32 s{T0}, s{T0}, 1")
    k(f"s_lshl_b32 s{S_M32}, s{S_HALF}, 2")
    k(f"s_add_u32 s{S_M32}, s{S_M32}, s{T0}")
    k(f"s_lshl_b32 s{T1}, s{T1}, 1")
    k(f"s_add_u32 s{RHO}, s{S_M32}, s{T1}")
    k(f"s_lshl_b32 s{T0}, s{S_N64}, 7")
    k(f"s_lshl_b32 s{T1}, s{S_WAVE}, 19")
    k(f"s_add_u32 s{T0}, s{T0}, s{T1}")
    dma_voff(k, V_U0, V_U1, 2048, T0)
    k(f"v_lshrrev_b32 v{V_X0}, 3, v1")
    k(f"v_lshlrev_b32 v{V_X0}, 11, v{V_X0}")
    k(f"v_xor_b32 v{V_T2}, v{V_T2}, v2")
    k(f"v_lshl_add_u32 v{V_X0}, v{V_T2}, 4, v{V_X0}")
    k(f"s_lshl_b32 s{T0}, s{S_M32}, 16")
    k(f"s_lshl_b32 s{T1}, s{S_WAVE}, 9")
    k(f"s_add_u32 s{T0}, s{T0}, s{T1}")
    k(f"v_add_u32 v{V_X0}, s{T0}, v{V_X0}")
    k(f"v_xor_b32 v{V_X1}, 64, v{V_X0}")
    k("s_waitcnt lgkmcnt(0)")
    srd(a, SRD_U, 16, U_BYTES)
    srd(a, SRD_X, 8, X_BYTES)
    def p1_item(jp, i):
        base = (jp % 3)*12288
        def f(tag):
            if i == 0:
                k(f"s_add_u32 s{L1}, s{RHO}, {jp}")
                k(f"s_and_b32 s{L1}, s{L1}, 3")
                k(f"s_lshl_b32 s{L0}, s{L1}, 7")
            if i == 4:
                k(f"s_lshl_b32 s{L0}, s{L1}, 17")
            k(f"s_add_u32 m0, s{S_AREA}, {base + (8192 + i*1024 if i < 4 else (i-4)*1024)}")
            if i not in (0, 4): k(f"s_add_u32 s{L0}, s{L0}, 0x4000")
            else: k("s_nop 0")
            if i < 4: k.vmem(f"buffer_load_dwordx4 v{V_X0+(i&1)}, {srdr(SRD_X)}, s{L0} offen lds", tag)
            else: k.vmem(f"buffer_load_dwordx4 v{V_U0+(i&1)}, {srdr(SRD_U)}, s{L0} offen lds", tag)
        k.add(f"p1_{jp}_{0 if i < 8 else 1}", f, "p1free" if (jp == 3 and i == 0) else None)
    for jp in range(4):
        for i in range(12): p1_item(jp, i)
    sz_items(k)
    q_stream(k, 0, 64, o, "A")
    vorder = o.get("vorderA", [0, 1, 2, 3, 13, 12, 11, 10, 9, 8, 7, 6, 5, 4])
    tail_stream(k, vorder, 0, o, "A")
    k.pump()
    epoch_load(k)
    srd(a, SRD_QW, 10, QW_BYTES); srd(a, SRD_SC, 12, SC_BYTES); srd(a, SRD_Z, 14, SC_BYTES)
    srd(a, SRD_V, 18, V_BYTES); srd(a, SRD_OUT, 20, OUT_BYTES); srd(a, SRD_WS, 24, WS_BYTES)
    k("s_setreg_imm32_b32 hwreg(HW_REG_MODE, 4, 2), 3")
    role_ids(k)
    q_setup(k, True)
    tr_addrs(k)
    k(f"v_lshrrev_b32 v{V_XR0}, 1, v3")
    k(f"v_xor_b32 v{V_XR0}, v{V_XR0}, v2")
    k(f"v_lshlrev_b32 v{V_XR0}, 4, v{V_XR0}")
    k(f"v_lshl_add_u32 v{V_XR0}, v3, 7, v{V_XR0}")
    k(f"v_add_u32 v{V_XR0}, s{S_AREA}, v{V_XR0}")
    k(f"v_xor_b32 v{V_XR1}, 64, v{V_XR0}")
    k(f"v_add_u32 v{V_RW}, s{S_AREA}, v{V_L16}")
    k(f"s_lshl_b32 s{T0}, s{S_WAVE}, 11")
    k(f"s_add_u32 s{T0}, s{T0}, {P1R}")
    k(f"v_add_u32 v{V_RR}, s{T0}, v{V_L16}")
    k(f"v_add_u32 v{V_RR+1}, {hex(2*AREA_SZ)}, v{V_RR}")
    k(f"s_and_b32 s{T1}, s{S_WAVE}, 1")
    k(f"s_lshl_b32 s{T0}, s{S_M32}, 1")
    k(f"s_add_u32 s{T0}, s{T0}, s{T1}")
    k(f"s_lshr_b32 s{T1}, s{S_WAVE}, 1")
    k(f"s_lshl_b32 s{T2}, s{S_N64}, 1")
    k(f"s_add_u32 s{T2}, s{T2}, s{T1}")
    k(f"s_lshl_b32 s{XST_}, s{T0}, 5")
    k(f"s_add_u32 s{XST_}, s{XST_}, s{T2}")
    k(f"s_lshl_b32 s{XST_}, s{XST_}, 10")
    k(f"s_lshr_b32 s{T1}, s{T0}, 2")
    k(f"s_lshl_b32 s{T1}, s{T1}, 5")
    k(f"s_add_u32 s{T1}, s{T1}, s{T2}")
    k(f"s_lshl_b32 s{T1}, s{T1}, 2")
    k(f"s_and_b32 s{T0}, s{T0}, 3")
    k(f"s_add_u32 s{T1}, s{T1}, s{T0}")
    k(f"s_lshl_b32 s{T1}, s{T1}, 2")
    k(f"s_add_u32 s{FL1}, s{T1}, {hex(F1_OFF)}")
    late_setup(k)
    tag_calc(k)
    A1 = 224
    def acc1(jj, mi): return ar(A1 + (((jj >> 1)*2 + mi)*2 + (jj & 1))*4, 4)
    for jp in range(4):
        base = (jp % 3)*12288
        for u in range(2):
            j = 2*jp+u
            k.wait(f"p1_{jp}_{u}")
            if j == 7: k.stamp("p1_loaded")
            xb, ub = (j % 2)*8, 64 + (j % 2)*16
            for mi in range(2):
                k(f"ds_read_b128 {ar(xb+mi*4,4)}, v{V_XR0+u} offset:{base+8192+mi*2048}")
            for jj in range(4):
                for h in range(2):
                    k(f"ds_read_b64_tr_b16 {ar(ub+jj*4+2*h,2)}, v{V_TR+jj} offset:{base+u*4096+h*512}")
            k.pump()
            for jj in range(4):
                k(f"s_waitcnt lgkmcnt({6-2*jj})")
                for mi in range(2):
                    k(f"v_mfma_f32_16x16x32_bf16 {acc1(jj, mi)}, {ar(ub+jj*4,4)}, {ar(xb+mi*4,4)}, {'0' if j == 0 else acc1(jj, mi)}")
            if j == 1:
                k.open("p1free"); k.pump()
    k(f"s_mov_b32 s{T0}, 0x58000000")
    k(f"v_mov_b32 v{V_X1}, s{T0}")
    k("s_nop 3")
    for q in (0, 2, 1, 3, 4, 6, 5, 7):
        k(f"ds_write_b128 v{V_RW}, {ar(A1+q*4,4)} offset:{P1R+q*1024}")
    k("s_waitcnt lgkmcnt(0)")
    k("s_barrier")
    R = 96
    for w in range(4):
        for c in range(2):
            k(f"ds_read_b128 {vr(R+(w*2+c)*4,4)}, v{V_RR+w//2} offset:{(w % 2)*AREA_SZ+c*1024}")
    k("s_waitcnt lgkmcnt(4)")
    pkadd(k, R, R+8, 4)
    k("s_waitcnt lgkmcnt(0)")
    pkadd(k, R+16, R+24, 4)
    pkadd(k, R, R+16, 4)
    for q in range(4):
        d = R+2*q
        k(f"v_pk_mul_f32 v[{d}:{d+1}], v[{d}:{d+1}], v[{V_X1}:{V_X1+1}] op_sel_hi:[1,0]")
    for q in range(4):
        k(f"v_cvt_pk_bf16_f32 v{R+32+q}, v{R+2*q}, v{R+2*q+1}")
    k.vmem(f"buffer_store_dwordx4 v[{R+32}:{R+35}], v{V_L16}, {srdr(SRD_WS)}, s{XST_} offen sc1", "xrst")
    k.stamp("p1_done")
    k(f"s_cmp_lt_u32 s{S_I2}, 14")
    k("s_cbranch_scc1 WORKER_A")
    k("s_waitcnt vmcnt(0)")
    sv = list(k.vm)
    k.flag(f"s{FL1}")
    if o.get("n14", 2): prefetch_loop(k, 27 - 2*o.get("n15", 4), o.get("n14", 2), "PF14")
    k("s_branch FINISH")
    k.vm = sv
    a.label("WORKER_A")
    red_addrs(k, 0)
    k.open("setup")
    k.wait("sz")
    for pr in range(32):
        dequant_pair(k, pr)
        if pr == 15: k.stamp("q_half")
    assert "f1" in k.gates
    tail_main(k, vorder, 0, o)
    k(f"s_or_b32 s{T0}, s{S_XCD}, s{S_I2}")
    k(f"s_or_b32 s{T0}, s{T0}, s{S_WAVE}")
    k(f"s_cmp_lg_u32 s{T0}, 0")
    k("s_cbranch_scc1 FINISH")
    k(f"s_add_u32 s{T0}, s{S_EP}, 1")
    k(f"v_mov_b32 v{V_T}, s{T0}")
    k(f"s_lshl_b32 s{T0}, s{S_HALF}, 7")
    k(f"s_add_u32 s{T0}, s{T0}, {hex(EP_OFF)}")
    k("s_mov_b64 exec, 1")
    k(f"buffer_store_dword v{V_T}, v0, {srdr(SRD_WS)}, s{T0} offen sc1")
    k("s_mov_b64 exec, -1")
    k("s_branch FINISH")

def role_b(a, o):
    k = K(a, o)
    a.label("ROLE_B")
    k(f"s_cmp_lt_u32 s{S_I2}, 14")
    k("s_cbranch_scc1 WORKER_B")
    k("s_waitcnt lgkmcnt(0)")
    srd(a, SRD_V, 18, V_BYTES)
    if o.get("n15", 4): prefetch_loop(k, 27, o.get("n15", 4), "PF15")
    k("s_branch FINISH")
    a.label("WORKER_B")
    role_ids(k)
    q_setup(k, False)
    k("s_waitcnt lgkmcnt(0)")
    srd(a, SRD_QW, 10, QW_BYTES); srd(a, SRD_SC, 12, SC_BYTES); srd(a, SRD_Z, 14, SC_BYTES)
    nv1 = o.get("nv1", 4)
    vorder = list(range(14))
    sz_items(k)
    q_stream(k, 0, 32, o, "B")
    for n in range(nv1):
        for q in range(4): v_item(k, n, vorder[n], q, "setup")
    q_stream(k, 32, 64, o, "B")
    tail_stream(k, vorder, nv1, o, "B")
    k.pump()
    epoch_load(k)
    srd(a, SRD_V, 18, V_BYTES); srd(a, SRD_OUT, 20, OUT_BYTES); srd(a, SRD_WS, 24, WS_BYTES)
    k("s_setreg_imm32_b32 hwreg(HW_REG_MODE, 4, 2), 3")
    tr_addrs(k)
    late_setup(k)
    red_addrs(k, 0)
    tag_calc(k)
    k.open("setup")
    k.wait("sz")
    for pr in range(16): dequant_pair(k, pr)
    k.stamp("q_half")
    for n in range(nv1): v_fetch(k, n, vorder[n])
    if nv1:
        k("s_waitcnt lgkmcnt(0)")
        k.open(f"vfree{nv1-1}")
    k.stamp("v1_done")
    for pr in range(16, 32): dequant_pair(k, pr)
    tail_main(k, vorder, nv1, o)

def build(opt):
    a = Asm(); K.uid = 0
    a.raw(HEADER.rstrip())
    a.raw(f"; @launch grid=(256,1,1) block=(256,1,1) lds={LDS_BYTES}")
    a.raw('.amdgcn_target "amdgcn-amd-amdhsa--gfx950"')
    kernel_begin(a, KNAME)
    a("s_cmp_ge_u32 s2, 256")
    a("s_cbranch_scc1 DONE")
    if opt.get("stamp"): a(f"{TIMER(opt)} s[100:101]")
    a("s_load_dwordx16 s[8:23], s[0:1], 0")
    a("s_load_dwordx2 s[24:25], s[0:1], 64")
    a("v_lshrrev_b32 v4, 6, v0")
    a("v_and_b32 v1, 63, v0")
    a(f"v_readfirstlane_b32 s{S_WAVE}, v4")
    a("v_lshrrev_b32 v2, 4, v1")
    a("v_and_b32 v3, 15, v1")
    a(f"v_lshlrev_b32 v{V_L16}, 4, v1")
    a("v_mov_b32 v0, 0")
    a(f"s_and_b32 s{S_XCD}, s2, 7")
    a(f"s_lshr_b32 s{T0}, s2, 3")
    a(f"s_and_b32 s{S_HALF}, s{T0}, 1")
    a(f"s_lshr_b32 s{S_I2}, s{T0}, 1")
    a(f"s_mul_i32 s{S_AREA}, s{S_WAVE}, {AREA_SZ}")
    a(f"s_bitcmp1_b32 s{S_I2}, 0")
    a("s_cbranch_scc1 ROLE_B")
    role_a(a, opt)
    role_b(a, opt)
    a.label("FINISH")
    if opt.get("stamp"):
        a("s_waitcnt vmcnt(0)")
        a(f"{TIMER(opt)} s[98:99]")
        a("s_load_dwordx2 s[70:71], s[0:1], 64")
        a("s_waitcnt lgkmcnt(0)")
        srd(a, 76, 70, 1 << 20, STAMP_OFF)
        a("s_lshl_b32 s70, s2, 2")
        a(f"s_add_u32 s70, s70, s{S_WAVE}")
        a("s_lshl_b32 s70, s70, 7")
        regs = [100] + STAMP_REGS[:len(STAMP_NAMES)] + [98]
        a("s_mov_b64 exec, 1")
        for i, r in enumerate(regs):
            a(f"v_mov_b32 v16, s{r}")
            a(f"v_mov_b32 v17, s{r+1}")
            a(f"buffer_store_dwordx2 v[16:17], v0, s[76:79], s70 offen offset:{i*8}")
            a("s_nop 1")
    a.label("DONE")
    a("s_endpgm")
    kernel_desc(a, KNAME, 512, 102, 256)
    return a.text(), ["start"] + STAMP_NAMES + ["end"]

if __name__ == "__main__":
    opt = eval(sys.argv[2]) if len(sys.argv) > 2 else {}
    txt, names = build(opt)
    open(sys.argv[1], "w").write(txt)
    print(len(txt))
```

```python
import sys
from asmlib import *

KNAME = "standalone__weight_only_int_quip__sampling_kernel"
XR_OFF   = 0
H_OFF    = 1 << 20
F1_OFF   = 3 << 20
F2_OFF   = F1_OFF + 16384
EP_OFF   = F1_OFF + 32768
PART_OFF = 4 << 20
WS_BYTES = 8 << 20
STAMP_OFF = 128 << 20
OOB = 0x7f000000
AREA_SZ = 40960
P2R = 20480
P1R = 32768
LDS_BYTES = 163840
RING = 5

S_WAVE, S_EP = 4, 5
SRD_X, SRD_QW, SRD_SC, SRD_Z, SRD_U, SRD_V, SRD_OUT, SRD_WS = 28, 32, 36, 40, 44, 48, 52, 56
S_XCD, S_HALF, S_I2, S_M32, S_N64, S_M64, S_T2, S_KS, S_T, S_TAG = 60, 61, 62, 63, 64, 65, 66, 67, 68, 69
T0, T1, T2, T3 = 70, 71, 72, 73
S_AREA, S_CNT = 74, 75
L0, L1 = 76, 77
QB, GI = 78, 82
FL1, XST_, XRB, RHO = 86, 87, 88, 89
VB = 90
HB = 36
MOTH, MOWN, L2, TAGB, WT = 40, 41, 42, 43, 3
PF1, PF2, FL2, HST = 6, 7, 26, 27
PA, PB, YB, XSO = 94, 95, 96, 97
XO = 98

V_L16, V_X0, V_X1, V_T2, V_Q, V_T, V_VD0, V_VD1, V_TR = 4, 5, 6, 7, 8, 9, 10, 11, 12
WQ, STG, SZ, RAW, OWN = 16, 144, 240, 252, 240
QR = 20
V_U0, V_U1, V_XR0, V_XR1 = 224, 225, 226, 227
TGV = 224
XRN = 16
V_RW, V_RR = 232, 233
V_P1, V_P2, V_PR = 236, 237, 238
RT, PK, PLD = 144, 192, 208
STAMP_REGS = list(range(8, 26, 2)) + [28, 30, 44]
STAMP_NAMES = ["p1_loaded", "p1_done", "q_half", "v1_done", "h1_seen", "q_all", "p2_mfma", "h_flag", "h2_seen", "v_done", "part_st", "p3_mfma"]

def stamp_names(o):
    f = o.get("fine")
    if f == "p3": return ["h_flag", "h2_seen", "v_done"] + [f"pos{p}" for p in range(8)] + ["p3_mfma"]
    if f == "v": return ["p2_mfma", "h_flag"] + [f"vf{n}" for n in (0, 2, 4, 6, 7, 8, 10, 12)] + ["h2_seen", "v_done"]
    if f == "p1": return ["issue0"] + [f"p1s{j}" for j in range(8)] + ["p1_bar", "p1_done", "q_half"]
    if f == "p2": return ["h1_seen", "q_all"] + [f"p2_{p}{h}" for p in range(4) for h in "ab"] + ["p2_mfma", "h_flag"]
    if f == "q": return ["p1_done"] + [f"qp{n}" for n in (0, 3, 7, 11, 15, 19, 23, 27)] + ["v1_done", "h1_seen", "q_all"]
    return STAMP_NAMES
def TIMER(o): return "s_memtime" if o.get("cyc") else "s_memrealtime"
def srdr(b): return f"s[{b}:{b+3}]"
def vslot(j): return 64 + 16*j if j < 10 else 16*(j-10)

class K:
    uid = 0
    def __init__(self, a, opt):
        self.a = a; self.o = opt
        self.vm = []; self.done = 0
        self.stream = []; self.sp = 0; self.gates = set()
        self.L = opt.get("L", 12)
    def __call__(self, s): self.a(s)
    def vmem(self, s, tag):
        self.a(s); self.vm.append(tag)
    def isdone(self, tag):
        return tag in self.vm and tag not in [t for t, _, _ in self.stream[self.sp:]] and self.done > max(i for i, t in enumerate(self.vm) if t == tag)
    def wait(self, tag):
        while tag in [t for t, _, _ in self.stream[self.sp:]]:
            assert self.issue_one(force=True), f"gate closed while waiting for {tag}: {self.stream[self.sp]}"
        idx = max(i for i, t in enumerate(self.vm) if t == tag)
        if idx < self.done: return
        n = len(self.vm) - 1 - idx
        self.a(f"s_waitcnt vmcnt({min(n, 63)})")
        self.done = idx + 1
    def add(self, tag, fn, *gates): self.stream.append((tag, fn, [g for g in gates if g]))
    def issue_one(self, force=False):
        if self.sp >= len(self.stream): return False
        tag, fn, gates = self.stream[self.sp]
        if any(g not in self.gates for g in gates): return False
        if not force and len(self.vm) - self.done >= self.L: return False
        self.sp += 1
        fn(tag)
        return True
    def pump(self, n=99):
        while n > 0 and self.issue_one(): n -= 1
    def open(self, g): self.gates.add(g)
    def fill(self, items): self.fq = getattr(self, "fq", []) + list(items)
    def drain(self, n=999):
        q = getattr(self, "fq", [])
        while q and n > 0:
            self.a(q.pop(0)); n -= 1
    def stamp(self, name):
        if not self.o.get("stamp"): return
        names = stamp_names(self.o)
        if name not in names: return
        r = STAMP_REGS[names.index(name)]
        self.a(f"{TIMER(self.o)} s[{r}:{r+1}]")
        self.a("s_waitcnt lgkmcnt(0)")
    def lab(self, p):
        K.uid += 1
        return f"{p}_{K.uid}"
    def poll_item(self, voff, soff):
        return lambda tag: self.vmem(f"buffer_load_dword v{V_PR}, {voff}, {srdr(SRD_WS)}, {soff} offen sc1", tag)
    def poll_check(self, tag, voff, soff):
        self.wait(tag)
        L = self.lab("POLL"); E = self.lab("POLLX")
        self(f"v_cmp_ne_u32 vcc, s{S_TAG}, v{V_PR}")
        self(f"s_mov_b32 s{S_CNT}, 0")
        self(f"s_cbranch_vccz {E}")
        self.a.label(L)
        self(f"s_sleep {self.o.get('nap', 8)}")
        self(f"buffer_load_dword v{V_PR}, {voff}, {srdr(SRD_WS)}, {soff} offen sc1")
        self(f"s_add_u32 s{S_CNT}, s{S_CNT}, 1")
        self("s_waitcnt vmcnt(0)")
        self(f"v_cmp_ne_u32 vcc, s{S_TAG}, v{V_PR}")
        self(f"s_cmp_gt_u32 s{S_CNT}, 0x40000")
        self(f"s_cbranch_scc1 {E}")
        self(f"s_cbranch_vccnz {L}")
        self.a.label(E)
    def flag(self, soff, who=0):
        self(f"s_cmp_eq_u32 s{S_WAVE}, {who}")
        self(f"s_cselect_b32 s{T0}, 0, {hex(OOB)}")
        self(f"v_mov_b32 v{V_T2}, s{S_TAG}")
        self(f"v_mov_b32 v{V_PR+1}, s{T0}")
        self("s_barrier")
        self("s_mov_b64 exec, 1")
        self.vmem(f"buffer_store_dword v{V_T2}, v{V_PR+1}, {srdr(SRD_WS)}, {soff} offen sc1", "flag")
        self("s_mov_b64 exec, -1")

def dma_voff(k, d0, d1, rowbytes, s_add):
    k(f"v_lshrrev_b32 v{d0}, 3, v1")
    k(f"v_and_b32 v{d1}, 2, v{d0}")
    k(f"v_mul_u32_u24 v{d0}, {rowbytes}, v{d0}")
    k(f"v_and_b32 v{V_T2}, 7, v1")
    k(f"v_xor_b32 v{d1}, v{d1}, v{V_T2}")
    k(f"v_lshl_add_u32 v{d0}, v{d1}, 4, v{d0}")
    k(f"v_add_u32 v{d0}, s{s_add}, v{d0}")
    k(f"v_xor_b32 v{d1}, 64, v{d0}")

def tr_addrs(k):
    k("v_lshrrev_b32 v12, 2, v3")
    k("v_lshrrev_b32 v13, 1, v12")
    k("v_and_b32 v14, 1, v2")
    k("v_lshl_add_u32 v13, v14, 1, v13")
    k("v_lshl_add_u32 v12, v2, 3, v12")
    k("v_lshlrev_b32 v12, 7, v12")
    k("v_lshl_add_u32 v12, v13, 5, v12")
    k("v_and_b32 v13, 3, v1")
    k("v_lshl_add_u32 v12, v13, 3, v12")
    k(f"v_add_u32 v12, s{S_AREA}, v12")
    k("v_xor_b32 v13, 32, v12")
    k("v_xor_b32 v14, 64, v12")
    k("v_xor_b32 v15, 96, v12")

def role_ids(k):
    k(f"s_lshl_b32 s{S_M64}, s{S_HALF}, 1")
    k(f"s_lshr_b32 s{T0}, s{S_I2}, 1")
    k(f"s_mul_i32 s{S_T2}, s{S_XCD}, 7")
    k(f"s_add_u32 s{S_T2}, s{S_T2}, s{T0}")

def q_setup(k, oob, order=(0, 1, 2, 3)):
    if oob:
        k(f"s_cmp_lt_u32 s{S_I2}, 14")
        k(f"s_cselect_b32 s{T2}, 0, {hex(OOB)}")
    k(f"v_mul_u32_u24 v{V_Q}, {4*14336}, v2")
    k(f"v_lshl_add_u32 v{V_Q}, v3, 4, v{V_Q}")
    k(f"s_lshl_b32 s{T0}, s{S_T2}, 8")
    if oob: k(f"s_add_u32 s{T0}, s{T0}, s{T2}")
    k(f"v_add_u32 v{V_Q}, s{T0}, v{V_Q}")
    k(f"v_mul_u32_u24 v{V_T}, 7168, v2")
    k(f"v_lshl_add_u32 v{V_T}, v3, 3, v{V_T}")
    k(f"s_mul_i32 s{T0}, s{S_WAVE}, {4*7168}")
    k(f"s_lshl_b32 s{T1}, s{S_T2}, 7")
    k(f"s_add_u32 s{T0}, s{T0}, s{T1}")
    if oob: k(f"s_add_u32 s{T0}, s{T0}, s{T2}")
    k(f"v_add_u32 v{V_T}, s{T0}, v{V_T}")
    k(f"s_lshl_b32 s{T1}, s{S_HALF}, 1")
    for j in range(4):
        k(f"s_xor_b32 s{GI+j}, s{T1}, {order[j]}")
        k(f"s_lshl_b32 s{T0}, s{S_WAVE}, 2")
        k(f"s_add_u32 s{T0}, s{T0}, s{GI+j}")
        k(f"s_mul_i32 s{QB+j}, s{T0}, {64*14336}")

def epoch_load(k):
    k(f"s_lshl_b32 s{T0}, s{S_HALF}, 7")
    k(f"s_add_u32 s{T0}, s{T0}, {hex(EP_OFF)}")
    k(f"s_load_dword s{S_EP}, s[24:25], s{T0}")

def tag_calc(k):
    k("s_waitcnt lgkmcnt(0)")
    k(f"s_mul_i32 s{S_TAG}, s{S_EP}, 0x9e3779b1")
    k(f"s_add_u32 s{S_TAG}, s{S_TAG}, 0x7f4a7c15")
    k(f"s_lshr_b32 s{T0}, s{S_TAG}, 15")
    k(f"s_xor_b32 s{S_TAG}, s{S_TAG}, s{T0}")
    k(f"s_mul_i32 s{S_TAG}, s{S_TAG}, 0x85ebca6b")

def red_addrs(k, add):
    k(f"s_add_u32 s{T0}, s{S_AREA}, {add}")
    k(f"v_add_u32 v{V_RW}, s{T0}, v{V_L16}")
    for p in range(3):
        k(f"s_sub_u32 s{T1}, s{S_WAVE}, {p+1}")
        k(f"s_and_b32 s{T1}, s{T1}, 3")
        k(f"s_mul_i32 s{T1}, s{T1}, {AREA_SZ}")
        k(f"s_add_u32 s{T1}, s{T1}, {add+p*4096}")
        k(f"v_add_u32 v{V_RR+p}, s{T1}, v{V_L16}")

def v_setup(k):
    k(f"s_and_b32 s{S_KS}, s{S_XCD}, 1")
    k(f"s_lshr_b32 s{T0}, s{S_XCD}, 1")
    k(f"s_mul_i32 s{S_T}, s{T0}, 14")
    k(f"s_add_u32 s{S_T}, s{S_T}, s{S_I2}")
    k(f"s_lshl_b32 s{T0}, s{S_T}, 7")
    dma_voff(k, V_VD0, V_VD1, 7168, T0)
    k(f"s_mul_i32 s{T0}, s{S_KS}, 56")
    k(f"s_mul_i32 s{T1}, s{S_WAVE}, 14")
    k(f"s_add_u32 s{T0}, s{T0}, s{T1}")
    k(f"s_mul_i32 s{VB}, s{T0}, {32*7168}")
    k(f"v_min_u32 v{V_P2}, 6, v1")
    k(f"v_lshlrev_b32 v{V_P2}, 7, v{V_P2}")
    k(f"s_mul_i32 s{T0}, s{S_HALF}, 56")
    k(f"s_mul_i32 s{T1}, s{S_KS}, 28")
    k(f"s_add_u32 s{T1}, s{T0}, s{T1}")
    k(f"s_mul_i32 s{T2}, s{S_WAVE}, 7")
    k(f"s_add_u32 s{T1}, s{T1}, s{T2}")
    k(f"s_lshl_b32 s{T1}, s{T1}, 7")
    k(f"s_add_u32 s{PF2}, s{T1}, {hex(F2_OFF)}")

def poll1_setup(k):
    k(f"v_min_u32 v{V_P1}, 15, v1")
    k(f"v_lshlrev_b32 v{V_P1}, 7, v{V_P1}")
    k(f"s_lshl_b32 s{T0}, s{S_HALF}, 13")
    k(f"s_lshl_b32 s{T1}, s{S_WAVE}, 11")
    k(f"s_add_u32 s{T0}, s{T0}, s{T1}")
    k(f"s_add_u32 s{PF1}, s{T0}, {hex(F1_OFF)}")

def xpf_item(k, i):
    def f(tag):
        if i == 0:
            k(f"s_lshr_b32 s{L1}, s{S_I2}, 1")
            k(f"s_lshl_b32 s{L0}, s{S_HALF}, 3")
            k(f"s_add_u32 s{L0}, s{L0}, s{L1}")
            k(f"s_lshl_b32 s{L0}, s{L0}, 2")
            k(f"s_add_u32 s{L0}, s{L0}, s{S_WAVE}")
            k(f"s_lshl_b32 s{L0}, s{L0}, 13")
        if i == 4: k(f"s_add_u32 s{L0}, s{L0}, 4096")
        if i == 8:
            k(f"s_lshl_b32 s{L0}, s{S_HALF}, 5")
            k(f"s_add_u32 s{L0}, s{L0}, s{S_WAVE}")
            k(f"s_add_u32 s{L0}, s{L0}, 28")
            k(f"s_lshl_b32 s{L0}, s{L0}, 3")
            k(f"s_add_u32 s{L0}, s{L0}, s{L1}")
            k(f"s_lshl_b32 s{L0}, s{L0}, 10")
        k.vmem(f"buffer_load_dwordx4 {vr(STG+4*(i % 4),4)}, v{V_L16}, {srdr(SRD_WS)}, s{L0} offen offset:{(i % 4)*1024} sc1", tag)
    k.add("xpf", f, "h1")

def p2_setup(k):
    k(f"s_add_u32 s{XRB}, s{S_WAVE}, s{S_T2}")
    k(f"s_lshl_b32 s{T0}, s{S_M64}, 4")
    k(f"s_add_u32 s{T0}, s{T0}, s{S_WAVE}")
    k(f"s_lshl_b32 s{T0}, s{T0}, 13")
    for j in range(4):
        k(f"s_lshl_b32 s{T1}, s{GI+j}, 11")
        k(f"s_add_u32 s{XO+j}, s{T0}, s{T1}")
    poll1_setup(k)
    k(f"s_and_b32 s{T1}, s{XRB}, 3")
    k(f"s_lshl_b32 s{T2}, s{S_M64}, 2")
    k(f"s_add_u32 s{T2}, s{T2}, s{T1}")
    k(f"s_mul_i32 s{T2}, s{T2}, 112")
    k(f"s_lshl_b32 s{T3}, s{S_T2}, 1")
    k(f"s_add_u32 s{T2}, s{T2}, s{T3}")
    k(f"s_lshl_b32 s{T2}, s{T2}, 10")
    k(f"s_add_u32 s{HST}, s{T2}, {hex(H_OFF)}")
    k(f"s_mul_i32 s{T0}, s{S_HALF}, 56")
    k(f"s_add_u32 s{FL2}, s{T0}, s{S_T2}")
    k(f"s_lshl_b32 s{FL2}, s{FL2}, 7")
    k(f"s_add_u32 s{FL2}, s{FL2}, {hex(F2_OFF)}")

def p3_setup(k):
    k(f"s_mul_i32 s{T0}, s{S_KS}, 56")
    k(f"s_mul_i32 s{T1}, s{S_WAVE}, 14")
    k(f"s_add_u32 s{T0}, s{T0}, s{T1}")
    k(f"s_lshl_b32 s{T0}, s{T0}, 10")
    k(f"s_add_u32 s{T0}, s{T0}, {hex(H_OFF)}")
    for r, (lo, hi, d) in enumerate(vruns(k.nv1)):
        k(f"s_mul_i32 s{T1}, s{S_HALF}, {d*1024}")
        k(f"s_add_u32 s{T1}, s{T1}, {lo*1024}")
        k(f"s_add_u32 s{HB+r}, s{T0}, s{T1}")
    k(f"s_lshl_b32 s{T0}, s{S_HALF}, 1")
    k(f"s_add_u32 s{MOWN}, s{T0}, s{S_KS}")
    k(f"s_xor_b32 s{MOTH}, s{MOWN}, 1")
    k(f"s_lshl_b32 s{MOWN}, s{MOWN}, 2")
    k(f"s_lshl_b32 s{MOTH}, s{MOTH}, 2")
    k(f"s_add_u32 s{WT}, s{S_WAVE}, s{S_T}")
    k(f"s_mul_i32 s{T0}, s{S_HALF}, 56")
    k(f"s_add_u32 s{T0}, s{T0}, s{S_T}")
    k(f"s_lshl_b32 s{T0}, s{T0}, 1")
    k(f"s_add_u32 s{T0}, s{T0}, s{S_KS}")
    k(f"s_lshl_b32 s{T0}, s{T0}, 2")
    k(f"s_add_u32 s{T0}, s{T0}, s{S_WAVE}")
    k(f"s_xor_b32 s{T1}, s{T0}, 4")
    k(f"s_lshl_b32 s{PA}, s{T0}, 12")
    k(f"s_add_u32 s{PA}, s{PA}, {hex(PART_OFF)}")
    k(f"s_lshl_b32 s{PB}, s{T1}, 12")
    k(f"s_add_u32 s{PB}, s{PB}, {hex(PART_OFF)}")
    k(f"s_mul_i32 s{T0}, s{S_EP}, 37")
    k(f"s_add_u32 s{T0}, s{T0}, 11")
    for i in range(4):
        k(f"s_add_u32 s{T1}, s{T0}, {64*i}")
        k(f"s_and_b32 s{T1}, s{T1}, 0xff")
        k(f"v_mov_b32 v{TGV+i}, s{T1}")
        if i == 0: k(f"s_mov_b32 s{TAGB}, s{T1}")
        else:
            k(f"s_lshl_b32 s{T1}, s{T1}, {8*i}")
            k(f"s_or_b32 s{TAGB}, s{TAGB}, s{T1}")
    k(f"v_mov_b32 v{TGV+4}, 0xff")
    k(f"v_mov_b32 v{TGV+5}, 0x0c0c0400")
    k(f"v_mov_b32 v{TGV+6}, 0x04000c0c")
    k(f"s_and_b32 s{T1}, s{WT}, 3")
    k(f"s_add_u32 s{T1}, s{T1}, s{MOWN}")
    k(f"s_mul_i32 s{T1}, s{T1}, {16*7168}")
    k(f"s_lshl_b32 s{T0}, s{S_T}, 7")
    k(f"s_add_u32 s{YB}, s{T1}, s{T0}")
    k("v_mul_u32_u24 v5, 7168, v3")
    k("v_and_b32 v6, 1, v2")
    k("v_lshl_add_u32 v5, v6, 5, v5")
    k("v_lshrrev_b32 v6, 1, v2")
    k("v_lshl_add_u32 v5, v6, 4, v5")

def pkadd(k, d, s, n=8):
    for q in range(n):
        k(f"v_pk_add_f32 v[{d+2*q}:{d+2*q+1}], v[{d+2*q}:{d+2*q+1}], v[{s+2*q}:{s+2*q+1}]")

def sz_items(k, *g):
    k.add("sz", lambda t: k.vmem(f"buffer_load_dwordx2 v[{RAW}:{RAW+1}], v{V_T}, {srdr(SRD_SC)}, 0 offen", t), *g)
    k.add("sz", lambda t: k.vmem(f"buffer_load_dwordx2 v[{RAW+2}:{RAW+3}], v{V_T}, {srdr(SRD_Z)}, 0 offen", t))
def qreg(n): return 80 + 4*n if n < 16 else STG + 4*((n-16) % QR)
def q_item(k, n, fl, *g):
    st, i = n//8, n % 8
    j, u = st//2, st % 2
    ro = 32*u + (i if i < 4 else 12+i)
    def f(tag):
        so = f"s{QB+j}"
        if ro:
            k(f"s_add_u32 s{L0}, s{QB+j}, {hex(ro*14336)}")
            so = f"s{L0}"
        k.vmem(f"buffer_load_dwordx4 {vr(qreg(n),4)}, v{V_Q}, {srdr(SRD_QW)}, {so} offen {fl}", tag)
    k.add(f"q{n//2}", f, f"qfree{n-QR}" if n >= QR+16 else None, *g)
def xr_item(k, p, st):
    j, u = st//2, st % 2
    def f(tag):
        if st == 0:
            k(f"s_add_u32 s{L1}, s{XRB}, {(p % 4)+1}")
            k(f"s_and_b32 s{L1}, s{L1}, 3")
            if p >= 4: k(f"s_add_u32 s{L1}, s{L1}, 4")
            k(f"s_lshl_b32 s{L1}, s{L1}, 15")
        if u == 0:
            k(f"s_add_u32 s{L0}, s{XO+j}, s{L1}")
        k.vmem(f"buffer_load_dwordx4 {ar(((p*8+st) % XRN)*4,4)}, v{V_L16}, {srdr(SRD_WS)}, s{L0} offen offset:{u*1024} sc1", tag)
    k.add(f"x{p}_{st}", f, "h1", f"xfree{p*8+st-XRN}" if p*8+st >= XRN else None)
def vruns(nv1):
    out = []
    for lo, hi in ((0, nv1), (nv1, 14)):
        if hi == lo: continue
        assert (hi - lo) % 2 == 0
        m = (hi - lo)//2
        out += [(lo, lo+m, m), (lo+m, hi, -m)]
    return out
def rowoff(st): return 64*(st >> 1) + 8*(st & 1)
def v_item(k, n, q, *g):
    d = [d for lo, hi, d in vruns(k.nv1) if lo <= n < hi][0]
    def f(tag):
        if q == 0:
            k(f"s_mul_i32 s{VB+1}, s{S_HALF}, {(rowoff(n+d) - rowoff(n))*7168}")
            k(f"s_add_u32 s{VB+1}, s{VB+1}, s{VB}")
        k(f"s_add_u32 m0, s{S_AREA}, {(n % RING)*4096 + q*1024}")
        k(f"s_add_u32 s{L0}, s{VB+1}, {hex((rowoff(n) + 16*q)*7168)}")
        k.vmem(f"buffer_load_dwordx4 v{V_VD0+(q&1)}, {srdr(SRD_V)}, s{L0} offen lds {k.o.get('vfl','')}", tag)
    k.add(f"v{n}", f, f"vfree{n-RING}" if (n >= RING and q == 0) else None, *g)
HRN = 32
def h_item(k, p, j):
    n = p*14+j
    r, lo = [(r, lo) for r, (lo, hi, d) in enumerate(vruns(k.nv1)) if lo <= j < hi][0]
    def f(tag):
        if j == 0:
            k(f"s_add_u32 s{L2}, s{WT}, {(p % 4)+1}")
            k(f"s_and_b32 s{L2}, s{L2}, 3")
            k(f"s_add_u32 s{L2}, s{L2}, s{MOTH if p < 4 else MOWN}")
            k(f"s_mul_i32 s{L2}, s{L2}, {112*1024}")
        if j == lo: k(f"s_add_u32 s{L0}, s{L2}, s{HB+r}")
        elif (j - lo) % 4 == 0: k(f"s_add_u32 s{L0}, s{L0}, 4096")
        k.vmem(f"buffer_load_dwordx4 {vr(WQ+4*(n % HRN),4)}, v{V_L16}, {srdr(SRD_WS)}, s{L0} offen offset:{((j-lo) % 4)*1024} {k.o.get('hfl', 'sc1')}", tag)
    k.add(f"h{p}_{j}", f, "h2")
def pld_ins(jj):
    return f"buffer_load_dwordx4 {vr(PLD+jj*4,4)}, v{V_L16}, {srdr(SRD_WS)}, s{PB} offen offset:{jj*1024} sc1"

def sz_prep(k, j):
    k(f"s_lshl_b32 s{T0}, s{GI+j}, 6")
    k(f"v_lshl_add_u32 v{V_PR+1}, v3, 2, s{T0}")
    for q in range(4):
        k(f"ds_bpermute_b32 v{248+q}, v{V_PR+1}, v{RAW+q}")
    k(f"s_mov_b32 s{T2}, 0x71800000")
    k(f"s_mov_b32 s{T3}, 0xa7000000")
    k("s_waitcnt lgkmcnt(0)")
    for jj in range(4):
        if jj % 2 == 0:
            k(f"v_lshlrev_b32 v{SZ+jj}, 16, v{248+jj//2}")
            k(f"v_lshlrev_b32 v{SZ+4+jj}, 16, v{250+jj//2}")
        else:
            k(f"v_and_b32 v{SZ+jj}, 0xffff0000, v{248+jj//2}")
            k(f"v_and_b32 v{SZ+4+jj}, 0xffff0000, v{250+jj//2}")
    for jj in range(4):
        k(f"v_mul_f32 v{SZ+4+jj}, v{SZ+4+jj}, v{SZ+jj}")
    for jj in range(4):
        k(f"v_mul_f32 v{SZ+jj}, s{T2}, v{SZ+jj}")
        k(f"v_mul_f32 v{SZ+4+jj}, s{T3}, v{SZ+4+jj}")

def events(k):
    if "xrst" in k.vm and "f1" not in k.gates and k.isdone("xrst"):
        k.flag(f"s{FL1}"); k.open("f1"); k.L = k.o.get("Lf1", 24)
    if "f1" in k.gates and "f1done" not in k.gates and k.isdone("flag"):
        k.open("f1done"); k.L = k.o.get("L", 12)
    if "hflag" in k.gates and "f2done" not in k.gates and k.isdone("flag"):
        k.open("f2done"); k.L = k.o.get("LV", 12)
    if "h1" not in k.gates and k.isdone("poll1"):
        k.poll_check("poll1", f"v{V_P1}", f"s{PF1}"); k.open("h1"); k.stamp("h1_seen")
    if "h2" not in k.gates and k.isdone("poll2"):
        k.poll_check("poll2", f"v{V_P2}", f"s{PF2}"); k.open("h2"); k.stamp("h2_seen")

def need(k, tag):
    while tag in [t for t, _, _ in k.stream[k.sp:]]:
        if k.issue_one(force=True): continue
        g = [g for g in k.stream[k.sp][2] if g not in k.gates][0]
        k.wait({"h1": "poll1", "h2": "poll2", "h3": "poll3"}[g])
        events(k)
    k.wait(tag)
    events(k)

def dequant_pair(k, pr):
    st, p = pr//4, pr % 4
    if pr % 8 == 0 and f"sz{pr//8}" not in k.gates: sz_prep(k, pr//8)
    need(k, f"q{pr}")
    k.stamp(f"qp{pr}")
    k.pump()
    r0, r1 = qreg(2*pr), qreg(2*pr+1)
    for r in (r0, r1):
        for hh in range(2):
            q = r+2*hh
            k(f"v_pk_fma_f32 v[{q}:{q+1}], v[{q}:{q+1}], v[{SZ+2*hh}:{SZ+2*hh+1}], v[{SZ+4+2*hh}:{SZ+4+2*hh+1}]")
    for jj in range(4):
        k(f"v_cvt_pk_bf16_f32 v{WQ+(st*4+jj)*4+p}, v{r0+jj}, v{r1+jj}")
    k.open(f"qfree{2*pr}"); k.open(f"qfree{2*pr+1}")

def v_fetch(k, n):
    need(k, f"v{n}")
    k.stamp(f"vf{n}")
    if n >= 1 and f"vfree{n-1}" not in k.gates:
        k("s_waitcnt lgkmcnt(0)")
        k.open(f"vfree{n-1}")
    for jj in range(4):
        for h in range(2):
            k(f"ds_read_b64_tr_b16 {ar(vslot(n)+jj*4+2*h,2)}, v{V_TR+jj} offset:{(n % RING)*4096 + h*512}")
    k.pump()

def accname(p, jj, own):
    return vr(OWN+jj*4, 4) if own else ar(224+(p % 2)*16+jj*4, 4)
def red_read(k, off):
    for p in range(3):
        for jj in range(4):
            k(f"ds_read_b128 {vr(RT+(p*4+jj)*4,4)}, v{V_RR+p} offset:{off+jj*1024}")

def vpf_item(k, st, q):
    def f(tag):
        if q == 0:
            k(f"s_mul_i32 s{VB+1}, s{S_HALF}, {(rowoff(st+7) - rowoff(st))*7168}")
            k(f"s_add_u32 s{VB+1}, s{VB+1}, s{VB}")
        k(f"s_add_u32 s{L0}, s{VB+1}, {hex((rowoff(st) + 16*q)*7168 + 128)}")
        k.vmem(f"buffer_load_dwordx4 {vr(STG+4*q,4)}, v{V_VD0}, {srdr(SRD_V)}, s{L0} offen", tag)
    k.add(f"pf{st}", f)

def h_stream(k, o):
    for p in range(8):
        for j in range(14):
            if p == 7 and j == o.get("pldat", 8):
                for jj in range(4):
                    k.add("pld", (lambda jj: lambda t: k.vmem(pld_ins(jj), t))(jj))
            h_item(k, p, j)

def tail_stream(k, nv1, o, role):
    for p in range(8):
        for st in range(8): xr_item(k, p, st)
    vpre, vmid = o.get("vpre"+role, 4), o.get("vmid"+role, 10)
    p2back = o.get("p2back"+role, 8)
    rest = [(n, q) for n in range(nv1, 14) for q in range(4)]
    for i, (n, q) in enumerate(rest):
        if i == len(rest) - p2back:
            k.add("poll2", k.poll_item(f"v{V_P2}", f"s{PF2}"), "hflag")
        v_item(k, n, q, "hstored" if i == vpre else None, "hflag" if i == vmid else None)
    if p2back == 0: k.add("poll2", k.poll_item(f"v{V_P2}", f"s{PF2}"), "hflag")
    h_stream(k, o)

def q_stream(k, lo, hi, o, role):
    p1pos = o.get("p1pos"+role, 63)
    for n in range(lo, hi):
        if n == p1pos: k.add("poll1", k.poll_item(f"v{V_P1}", f"s{PF1}"), "setup")
        fl = o.get("qfl", "") if (role == "A" or n >= 32) else ""
        q_item(k, n, fl, "xstored" if (role == "A" and n == o.get("qpreA", 99)) else None)

def adds(d, s_, n=16): return [f"v_add_f32 v{d+q}, v{d+q}, v{s_+q}" for q in range(n)]
def rreads(off): return [f"ds_read_b128 {vr(RT+(p*4+jj)*4,4)}, v{V_RR+p} offset:{off+jj*1024}" for p in range(3) for jj in range(4)]
def hpack(dst, src):
    return [f"v_cvt_pk_bf16_f32 v{dst+f*4+rr*2+hh}, v{src+(2*hh)*4+2*f+rr}, v{src+(2*hh+1)*4+2*f+rr}" for f in range(2) for rr in range(2) for hh in range(2)]

def p2_main(k, nv1, o):
    k.stamp("q_all")
    for p in range(8):
        own = (p % 4 == 3)
        for st in range(8):
            need(k, f"x{p}_{st}")
            if st == 0: k.stamp(f"p2_{p//2}{'ab'[p % 2]}")
            if p % 4 != 0 and st == 2:
                k.fill(f"ds_write_b128 v{V_RW}, {accname(p-1, jj, False)} offset:{P2R+((p-1) % 4)*4096+jj*1024}" for jj in range(4))
            if p == 7 and st == 3:
                k.fill(["s_waitcnt lgkmcnt(0)", "s_barrier"] + rreads(P2R) + ["s_waitcnt lgkmcnt(4)"] + adds(RT, RT+16) + ["s_waitcnt lgkmcnt(0)"] + adds(RT, RT+32))
            if p == 3 and st == 6:
                k.fill(["s_waitcnt lgkmcnt(0)", "s_barrier"] + rreads(P2R) + ["s_waitcnt lgkmcnt(4)"] + adds(RT, RT+16) + ["s_waitcnt lgkmcnt(0)", "s_barrier"] + adds(RT, RT+32))
            if p == 5 and st == 3:
                k.fill(adds(RT, OWN) + hpack(PK+8, RT))
            if p == 5 and st == 1: k.drain()
            for jj in range(4):
                acc = accname(p, jj, own)
                k(f"v_mfma_f32_16x16x32_bf16 {acc}, {vr(WQ+(st*4+jj)*4,4)}, {ar(((p*8+st) % XRN)*4,4)}, {'0' if st == 0 else acc}")
                if jj == 0: k.pump()
                if p == 7: k.drain(1 if st == 2 else 3)
                elif jj: k.drain(2)
            k.open(f"xfree{p*8+st}")
        if p == 6: k.drain()
    k.drain()
    k.stamp("p2_mfma")
    k.vmem(f"buffer_store_dwordx4 v[{PK+8}:{PK+11}], v{V_L16}, {srdr(SRD_WS)}, s{HST} offen sc1", "hst")
    k.vmem(f"buffer_store_dwordx4 v[{PK+12}:{PK+15}], v{V_L16}, {srdr(SRD_WS)}, s{HST} offen offset:1024 sc1", "hst")
    k(f"s_add_u32 s{HST}, s{HST}, {4*112*1024}")
    k("s_nop 1")
    pkadd(k, OWN, RT)
    for x in hpack(PK, OWN): k(x)
    k.vmem(f"buffer_store_dwordx4 v[{PK}:{PK+3}], v{V_L16}, {srdr(SRD_WS)}, s{HST} offen sc1", "hst")
    k.vmem(f"buffer_store_dwordx4 v[{PK+4}:{PK+7}], v{V_L16}, {srdr(SRD_WS)}, s{HST} offen offset:1024 sc1", "hst")
    k.open("hstored")
    k.L = o.get("L", 12) + 4
    k.pump()
    p3_setup(k)
    k.wait("hst")
    k.flag(f"s{FL2}")
    k.stamp("h_flag")
    k.open("hflag")
    k.L = o.get("Lf2", 20)
    k.pump()
    for n in range(nv1, 14): v_fetch(k, n)

def p3_main(k, o):
    FN = o.get("fn", 2)
    k.L = o.get("L3", 12)
    k("s_waitcnt lgkmcnt(0)")
    k.stamp("v_done")
    for p in range(8):
        own = (p % 4 == 3)
        off = 0 if p < 4 else P2R
        for j in range(14):
            n = p*14+j
            need(k, f"h{p}_{j}")
            if j == 2 and p % 4 != 0:
                for jj in range(4):
                    k.fill([f"ds_write_b128 v{V_RW}, {accname(p-1, jj, False)} offset:{off+((p-1) % 4)*4096+jj*1024}"] + [""]*(FN-1))
            if own and j == o.get('barat', 4):
                k.fill(["s_waitcnt lgkmcnt(0)", "s_barrier"] + rreads(off) + ["s_waitcnt lgkmcnt(4)"] + adds(RT, RT+16) + ["s_waitcnt lgkmcnt(0)"] + adds(RT, RT+32))
            if p == 4 and j == 2:
                k.drain()
                k.fill(adds(RT, OWN) + [f"v_bfi_b32 v{RT+r}, v{TGV+4}, v{TGV+(r % 4)}, v{RT+r}" for r in range(16)])
            for jj in range(4):
                acc = accname(p, jj, own)
                k(f"v_mfma_f32_16x16x32_bf16 {acc}, {ar(vslot(j)+jj*4,4)}, {vr(WQ+4*(n % HRN),4)}, {'0' if j == 0 else acc}")
                if jj == 0: k.pump()
                else: k.drain(FN)
            if p == 7 and j == 12:
                assert k.isdone("pld")
                k.drain()
                L = k.lab("RETRY"); E = k.lab("RETRYX")
                def tagcheck():
                    for jj in range(4):
                        r = PLD+jj*4
                        k(f"v_perm_b32 v{PK}, v{r+1}, v{r}, v{TGV+5}")
                        k(f"v_perm_b32 v{PK+1}, v{r+3}, v{r+2}, v{TGV+6}")
                        k(f"v_or_b32 v{PK}, v{PK}, v{PK+1}")
                        k(f"v_xor_b32 v{PK+2+jj}, s{TAGB}, v{PK}")
                    k(f"v_or3_b32 v{PK}, v{PK+2}, v{PK+3}, v{PK+4}")
                    k(f"v_or_b32 v{PK}, v{PK}, v{PK+5}")
                    k(f"v_cmp_ne_u32 vcc, 0, v{PK}")
                tagcheck()
                k(f"s_mov_b32 s{S_CNT}, 0")
                k(f"s_cbranch_vccz {E}")
                k.a.label(L)
                for jj in range(4): k(pld_ins(jj))
                k(f"s_add_u32 s{S_CNT}, s{S_CNT}, 1")
                k("s_waitcnt vmcnt(0)")
                tagcheck()
                k(f"s_cmp_gt_u32 s{S_CNT}, 0x40000")
                k(f"s_cbranch_scc1 {E}")
                k(f"s_cbranch_vccnz {L}")
                k.a.label(E)
                pkadd(k, RT, PLD)
            if p == 4 and j == 7:
                k.drain()
                for jj in range(4):
                    k.vmem(f"buffer_store_dwordx4 {vr(RT+jj*4,4)}, v{V_L16}, {srdr(SRD_WS)}, s{PA} offen offset:{jj*1024} sc1", "pst")
                k.L = o.get("L3", 12) + 4
                k.stamp("part_st")
            if "pst" in k.vm and k.isdone("pst"): k.L = o.get("L3", 12)
            if j == 0: k.stamp(f"pos{p}")
    k.stamp("p3_mfma")
    k("s_nop 4")
    pkadd(k, OWN, RT)
    for q in range(8):
        k(f"v_cvt_pk_bf16_f32 v{PK+q}, v{OWN+2*q}, v{OWN+2*q+1}")
    k("s_nop 1")
    for pr in range(2):
        k(f"v_permlane16_swap_b32 v{PK+4*pr}, v{PK+4*pr+2}")
        k(f"v_permlane16_swap_b32 v{PK+4*pr+1}, v{PK+4*pr+3}")
    yfl = o.get("yfl", "")
    for pr in range(2):
        k(f"buffer_store_dwordx4 v[{PK+4*pr}:{PK+4*pr+3}], v5, {srdr(SRD_OUT)}, s{YB} offen offset:{64*pr} {yfl}")
    assert k.sp == len(k.stream)

def line_loop(k, srd_, rowbytes, s_off, count, label, lpr=8, n=8):
    sh = {8: 3, 16: 4}[lpr]
    k(f"v_lshrrev_b32 v5, {sh}, v1")
    k(f"v_mul_u32_u24 v5, {rowbytes}, v5")
    k(f"v_and_b32 v6, {lpr-1}, v1")
    k("v_lshl_add_u32 v5, v6, 4, v5")
    k(f"s_mov_b32 s{S_CNT}, {count}")
    k.a.label(label)
    for t in range(n):
        k(f"buffer_load_dwordx4 {vr(16+t*4,4)}, v5, {srdr(srd_)}, s{s_off} offen")
        k(f"s_add_u32 s{s_off}, s{s_off}, {(64//lpr)*rowbytes}")
    k(f"s_add_u32 s{s_off}, s{s_off}, s{T3}")
    k(f"s_sub_u32 s{S_CNT}, s{S_CNT}, 1")
    k(f"s_cmp_lg_u32 s{S_CNT}, 0")
    k(f"s_cbranch_scc1 {label}")

def help_q(k, rows):
    k(f"s_mul_i32 s{T0}, s{S_XCD}, 7")
    k(f"s_sub_u32 s{T1}, 1, s{T0}")
    k(f"s_and_b32 s{T1}, s{T1}, 3")
    k(f"s_lshl_b32 s{T2}, s{S_HALF}, 2")
    k(f"s_add_u32 s{T2}, s{T2}, s{T1}")
    k(f"s_cmp_lt_u32 s{T2}, 7")
    k(f"s_cselect_b32 s{T1}, s{T2}, s{T1}")
    k(f"s_add_u32 s{T0}, s{T0}, s{T1}")
    k(f"s_lshl_b32 s{T0}, s{T0}, 8")
    k(f"s_add_u32 s{T0}, s{T0}, {(128-rows)*14336}")
    k(f"s_mul_i32 s{T1}, s{S_WAVE}, {256*14336}")
    k(f"s_add_u32 s{T0}, s{T0}, s{T1}")
    k(f"s_mov_b32 s{T3}, {(128-rows)*14336}")
    line_loop(k, SRD_QW, 14336, T0, 2, "HQ", 16, rows//4)

def help_v(k, blk0, nblk, label):
    k(f"s_lshr_b32 s{T0}, s{S_XCD}, 1")
    k(f"s_mul_i32 s{T0}, s{T0}, 14")
    k(f"s_sub_u32 s{T1}, 3, s{T0}")
    k(f"s_and_b32 s{T1}, s{T1}, 7")
    k(f"s_lshl_b32 s{T2}, s{S_HALF}, 3")
    k(f"s_add_u32 s{T2}, s{T2}, s{T1}")
    k(f"s_cmp_lt_u32 s{T2}, 14")
    k(f"s_cselect_b32 s{T1}, s{T2}, s{T1}")
    k(f"s_add_u32 s{T0}, s{T0}, s{T1}")
    k(f"s_lshl_b32 s{T0}, s{T0}, 7")
    k(f"s_and_b32 s{T1}, s{S_XCD}, 1")
    k(f"s_lshl_b32 s{T1}, s{T1}, 2")
    k(f"s_add_u32 s{T1}, s{T1}, s{S_WAVE}")
    k(f"s_mul_i32 s{T1}, s{T1}, {448*7168}")
    k(f"s_add_u32 s{T0}, s{T0}, s{T1}")
    k(f"s_add_u32 s{T0}, s{T0}, {64*blk0*7168}")
    k(f"s_mov_b32 s{T3}, 0")
    line_loop(k, SRD_V, 7168, T0, nblk, label)

def mid_main(k, nv1, vat):
    def vpart():
        for n in range(nv1):
            if n == nv1//2: k.L = k.o.get("L", 12)
            v_fetch(k, n)
        if nv1:
            k("s_waitcnt lgkmcnt(0)")
            k.open(f"vfree{nv1-1}")
        k.stamp("v1_done")
    for pr in range(32):
        if pr == vat//2: vpart()
        if pr == 16 and k.role == "B": k.L = k.o.get("L", 12)
        dequant_pair(k, pr)
        if pr == 15: k.stamp("q_half")
    if vat == 64: vpart()

def role_a(a, o):
    k = K(a, o); k.role = "A"
    a.label("ROLE_A")
    k(f"s_lshr_b32 s{T0}, s{S_I2}, 1")
    k(f"s_and_b32 s{T1}, s{T0}, 1")
    k(f"s_lshl_b32 s{S_N64}, s{S_XCD}, 1")
    k(f"s_add_u32 s{S_N64}, s{S_N64}, s{T1}")
    k(f"s_lshr_b32 s{T0}, s{T0}, 1")
    k(f"s_lshl_b32 s{S_M32}, s{S_HALF}, 2")
    k(f"s_add_u32 s{S_M32}, s{S_M32}, s{T0}")
    k(f"s_lshl_b32 s{T1}, s{T1}, 1")
    k(f"s_add_u32 s{RHO}, s{S_M32}, s{T1}")
    k(f"s_lshl_b32 s{T0}, s{S_N64}, 7")
    k(f"s_lshl_b32 s{T1}, s{S_WAVE}, 19")
    k(f"s_add_u32 s{T0}, s{T0}, s{T1}")
    dma_voff(k, V_U0, V_U1, 2048, T0)
    k(f"v_lshrrev_b32 v{V_X0}, 3, v1")
    k(f"v_lshlrev_b32 v{V_X0}, 11, v{V_X0}")
    k(f"v_xor_b32 v{V_T2}, v{V_T2}, v2")
    k(f"v_lshl_add_u32 v{V_X0}, v{V_T2}, 4, v{V_X0}")
    k(f"s_lshl_b32 s{T0}, s{S_M32}, 16")
    k(f"s_lshl_b32 s{T1}, s{S_WAVE}, 9")
    k(f"s_add_u32 s{T0}, s{T0}, s{T1}")
    k(f"v_add_u32 v{V_X0}, s{T0}, v{V_X0}")
    k(f"v_xor_b32 v{V_X1}, 64, v{V_X0}")
    k("s_waitcnt lgkmcnt(0)")
    srd(a, SRD_U, 16, U_BYTES)
    srd(a, SRD_X, 8, X_BYTES)
    k(f"s_lshl_b32 s{XST_}, s{S_HALF}, 16")
    def p1_item(jp, i):
        def f(tag):
            if i in (0, 4, 8):
                k(f"s_add_u32 s{L1}, s{RHO}, {jp}")
                k(f"s_and_b32 s{L1}, s{L1}, 3")
            if i == 0: k(f"s_lshl_b32 s{L0}, s{L1}, 7")
            if i in (4, 8):
                k(f"s_lshl_b32 s{L0}, s{L1}, 17")
                if i == 8: k(f"s_add_u32 s{L0}, s{L0}, 0x10000")
                k(f"s_xor_b32 s{L0}, s{L0}, s{XST_}")
            k(f"s_add_u32 m0, s{S_AREA}, {P1R + (jp % 2)*4096 + i*1024 if i < 4 else jp*8192 + (i-4)*1024}")
            if i not in (0, 4, 8): k(f"s_add_u32 s{L0}, s{L0}, 0x4000")
            else: k("s_nop 0")
            if i < 4: k.vmem(f"buffer_load_dwordx4 v{V_X0+(i&1)}, {srdr(SRD_X)}, s{L0} offen lds", tag)
            else: k.vmem(f"buffer_load_dwordx4 v{V_U0+(i&1)}, {srdr(SRD_U)}, s{L0} offen lds", tag)
        k.add(f"p1x{jp//2}" if i < 4 else f"p1u{jp}_{0 if i < 8 else 1}", f, "p1free" if (jp == 2 and i == 0) else None)
    X = lambda jp: [(jp, i) for i in range(4)]
    U = lambda jp, u: [(jp, i) for i in range(4+4*u, 8+4*u)]
    for jp, i in X(0) + X(1) + U(0, 0): p1_item(jp, i)
    for jp, i in U(0, 1) + X(2) + X(3) + U(1, 0) + U(1, 1) + U(2, 0) + U(2, 1) + U(3, 0) + U(3, 1): p1_item(jp, i)
    k.nv1 = 0
    npf = o.get("npfA", 7)
    pfat = o.get("pfatA", 14)
    pford = list(range(npf)) if o.get("pffwd", 1) else list(range(6, 6-npf, -1))
    xat = o.get("xatA", 2)
    def pfs():
        for st in pford:
            for q in range(4): vpf_item(k, st, q)
    for n in range(14):
        if n == xat:
            k.add("poll1", k.poll_item(f"v{V_P1}", f"s{PF1}"), "setup")
        if n == xat + o.get("xgapA", 0):
            for i in range(10): xpf_item(k, i)
        if n == pfat: pfs()
        for q in range(4): v_item(k, n, q, "setup")
    if pfat == 14: pfs()
    k.add("poll2", k.poll_item(f"v{V_P2}", f"s{PF2}"))
    h_stream(k, o)
    k.pump()
    epoch_load(k)
    srd(a, SRD_V, 18, V_BYTES); srd(a, SRD_OUT, 20, OUT_BYTES); srd(a, SRD_WS, 24, WS_BYTES)
    tr_addrs(k)
    k(f"v_lshrrev_b32 v{V_XR0}, 1, v3")
    k(f"v_xor_b32 v{V_XR0}, v{V_XR0}, v2")
    k(f"v_lshlrev_b32 v{V_XR0}, 4, v{V_XR0}")
    k(f"v_lshl_add_u32 v{V_XR0}, v3, 7, v{V_XR0}")
    k(f"v_add_u32 v{V_XR0}, s{S_AREA}, v{V_XR0}")
    k(f"s_lshl_b32 s{T0}, s{S_HALF}, 6")
    k(f"v_xor_b32 v{V_XR0}, s{T0}, v{V_XR0}")
    k(f"v_xor_b32 v{V_XR1}, 64, v{V_XR0}")
    k(f"v_add_u32 v{V_RW}, s{S_AREA}, v{V_L16}")
    k(f"s_lshl_b32 s{T0}, s{S_WAVE}, 11")
    k(f"s_add_u32 s{T0}, s{T0}, {P1R}")
    k(f"v_add_u32 v{V_RR}, s{T0}, v{V_L16}")
    k(f"v_add_u32 v{V_RR+1}, {hex(2*AREA_SZ)}, v{V_RR}")
    k(f"s_and_b32 s{T1}, s{S_WAVE}, 1")
    k(f"s_lshl_b32 s{T0}, s{S_M32}, 1")
    k(f"s_add_u32 s{T0}, s{T0}, s{T1}")
    k(f"s_lshr_b32 s{T1}, s{S_WAVE}, 1")
    k(f"s_lshl_b32 s{T2}, s{S_N64}, 1")
    k(f"s_add_u32 s{T2}, s{T2}, s{T1}")
    k(f"s_lshl_b32 s{XSO}, s{T0}, 5")
    k(f"s_add_u32 s{XSO}, s{XSO}, s{T2}")
    k(f"s_lshl_b32 s{XSO}, s{XSO}, 10")
    k(f"s_lshl_b32 s{T1}, s{S_HALF}, 4")
    k(f"s_add_u32 s{T1}, s{T1}, s{S_N64}")
    k(f"s_lshl_b32 s{T1}, s{T1}, 2")
    k(f"s_and_b32 s{T0}, s{S_M32}, 3")
    k(f"s_add_u32 s{T1}, s{T1}, s{T0}")
    k(f"s_lshl_b32 s{T1}, s{T1}, 7")
    k(f"s_add_u32 s{FL1}, s{T1}, {hex(F1_OFF)}")
    v_setup(k)
    poll1_setup(k)
    k.stamp("issue0")
    k.L = o.get("Lp1", 18)
    k.pump()
    A1 = 224
    def acc1(jj, mi): return ar(A1 + (((jj >> 1)*2 + mi)*2 + (jj & 1))*4, 4)
    def xreads(jp0):
        for jp in (jp0, jp0+1):
            for u in range(2):
                for mi in range(2):
                    k(f"ds_read_b128 {ar(((2*jp+u)*2+mi)*4,4)}, v{V_XR0+u} offset:{P1R+(jp % 2)*4096+mi*2048}")
    def ureads(j):
        for jj in range(4):
            for h in range(2):
                k(f"ds_read_b64_tr_b16 {ar(64+(j % 2)*16+jj*4+2*h,2)}, v{V_TR+jj} offset:{j*4096+h*512}")
    k.wait("p1x0")
    xreads(0)
    tag_calc(k)
    k.open("p1free")
    k.pump()
    k.wait("p1u0_0")
    k.stamp("p1s0")
    ureads(0)
    for j in range(8):
        if j == 2: xreads(2)
        if j < 7:
            k.wait(f"p1u{(j+1)//2}_{(j+1) % 2}")
            if j == 6:
                k.stamp("p1_loaded"); k.L = o.get("L", 12)
            k.stamp(f"p1s{j+1}")
            k("s_waitcnt lgkmcnt(0)")
            ureads(j+1)
        else:
            k("s_waitcnt lgkmcnt(0)")
        for jj in range(4):
            for mi in range(2):
                k(f"v_mfma_f32_16x16x32_bf16 {acc1(jj, mi)}, {ar(64+(j % 2)*16+jj*4,4)}, {ar((j*2+mi)*4,4)}, {'0' if j == 0 else acc1(jj, mi)}")
            k.pump(2)
    k(f"s_mov_b32 s{T0}, 0x58000000")
    k(f"v_mov_b32 v{V_X1}, s{T0}")
    k("s_nop 3")
    for q in (0, 2, 1, 3, 4, 6, 5, 7):
        k(f"ds_write_b128 v{V_RW}, {ar(A1+q*4,4)} offset:{P1R+q*1024}")
    k("s_waitcnt lgkmcnt(0)")
    k("s_barrier")
    k.stamp("p1_bar")
    R = 16
    for w in range(4):
        for c in range(2):
            k(f"ds_read_b128 {vr(R+(w*2+c)*4,4)}, v{V_RR+w//2} offset:{(w % 2)*AREA_SZ+c*1024}")
    k("s_waitcnt lgkmcnt(4)")
    pkadd(k, R, R+8, 4)
    k("s_waitcnt lgkmcnt(0)")
    pkadd(k, R+16, R+24, 4)
    pkadd(k, R, R+16, 4)
    for q in range(4):
        d = R+2*q
        k(f"v_pk_mul_f32 v[{d}:{d+1}], v[{d}:{d+1}], v[{V_X1}:{V_X1+1}] op_sel_hi:[1,0]")
    for q in range(4):
        k(f"v_cvt_pk_bf16_f32 v{R+32+q}, v{R+2*q}, v{R+2*q+1}")
    k.vmem(f"buffer_store_dwordx4 v[{R+32}:{R+35}], v{V_L16}, {srdr(SRD_WS)}, s{XSO} offen sc1", "xrst")
    k.stamp("p1_done")
    k(f"s_cmp_lt_u32 s{S_I2}, 14")
    k("s_cbranch_scc1 WORKER_A")
    k("s_waitcnt vmcnt(0)")
    sv = list(k.vm)
    k.flag(f"s{FL1}")
    if o.get("n14", 4): help_v(k, o.get("b14", 3), o.get("n14", 4), "HV14")
    k("s_waitcnt vmcnt(0)")
    k("s_branch FINISH")
    k.vm = sv
    a.label("WORKER_A")
    k.open("setup")
    k.L = o.get("LA", 12)
    k.pump(o.get("nxA", 0))
    red_addrs(k, 0)
    p3_setup(k)
    k.wait("xrst")
    k.flag(f"s{FL1}"); k.open("f1"); k.open("f1done")
    k.stamp("h_flag")
    k.pump()
    def pfw():
        for st in pford:
            need(k, f"pf{st}"); k.pump()
    for n in range(14):
        if n == pfat: pfw()
        v_fetch(k, n)
        if n == 6: k.stamp("q_half")
    k.stamp("v1_done")
    if pfat == 14: pfw()
    p3_main(k, o)
    k(f"s_or_b32 s{T0}, s{S_XCD}, s{S_I2}")
    k(f"s_or_b32 s{T0}, s{T0}, s{S_WAVE}")
    k(f"s_cmp_lg_u32 s{T0}, 0")
    k("s_cbranch_scc1 FINISH")
    k(f"s_add_u32 s{T0}, s{S_EP}, 1")
    k(f"v_mov_b32 v{V_T}, s{T0}")
    k(f"s_lshl_b32 s{T0}, s{S_HALF}, 7")
    k(f"s_add_u32 s{T0}, s{T0}, {hex(EP_OFF)}")
    k("s_mov_b64 exec, 1")
    k(f"buffer_store_dword v{V_T}, v0, {srdr(SRD_WS)}, s{T0} offen sc1")
    k("s_mov_b64 exec, -1")
    k("s_branch FINISH")

def role_b(a, o):
    k = K(a, o); k.role = "B"
    k.L = o.get("LB0", 12)
    a.label("ROLE_B")
    k(f"s_cmp_lt_u32 s{S_I2}, 14")
    k("s_cbranch_scc1 WORKER_B")
    k("s_waitcnt lgkmcnt(0)")
    srd(a, SRD_V, 18, V_BYTES)
    srd(a, SRD_QW, 10, QW_BYTES)
    if o.get("hq", 32): help_q(k, o.get("hq", 32))
    if o.get("n15", 3): help_v(k, o.get("b15", 0), o.get("n15", 3), "HV15")
    k("s_waitcnt vmcnt(0)")
    k("s_branch FINISH")
    a.label("WORKER_B")
    role_ids(k)
    q_setup(k, False)
    k("s_waitcnt lgkmcnt(0)")
    srd(a, SRD_QW, 10, QW_BYTES); srd(a, SRD_SC, 12, SC_BYTES); srd(a, SRD_Z, 14, SC_BYTES)
    nv1, vat = o.get("nv1B", 0), o.get("vatB", 32)
    k.nv1 = nv1
    sz_items(k)
    q_stream(k, 0, vat, o, "B")
    for n in range(nv1):
        for q in range(4): v_item(k, n, q, "setup")
    q_stream(k, vat, 64, o, "B")
    tail_stream(k, nv1, o, "B")
    k.pump()
    epoch_load(k)
    srd(a, SRD_V, 18, V_BYTES); srd(a, SRD_OUT, 20, OUT_BYTES); srd(a, SRD_WS, 24, WS_BYTES)
    k("s_setreg_imm32_b32 hwreg(HW_REG_MODE, 4, 2), 3")
    tr_addrs(k)
    v_setup(k)
    p2_setup(k)
    red_addrs(k, 0)
    k.open("setup")
    k.L = o.get("LB1", 16)
    k.pump()
    k.wait("sz")
    tag_calc(k)
    mid_main(k, nv1, vat)
    p2_main(k, nv1, o)
    p3_main(k, o)

def build(opt):
    a = Asm(); K.uid = 0
    a.raw(HEADER.rstrip())
    a.raw(f"; @launch grid=(256,1,1) block=(256,1,1) lds={LDS_BYTES}")
    a.raw('.amdgcn_target "amdgcn-amd-amdhsa--gfx950"')
    kernel_begin(a, KNAME)
    a("s_cmp_ge_u32 s2, 256")
    a("s_cbranch_scc1 DONE")
    if opt.get("stamp"): a(f"{TIMER(opt)} s[92:93]")
    a("s_load_dwordx16 s[8:23], s[0:1], 0")
    a("s_load_dwordx2 s[24:25], s[0:1], 64")
    a("v_lshrrev_b32 v4, 6, v0")
    a("v_and_b32 v1, 63, v0")
    a(f"v_readfirstlane_b32 s{S_WAVE}, v4")
    a("v_lshrrev_b32 v2, 4, v1")
    a("v_and_b32 v3, 15, v1")
    a(f"v_lshlrev_b32 v{V_L16}, 4, v1")
    a("v_mov_b32 v0, 0")
    a(f"s_and_b32 s{S_XCD}, s2, 7")
    a(f"s_lshr_b32 s{T0}, s2, 3")
    a(f"s_and_b32 s{S_HALF}, s{T0}, 1")
    a(f"s_lshr_b32 s{S_I2}, s{T0}, 1")
    a(f"s_mul_i32 s{S_AREA}, s{S_WAVE}, {AREA_SZ}")
    a(f"s_bitcmp1_b32 s{S_I2}, 0")
    a("s_cbranch_scc1 ROLE_B")
    role_a(a, opt)
    role_b(a, opt)
    a.label("FINISH")
    if opt.get("stamp"):
        a("s_waitcnt vmcnt(0)")
        a(f"{TIMER(opt)} s[72:73]")
        a("s_load_dwordx2 s[70:71], s[0:1], 64")
        a("s_waitcnt lgkmcnt(0)")
        srd(a, 76, 70, 1 << 20, STAMP_OFF)
        a("s_lshl_b32 s70, s2, 2")
        a(f"s_add_u32 s70, s70, s{S_WAVE}")
        a("s_lshl_b32 s70, s70, 7")
        regs = [92] + STAMP_REGS[:len(STAMP_NAMES)] + [72]
        a("s_mov_b64 exec, 1")
        for i, r in enumerate(regs):
            a(f"v_mov_b32 v16, s{r}")
            a(f"v_mov_b32 v17, s{r+1}")
            a(f"buffer_store_dwordx2 v[16:17], v0, s[76:79], s70 offen offset:{i*8}")
            a("s_nop 1")
    a.label("DONE")
    a("s_endpgm")
    kernel_desc(a, KNAME, 512, 102, 256)
    return a.text(), ["start"] + stamp_names(opt) + ["end"]

if __name__ == "__main__":
    opt = eval(sys.argv[2]) if len(sys.argv) > 2 else {}
    txt, names = build(opt)
    open(sys.argv[1], "w").write(txt)
    print(len(txt))
```

```python
import sys
from asmlib import *

KNAME = "standalone__weight_only_int_quip__sampling_kernel"
XR_OFF   = 0
H_OFF    = 1 << 20
F1_OFF   = 3 << 20
F2_OFF   = F1_OFF + 16384
EP_OFF   = F1_OFF + 32768
F2A_D    = 32768
PFB = 78
PART_OFF = 4 << 20
WS_BYTES = 8 << 20
STAMP_OFF = 128 << 20
OOB = 0x7f000000
AREA_SZ = 40960
P2R = 20480
P1R = 32768
LDS_BYTES = 163840
RING = 5

S_WAVE, S_EP = 4, 5
SRD_X, SRD_QW, SRD_SC, SRD_Z, SRD_U, SRD_V, SRD_OUT, SRD_WS = 28, 32, 36, 40, 44, 48, 52, 56
S_XCD, S_HALF, S_I2, S_M32, S_N64, S_M64, S_T2, S_KS, S_T, S_TAG = 60, 61, 62, 63, 64, 65, 66, 67, 68, 69
T0, T1, T2, T3 = 70, 71, 72, 73
S_AREA, S_CNT = 74, 75
L0, L1 = 76, 77
QB, GI = 78, 82
FL1, XST_, XRB, RHO = 86, 87, 88, 89
VB = 90
HB = 36
MOTH, MOWN, L2, TAGB, WT = 40, 41, 42, 43, 3
PF1, PF2, FL2, HST = 6, 7, 26, 27
PA, PB, YB, XSO = 94, 95, 96, 97
XO = 98

V_L16, V_X0, V_X1, V_T2, V_Q, V_T, V_VD0, V_VD1, V_TR = 4, 5, 6, 7, 8, 9, 10, 11, 12
WQ, STG, SZ, RAW, OWN = 16, 144, 240, 252, 240
QR = 20
V_U0, V_U1, V_XR0, V_XR1 = 224, 225, 226, 227
TGV = 224
XRN = 16
V_RW, V_RR = 232, 233
V_P1, V_P2, V_PR = 236, 237, 238
RT, PK, PLD = 144, 192, 208
STAMP_REGS = list(range(8, 26, 2)) + [28, 30, 44]
STAMP_NAMES = ["p1_loaded", "p1_done", "q_half", "v1_done", "h1_seen", "q_all", "p2_mfma", "h_flag", "h2_seen", "v_done", "part_st", "p3_mfma"]

def stamp_names(o):
    f = o.get("fine")
    if f == "p3": return ["h_flag", "h2_seen", "v_done"] + [f"pos{p}" for p in range(8)] + ["p3_mfma"]
    if f == "v": return ["p2_mfma", "h_flag"] + [f"vf{n}" for n in (0, 2, 4, 6, 7, 8, 10, 12)] + ["h2_seen", "v_done"]
    if f == "p1": return ["issue0"] + [f"p1s{j}" for j in range(8)] + ["p1_bar", "p1_done", "q_half"]
    if f == "p2": return ["h1_seen", "q_all"] + [f"p2_{p}{h}" for p in range(4) for h in "ab"] + ["p2_mfma", "h_flag"]
    if f == "q": return ["p1_done"] + [f"qp{n}" for n in (0, 3, 7, 11, 15, 19, 23, 27)] + ["v1_done", "h1_seen", "q_all"]
    return STAMP_NAMES
def TIMER(o): return "s_memtime" if o.get("cyc") else "s_memrealtime"
def srdr(b): return f"s[{b}:{b+3}]"
def vreg(k, j, off, n):
    if j < 10: return ar(64 + 16*j + off, n)
    if j < 14: return ar(16*(j-10) + off, n)
    return vr(WQ + 4*k.HRN + 16*(j-14) + off, n)
def step_base(k, d, ns):
    k(f"s_mul_i32 s{d}, s{S_KS}, {112-4*ns}")
    k(f"s_mul_i32 s{T1}, s{S_WAVE}, {ns}")
    k(f"s_add_u32 s{d}, s{d}, s{T1}")

class K:
    uid = 0
    def __init__(self, a, opt):
        self.a = a; self.o = opt
        self.vm = []; self.done = 0
        self.stream = []; self.sp = 0; self.gates = set()
        self.L = opt.get("L", 12)
    def __call__(self, s): self.a(s)
    def vmem(self, s, tag):
        self.a(s); self.vm.append(tag)
    def isdone(self, tag):
        return tag in self.vm and tag not in [t for t, _, _ in self.stream[self.sp:]] and self.done > max(i for i, t in enumerate(self.vm) if t == tag)
    def wait(self, tag):
        while tag in [t for t, _, _ in self.stream[self.sp:]]:
            assert self.issue_one(force=True), f"gate closed while waiting for {tag}: {self.stream[self.sp]}"
        idx = max(i for i, t in enumerate(self.vm) if t == tag)
        if idx < self.done: return
        n = len(self.vm) - 1 - idx
        self.a(f"s_waitcnt vmcnt({min(n, 63)})")
        self.done = idx + 1
    def add(self, tag, fn, *gates): self.stream.append((tag, fn, [g for g in gates if g]))
    def issue_one(self, force=False):
        if self.sp >= len(self.stream): return False
        tag, fn, gates = self.stream[self.sp]
        if any(g not in self.gates for g in gates): return False
        if not force and len(self.vm) - self.done >= self.L: return False
        self.sp += 1
        fn(tag)
        return True
    def pump(self, n=99):
        while n > 0 and self.issue_one(): n -= 1
    def open(self, g): self.gates.add(g)
    def fill(self, items): self.fq = getattr(self, "fq", []) + list(items)
    def drain(self, n=999):
        q = getattr(self, "fq", [])
        while q and n > 0:
            self.a(q.pop(0)); n -= 1
    def stamp(self, name):
        if not self.o.get("stamp"): return
        names = stamp_names(self.o)
        if name not in names: return
        r = STAMP_REGS[names.index(name)]
        self.a(f"{TIMER(self.o)} s[{r}:{r+1}]")
        self.a("s_waitcnt lgkmcnt(0)")
    def lab(self, p):
        K.uid += 1
        return f"{p}_{K.uid}"
    def poll_item(self, voff, soff):
        return lambda tag: self.vmem(f"buffer_load_dword v{V_PR}, {voff}, {srdr(SRD_WS)}, {soff} offen sc1", tag)
    def poll_check(self, tag, voff, soff):
        self.wait(tag)
        L = self.lab("POLL"); E = self.lab("POLLX")
        self(f"v_cmp_ne_u32 vcc, s{S_TAG}, v{V_PR}")
        self(f"s_mov_b32 s{S_CNT}, 0")
        self(f"s_cbranch_vccz {E}")
        self.a.label(L)
        self(f"s_sleep {self.o.get('nap', 8)}")
        self(f"buffer_load_dword v{V_PR}, {voff}, {srdr(SRD_WS)}, {soff} offen sc1")
        self(f"s_add_u32 s{S_CNT}, s{S_CNT}, 1")
        self("s_waitcnt vmcnt(0)")
        self(f"v_cmp_ne_u32 vcc, s{S_TAG}, v{V_PR}")
        self(f"s_cmp_gt_u32 s{S_CNT}, 0x40000")
        self(f"s_cbranch_scc1 {E}")
        self(f"s_cbranch_vccnz {L}")
        self.a.label(E)
    def flag(self, soff, who=0):
        self(f"s_cmp_eq_u32 s{S_WAVE}, {who}")
        self(f"s_cselect_b32 s{T0}, 0, {hex(OOB)}")
        self(f"v_mov_b32 v{V_T2}, s{S_TAG}")
        self(f"v_mov_b32 v{V_PR+1}, s{T0}")
        self("s_barrier")
        self("s_mov_b64 exec, 1")
        self.vmem(f"buffer_store_dword v{V_T2}, v{V_PR+1}, {srdr(SRD_WS)}, {soff} offen sc1", "flag")
        self("s_mov_b64 exec, -1")

def dma_voff(k, d0, d1, rowbytes, s_add):
    k(f"v_lshrrev_b32 v{d0}, 3, v1")
    k(f"v_and_b32 v{d1}, 2, v{d0}")
    k(f"v_mul_u32_u24 v{d0}, {rowbytes}, v{d0}")
    k(f"v_and_b32 v{V_T2}, 7, v1")
    k(f"v_xor_b32 v{d1}, v{d1}, v{V_T2}")
    k(f"v_lshl_add_u32 v{d0}, v{d1}, 4, v{d0}")
    k(f"v_add_u32 v{d0}, s{s_add}, v{d0}")
    k(f"v_xor_b32 v{d1}, 64, v{d0}")

def tr_addrs(k):
    k("v_lshrrev_b32 v12, 2, v3")
    k("v_lshrrev_b32 v13, 1, v12")
    k("v_and_b32 v14, 1, v2")
    k("v_lshl_add_u32 v13, v14, 1, v13")
    k("v_lshl_add_u32 v12, v2, 3, v12")
    k("v_lshlrev_b32 v12, 7, v12")
    k("v_lshl_add_u32 v12, v13, 5, v12")
    k("v_and_b32 v13, 3, v1")
    k("v_lshl_add_u32 v12, v13, 3, v12")
    k(f"v_add_u32 v12, s{S_AREA}, v12")
    k("v_xor_b32 v13, 32, v12")
    k("v_xor_b32 v14, 64, v12")
    k("v_xor_b32 v15, 96, v12")

def role_ids(k):
    k(f"s_lshl_b32 s{S_M64}, s{S_HALF}, 1")
    k(f"s_lshr_b32 s{T0}, s{S_I2}, 1")
    k(f"s_mul_i32 s{S_T2}, s{S_XCD}, 7")
    k(f"s_add_u32 s{S_T2}, s{S_T2}, s{T0}")

def q_setup(k, oob, order=(0, 1, 2, 3)):
    if oob:
        k(f"s_cmp_lt_u32 s{S_I2}, 14")
        k(f"s_cselect_b32 s{T2}, 0, {hex(OOB)}")
    k(f"v_mul_u32_u24 v{V_Q}, {4*14336}, v2")
    k(f"v_lshl_add_u32 v{V_Q}, v3, 4, v{V_Q}")
    k(f"s_lshl_b32 s{T0}, s{S_T2}, 8")
    if oob: k(f"s_add_u32 s{T0}, s{T0}, s{T2}")
    k(f"v_add_u32 v{V_Q}, s{T0}, v{V_Q}")
    k(f"v_mul_u32_u24 v{V_T}, 7168, v2")
    k(f"v_lshl_add_u32 v{V_T}, v3, 3, v{V_T}")
    k(f"s_mul_i32 s{T0}, s{S_WAVE}, {4*7168}")
    k(f"s_lshl_b32 s{T1}, s{S_T2}, 7")
    k(f"s_add_u32 s{T0}, s{T0}, s{T1}")
    if oob: k(f"s_add_u32 s{T0}, s{T0}, s{T2}")
    k(f"v_add_u32 v{V_T}, s{T0}, v{V_T}")
    k(f"s_lshl_b32 s{T1}, s{S_HALF}, 1")
    for j in range(4):
        k(f"s_xor_b32 s{GI+j}, s{T1}, {order[j]}")
        k(f"s_lshl_b32 s{T0}, s{S_WAVE}, 2")
        k(f"s_add_u32 s{T0}, s{T0}, s{GI+j}")
        k(f"s_mul_i32 s{QB+j}, s{T0}, {64*14336}")

def epoch_load(k):
    k(f"s_lshl_b32 s{T0}, s{S_HALF}, 7")
    k(f"s_add_u32 s{T0}, s{T0}, {hex(EP_OFF)}")
    k(f"s_load_dword s{S_EP}, s[24:25], s{T0}")

def tag_calc(k):
    k("s_waitcnt lgkmcnt(0)")
    k(f"s_mul_i32 s{S_TAG}, s{S_EP}, 0x9e3779b1")
    k(f"s_add_u32 s{S_TAG}, s{S_TAG}, 0x7f4a7c15")
    k(f"s_lshr_b32 s{T0}, s{S_TAG}, 15")
    k(f"s_xor_b32 s{S_TAG}, s{S_TAG}, s{T0}")
    k(f"s_mul_i32 s{S_TAG}, s{S_TAG}, 0x85ebca6b")

def red_addrs(k, add):
    k(f"s_add_u32 s{T0}, s{S_AREA}, {add}")
    k(f"v_add_u32 v{V_RW}, s{T0}, v{V_L16}")
    for p in range(3):
        k(f"s_sub_u32 s{T1}, s{S_WAVE}, {p+1}")
        k(f"s_and_b32 s{T1}, s{T1}, 3")
        k(f"s_mul_i32 s{T1}, s{T1}, {AREA_SZ}")
        k(f"s_add_u32 s{T1}, s{T1}, {add+p*4096}")
        k(f"v_add_u32 v{V_RR+p}, s{T1}, v{V_L16}")

def v_setup(k):
    k(f"s_and_b32 s{S_KS}, s{S_XCD}, 1")
    k(f"s_lshr_b32 s{T0}, s{S_XCD}, 1")
    k(f"s_mul_i32 s{S_T}, s{T0}, 14")
    k(f"s_xor_b32 s{T0}, s{S_I2}, s{S_KS}")
    k(f"s_add_u32 s{S_T}, s{S_T}, s{T0}")
    k(f"s_lshl_b32 s{T0}, s{S_T}, 7")
    dma_voff(k, V_VD0, V_VD1, 7168, T0)
    step_base(k, T0, k.NS)
    k(f"s_mul_i32 s{VB}, s{T0}, {32*7168}")
    k(f"v_min_u32 v{V_P2}, {k.NS//2-1}, v1")
    k(f"v_lshlrev_b32 v{V_P2}, 7, v{V_P2}")
    k(f"s_lshr_b32 s{T0}, s{T0}, 1")
    k(f"s_mul_i32 s{T1}, s{S_HALF}, 56")
    k(f"s_add_u32 s{T1}, s{T0}, s{T1}")
    k(f"s_lshl_b32 s{T1}, s{T1}, 7")
    k(f"s_add_u32 s{PF2}, s{T1}, {hex(F2_OFF)}")
    if k.role == "A":
        k(f"s_add_u32 s{PF1}, s{PF2}, {F2A_D}")
        step_base(k, T0, 28-k.NS)
        k(f"s_mul_i32 s{PFB}, s{T0}, {32*7168}")
        k(f"s_lshl_b32 s{T0}, s{S_KS}, 8")
        k(f"s_add_u32 s{PFB}, s{PFB}, 128")
        k(f"s_sub_u32 s{PFB}, s{PFB}, s{T0}")
        k(f"s_and_b32 s{T0}, s{S_T}, 7")
        k(f"s_cmp_eq_u32 s{T0}, {3 if k.o.get('deleg', 1) else 9}")
        k(f"s_cselect_b32 s{T0}, {hex(OOB)}, 0")
        k(f"v_add_u32 v{V_P1}, s{T0}, v{V_VD0}")

def poll1_setup(k):
    k(f"v_min_u32 v{V_P1}, 15, v1")
    k(f"v_lshlrev_b32 v{V_P1}, 7, v{V_P1}")
    k(f"s_lshl_b32 s{T0}, s{S_HALF}, 13")
    k(f"s_lshl_b32 s{T1}, s{S_WAVE}, 11")
    k(f"s_add_u32 s{T0}, s{T0}, s{T1}")
    k(f"s_add_u32 s{PF1}, s{T0}, {hex(F1_OFF)}")

def xpf_item(k, i):
    def f(tag):
        if i == 0:
            k(f"s_lshr_b32 s{L1}, s{S_I2}, 1")
            k(f"s_lshl_b32 s{L0}, s{S_HALF}, 3")
            k(f"s_add_u32 s{L0}, s{L0}, s{L1}")
            k(f"s_lshl_b32 s{L0}, s{L0}, 2")
            k(f"s_add_u32 s{L0}, s{L0}, s{S_WAVE}")
            k(f"s_lshl_b32 s{L0}, s{L0}, 13")
        if i == 4: k(f"s_add_u32 s{L0}, s{L0}, 4096")
        if i == 8:
            k(f"s_lshl_b32 s{L0}, s{S_HALF}, 5")
            k(f"s_add_u32 s{L0}, s{L0}, s{S_WAVE}")
            k(f"s_add_u32 s{L0}, s{L0}, 28")
            k(f"s_lshl_b32 s{L0}, s{L0}, 3")
            k(f"s_add_u32 s{L0}, s{L0}, s{L1}")
            k(f"s_lshl_b32 s{L0}, s{L0}, 10")
        k.vmem(f"buffer_load_dwordx4 {vr(STG+4*(i % 4),4)}, v{V_L16}, {srdr(SRD_WS)}, s{L0} offen offset:{(i % 4)*1024} sc1", tag)
    k.add("xpf", f, "h1")

def p2_setup(k):
    k(f"s_add_u32 s{XRB}, s{S_WAVE}, s{S_T2}")
    k(f"s_lshl_b32 s{T0}, s{S_M64}, 4")
    k(f"s_add_u32 s{T0}, s{T0}, s{S_WAVE}")
    k(f"s_lshl_b32 s{T0}, s{T0}, 13")
    for j in range(4):
        k(f"s_lshl_b32 s{T1}, s{GI+j}, 11")
        k(f"s_add_u32 s{XO+j}, s{T0}, s{T1}")
    poll1_setup(k)
    k(f"s_and_b32 s{T1}, s{XRB}, 3")
    k(f"s_lshl_b32 s{T2}, s{S_M64}, 2")
    k(f"s_add_u32 s{T2}, s{T2}, s{T1}")
    k(f"s_mul_i32 s{T2}, s{T2}, 112")
    k(f"s_lshl_b32 s{T3}, s{S_T2}, 1")
    k(f"s_add_u32 s{T2}, s{T2}, s{T3}")
    k(f"s_lshl_b32 s{T2}, s{T2}, 10")
    k(f"s_add_u32 s{HST}, s{T2}, {hex(H_OFF)}")
    k(f"s_mul_i32 s{T0}, s{S_HALF}, 56")
    k(f"s_add_u32 s{FL2}, s{T0}, s{S_T2}")
    k(f"s_lshl_b32 s{FL2}, s{FL2}, 7")
    k(f"s_add_u32 s{FL2}, s{FL2}, {hex(F2_OFF)}")
    k(f"s_add_u32 s{FL1}, s{FL2}, {F2A_D}")

def p3_setup(k):
    step_base(k, T0, k.NS)
    k(f"s_lshl_b32 s{T0}, s{T0}, 10")
    k(f"s_add_u32 s{T0}, s{T0}, {hex(H_OFF)}")
    for r, (lo, hi, d) in enumerate(vruns(k)):
        k(f"s_mul_i32 s{T1}, s{S_HALF}, {d*1024}")
        k(f"s_add_u32 s{T1}, s{T1}, {lo*1024}")
        k(f"s_add_u32 s{HB+r}, s{T0}, s{T1}")
    k(f"s_lshl_b32 s{T0}, s{S_HALF}, 1")
    k(f"s_add_u32 s{MOWN}, s{T0}, {1 if k.role == 'A' else 0}")
    k(f"s_xor_b32 s{MOTH}, s{MOWN}, 1")
    k(f"s_lshl_b32 s{MOWN}, s{MOWN}, 2")
    k(f"s_lshl_b32 s{MOTH}, s{MOTH}, 2")
    k(f"s_add_u32 s{WT}, s{S_WAVE}, s{S_T}")
    k(f"s_mul_i32 s{T0}, s{S_HALF}, 56")
    k(f"s_add_u32 s{T0}, s{T0}, s{S_T}")
    k(f"s_lshl_b32 s{T0}, s{T0}, 1")
    k(f"s_add_u32 s{T0}, s{T0}, s{S_KS}")
    k(f"s_lshl_b32 s{T0}, s{T0}, 2")
    k(f"s_add_u32 s{T0}, s{T0}, s{S_WAVE}")
    k(f"s_xor_b32 s{T1}, s{T0}, 4")
    k(f"s_lshl_b32 s{PA}, s{T0}, 12")
    k(f"s_add_u32 s{PA}, s{PA}, {hex(PART_OFF)}")
    k(f"s_lshl_b32 s{PB}, s{T1}, 12")
    k(f"s_add_u32 s{PB}, s{PB}, {hex(PART_OFF)}")
    k(f"s_mul_i32 s{T0}, s{S_EP}, 37")
    k(f"s_add_u32 s{T0}, s{T0}, 11")
    for i in range(4):
        k(f"s_add_u32 s{T1}, s{T0}, {64*i}")
        k(f"s_and_b32 s{T1}, s{T1}, 0xff")
        k(f"v_mov_b32 v{TGV+i}, s{T1}")
        if i == 0: k(f"s_mov_b32 s{TAGB}, s{T1}")
        else:
            k(f"s_lshl_b32 s{T1}, s{T1}, {8*i}")
            k(f"s_or_b32 s{TAGB}, s{TAGB}, s{T1}")
    k(f"v_mov_b32 v{TGV+4}, 0xff")
    k(f"v_mov_b32 v{TGV+5}, 0x0c0c0400")
    k(f"v_mov_b32 v{TGV+6}, 0x04000c0c")
    k(f"s_and_b32 s{T1}, s{WT}, 3")
    k(f"s_add_u32 s{T1}, s{T1}, s{MOWN}")
    k(f"s_mul_i32 s{T1}, s{T1}, {16*7168}")
    k(f"s_lshl_b32 s{T0}, s{S_T}, 7")
    k(f"s_add_u32 s{YB}, s{T1}, s{T0}")
    k("v_mul_u32_u24 v5, 7168, v3")
    k("v_and_b32 v6, 1, v2")
    k("v_lshl_add_u32 v5, v6, 5, v5")
    k("v_lshrrev_b32 v6, 1, v2")
    k("v_lshl_add_u32 v5, v6, 4, v5")

def pkadd(k, d, s, n=8):
    for q in range(n):
        k(f"v_pk_add_f32 v[{d+2*q}:{d+2*q+1}], v[{d+2*q}:{d+2*q+1}], v[{s+2*q}:{s+2*q+1}]")

def sz_items(k, *g):
    k.add("sz", lambda t: k.vmem(f"buffer_load_dwordx2 v[{RAW}:{RAW+1}], v{V_T}, {srdr(SRD_SC)}, 0 offen", t), *g)
    k.add("sz", lambda t: k.vmem(f"buffer_load_dwordx2 v[{RAW+2}:{RAW+3}], v{V_T}, {srdr(SRD_Z)}, 0 offen", t))
def qreg(n): return 80 + 4*n if n < 16 else STG + 4*((n-16) % QR)
def q_item(k, n, fl, *g):
    st, i = n//8, n % 8
    j, u = st//2, st % 2
    ro = 32*u + (i if i < 4 else 12+i)
    def f(tag):
        so = f"s{QB+j}"
        if ro:
            k(f"s_add_u32 s{L0}, s{QB+j}, {hex(ro*14336)}")
            so = f"s{L0}"
        k.vmem(f"buffer_load_dwordx4 {vr(qreg(n),4)}, v{V_Q}, {srdr(SRD_QW)}, {so} offen {fl}", tag)
    k.add(f"q{n//2}", f, f"qfree{n-QR}" if n >= QR+16 else None, *g)
def xr_item(k, p, st):
    j, u = st//2, st % 2
    def f(tag):
        if st == 0:
            k(f"s_add_u32 s{L1}, s{XRB}, {(p % 4)+1}")
            k(f"s_and_b32 s{L1}, s{L1}, 3")
            if p >= 4: k(f"s_add_u32 s{L1}, s{L1}, 4")
            k(f"s_lshl_b32 s{L1}, s{L1}, 15")
        if u == 0:
            k(f"s_add_u32 s{L0}, s{XO+j}, s{L1}")
        k.vmem(f"buffer_load_dwordx4 {ar(((p*8+st) % XRN)*4,4)}, v{V_L16}, {srdr(SRD_WS)}, s{L0} offen offset:{u*1024} sc1", tag)
    k.add(f"x{p}_{st}", f, "h1", f"xfree{p*8+st-XRN}" if p*8+st >= XRN else None)
def vruns(k):
    out = []
    for lo, hi in ((0, k.nv1), (k.nv1, k.NS)):
        if hi == lo: continue
        assert (hi - lo) % 2 == 0
        m = (hi - lo)//2
        out += [(lo, lo+m, m), (lo+m, hi, -m)]
    return out
def rowoff(st): return 64*(st >> 1) + 8*(st & 1)
def v_item(k, n, q, *g):
    d = [d for lo, hi, d in vruns(k) if lo <= n < hi][0]
    def f(tag):
        if q == 0:
            k(f"s_mul_i32 s{VB+1}, s{S_HALF}, {(rowoff(n+d) - rowoff(n))*7168}")
            k(f"s_add_u32 s{VB+1}, s{VB+1}, s{VB}")
        k(f"s_add_u32 m0, s{S_AREA}, {(n % RING)*4096 + q*1024}")
        k(f"s_add_u32 s{L0}, s{VB+1}, {hex((rowoff(n) + 16*q)*7168)}")
        k.vmem(f"buffer_load_dwordx4 v{V_VD0+(q&1)}, {srdr(SRD_V)}, s{L0} offen lds {k.o.get('vfl','')}", tag)
    k.add(f"v{n}", f, f"vfree{n-RING}" if (n >= RING and q == 0) else None, *g)
def h_item(k, p, j):
    n = p*k.NS+j
    r, lo = [(r, lo) for r, (lo, hi, d) in enumerate(vruns(k)) if lo <= j < hi][0]
    def f(tag):
        if j == 0:
            k(f"s_add_u32 s{L2}, s{WT}, {(p % 4)+1}")
            k(f"s_and_b32 s{L2}, s{L2}, 3")
            k(f"s_add_u32 s{L2}, s{L2}, s{MOTH if p < 4 else MOWN}")
            k(f"s_mul_i32 s{L2}, s{L2}, {112*1024}")
        if j == lo: k(f"s_add_u32 s{L0}, s{L2}, s{HB+r}")
        elif (j - lo) % 4 == 0: k(f"s_add_u32 s{L0}, s{L0}, 4096")
        k.vmem(f"buffer_load_dwordx4 {vr(WQ+4*(n % k.HRN),4)}, v{V_L16}, {srdr(SRD_WS)}, s{L0} offen offset:{((j-lo) % 4)*1024} {k.o.get('hfl', 'sc1')}", tag)
    k.add(f"h{p}_{j}", f, "h2a" if (k.role == "A" and p < 4) else "h2")
def pld_ins(jj):
    return f"buffer_load_dwordx4 {vr(PLD+jj*4,4)}, v{V_L16}, {srdr(SRD_WS)}, s{PB} offen offset:{jj*1024} sc1"

def sz_prep(k, j):
    k(f"s_lshl_b32 s{T0}, s{GI+j}, 6")
    k(f"v_lshl_add_u32 v{V_PR+1}, v3, 2, s{T0}")
    for q in range(4):
        k(f"ds_bpermute_b32 v{248+q}, v{V_PR+1}, v{RAW+q}")
    k(f"s_mov_b32 s{T2}, 0x71800000")
    k(f"s_mov_b32 s{T3}, 0xa7000000")
    k("s_waitcnt lgkmcnt(0)")
    for jj in range(4):
        if jj % 2 == 0:
            k(f"v_lshlrev_b32 v{SZ+jj}, 16, v{248+jj//2}")
            k(f"v_lshlrev_b32 v{SZ+4+jj}, 16, v{250+jj//2}")
        else:
            k(f"v_and_b32 v{SZ+jj}, 0xffff0000, v{248+jj//2}")
            k(f"v_and_b32 v{SZ+4+jj}, 0xffff0000, v{250+jj//2}")
    for jj in range(4):
        k(f"v_mul_f32 v{SZ+4+jj}, v{SZ+4+jj}, v{SZ+jj}")
    for jj in range(4):
        k(f"v_mul_f32 v{SZ+jj}, s{T2}, v{SZ+jj}")
        k(f"v_mul_f32 v{SZ+4+jj}, s{T3}, v{SZ+4+jj}")

def events(k):
    if "xrst" in k.vm and "f1" not in k.gates and k.isdone("xrst"):
        k.flag(f"s{FL1}"); k.open("f1"); k.L = k.o.get("Lf1", 24)
    if "f1" in k.gates and "f1done" not in k.gates and k.isdone("flag"):
        k.open("f1done"); k.L = k.o.get("L", 12)
    if "hflag" in k.gates and "f2done" not in k.gates and k.isdone("flag"):
        k.open("f2done"); k.L = k.o.get("LV", 12)
    if "h1" not in k.gates and k.isdone("poll1"):
        k.poll_check("poll1", f"v{V_P1}", f"s{PF1}"); k.open("h1"); k.stamp("h1_seen")
    if "h2a" not in k.gates and k.isdone("poll2a"):
        k.poll_check("poll2a", f"v{V_P2}", f"s{PF1}"); k.open("h2a"); k.stamp("h2_seen")
    if "h2" not in k.gates and k.isdone("poll2"):
        k.poll_check("poll2", f"v{V_P2}", f"s{PF2}"); k.open("h2"); k.stamp("h2_seen" if k.role == "B" else "q_all")

def need(k, tag):
    while tag in [t for t, _, _ in k.stream[k.sp:]]:
        if k.issue_one(force=True): continue
        g = [g for g in k.stream[k.sp][2] if g not in k.gates][0]
        k.wait({"h1": "poll1", "h2": "poll2", "h2a": "poll2a"}[g])
        events(k)
        if k.o.get("gpump", 1): k.pump()
    k.wait(tag)
    events(k)

def dequant_pair(k, pr):
    st, p = pr//4, pr % 4
    if pr % 8 == 0 and f"sz{pr//8}" not in k.gates: sz_prep(k, pr//8)
    need(k, f"q{pr}")
    k.stamp(f"qp{pr}")
    k.pump()
    r0, r1 = qreg(2*pr), qreg(2*pr+1)
    for r in (r0, r1):
        for hh in range(2):
            q = r+2*hh
            k(f"v_pk_fma_f32 v[{q}:{q+1}], v[{q}:{q+1}], v[{SZ+2*hh}:{SZ+2*hh+1}], v[{SZ+4+2*hh}:{SZ+4+2*hh+1}]")
    for jj in range(4):
        k(f"v_cvt_pk_bf16_f32 v{WQ+(st*4+jj)*4+p}, v{r0+jj}, v{r1+jj}")
    k.open(f"qfree{2*pr}"); k.open(f"qfree{2*pr+1}")

def v_fetch(k, n):
    need(k, f"v{n}")
    k.stamp(f"vf{n}")
    if n >= 1 and f"vfree{n-1}" not in k.gates:
        k("s_waitcnt lgkmcnt(0)")
        k.open(f"vfree{n-1}")
    for jj in range(4):
        for h in range(2):
            k(f"ds_read_b64_tr_b16 {vreg(k, n, jj*4+2*h, 2)}, v{V_TR+jj} offset:{(n % RING)*4096 + h*512}")
    k.pump()

def accname(p, jj, own):
    return vr(OWN+jj*4, 4) if own else ar(224+(p % 2)*16+jj*4, 4)
def red_read(k, off):
    for p in range(3):
        for jj in range(4):
            k(f"ds_read_b128 {vr(RT+(p*4+jj)*4,4)}, v{V_RR+p} offset:{off+jj*1024}")

def vpf_item(k, st, q):
    def f(tag):
        if q == 0:
            k(f"s_mul_i32 s{VB+1}, s{S_HALF}, {(rowoff(st+14-k.NS//2) - rowoff(st))*7168}")
            k(f"s_add_u32 s{VB+1}, s{VB+1}, s{PFB}")
        k(f"s_add_u32 s{L0}, s{VB+1}, {hex((rowoff(st) + 16*q)*7168)}")
        k.vmem(f"buffer_load_dwordx4 {vr(STG+4*q,4)}, v{V_P1}, {srdr(SRD_V)}, s{L0} offen", tag)
    k.add(f"pf{st}", f)

def h_stream(k, o):
    for p in range(8):
        for j in range(k.NS):
            if k.role == "A" and p == 3 and j == o.get("p2atA", 1):
                k.add("poll2", k.poll_item(f"v{V_P2}", f"s{PF2}"))
            if p == 7 and j == o.get("tcat", 4):
                for jj in range(4):
                    k.add("pld", (lambda jj: lambda t: k.vmem(pld_ins(jj), t))(jj))
            h_item(k, p, j)

def tail_stream(k, nv1, o, role):
    for p in range(8):
        for st in range(8): xr_item(k, p, st)
    vpre, vmid = o.get("vpre"+role, 4), o.get("vmid"+role, 10)
    p2back = o.get("p2back"+role, 8)
    rest = [(n, q) for n in range(nv1, k.NS) for q in range(4)]
    for i, (n, q) in enumerate(rest):
        if i == len(rest) - p2back:
            k.add("poll2", k.poll_item(f"v{V_P2}", f"s{PF2}"), "hflag")
        v_item(k, n, q, "hstored" if i == vpre else None, "hflag" if i == vmid else None)
    if p2back == 0: k.add("poll2", k.poll_item(f"v{V_P2}", f"s{PF2}"), "hflag")
    h_stream(k, o)

def q_stream(k, lo, hi, o, role):
    p1pos = o.get("p1pos"+role, 63)
    for n in range(lo, hi):
        if n == p1pos: k.add("poll1", k.poll_item(f"v{V_P1}", f"s{PF1}"), "setup")
        fl = o.get("qfl", "") if (role == "A" or n >= 32) else ""
        q_item(k, n, fl, "xstored" if (role == "A" and n == o.get("qpreA", 99)) else None)

def adds(d, s_, n=16): return [f"v_add_f32 v{d+q}, v{d+q}, v{s_+q}" for q in range(n)]
def rreads(off): return [f"ds_read_b128 {vr(RT+(p*4+jj)*4,4)}, v{V_RR+p} offset:{off+jj*1024}" for p in range(3) for jj in range(4)]
def hpack(dst, src):
    return [f"v_cvt_pk_bf16_f32 v{dst+f*4+rr*2+hh}, v{src+(2*hh)*4+2*f+rr}, v{src+(2*hh+1)*4+2*f+rr}" for f in range(2) for rr in range(2) for hh in range(2)]

def p2_main(k, nv1, o):
    k.stamp("q_all")
    for p in range(8):
        own = (p % 4 == 3)
        for st in range(8):
            need(k, f"x{p}_{st}")
            if st == 0: k.stamp(f"p2_{p//2}{'ab'[p % 2]}")
            if p % 4 != 0 and st == 2:
                k.fill(f"ds_write_b128 v{V_RW}, {accname(p-1, jj, False)} offset:{P2R+((p-1) % 4)*4096+jj*1024}" for jj in range(4))
            if p == 7 and st == 3:
                k.fill(["s_waitcnt lgkmcnt(0)", "s_barrier"] + rreads(P2R) + ["s_waitcnt lgkmcnt(4)"] + adds(RT, RT+16) + ["s_waitcnt lgkmcnt(0)"] + adds(RT, RT+32))
            if p == 3 and st == 6:
                k.fill(["s_waitcnt lgkmcnt(0)", "s_barrier"] + rreads(P2R) + ["s_waitcnt lgkmcnt(4)"] + adds(RT, RT+16) + ["s_waitcnt lgkmcnt(0)", "s_barrier"] + adds(RT, RT+32))
            if (p, st) == tuple(o.get("hpat", (4, 2))):
                k.fill(adds(RT, OWN) + hpack(PK+8, RT))
            if p == 5 and st == 1: k.drain()
            if (p, st) == tuple(o.get("hs0at", (5, 1))):
                k.drain()
                k.vmem(f"buffer_store_dwordx4 v[{PK+8}:{PK+11}], v{V_L16}, {srdr(SRD_WS)}, s{HST} offen sc1", "hst0")
                k.vmem(f"buffer_store_dwordx4 v[{PK+12}:{PK+15}], v{V_L16}, {srdr(SRD_WS)}, s{HST} offen offset:1024 sc1", "hst0")
                k(f"s_add_u32 s{HST}, s{HST}, {4*112*1024}")
                k.L += 2
            if (p, st) == tuple(o.get("f2at", (6, 6))):
                k.wait("hst0")
                k.flag(f"s{FL1}")
                k.stamp("v1_done")
                k.L -= 1
            for jj in range(4):
                acc = accname(p, jj, own)
                k(f"v_mfma_f32_16x16x32_bf16 {acc}, {vr(WQ+(st*4+jj)*4,4)}, {ar(((p*8+st) % XRN)*4,4)}, {'0' if st == 0 else acc}")
                if jj == 0: k.pump()
                if p == 7: k.drain(1 if st == 2 else 3)
                elif jj: k.drain(o.get('fn2', 3) if p in (3, 4) else 2)
            k.open(f"xfree{p*8+st}")
        if p == 6: k.drain()
    k.drain()
    k.stamp("p2_mfma")
    k("s_nop 4")
    pkadd(k, OWN, RT)
    for x in hpack(PK, OWN): k(x)
    k.vmem(f"buffer_store_dwordx4 v[{PK}:{PK+3}], v{V_L16}, {srdr(SRD_WS)}, s{HST} offen sc1", "hst")
    k.vmem(f"buffer_store_dwordx4 v[{PK+4}:{PK+7}], v{V_L16}, {srdr(SRD_WS)}, s{HST} offen offset:1024 sc1", "hst")
    k.open("hstored")
    k.L = o.get("L", 12) + 4
    k.pump()
    p3_setup(k)
    k.wait("hst")
    k.flag(f"s{FL2}")
    k.stamp("h_flag")
    k.open("hflag")
    k.L = o.get("Lf2", 20)
    k.pump()
    for n in range(nv1, k.NS): v_fetch(k, n)

def p3_main(k, o):
    FN = o.get("fn", 2)
    L3, LH = o.get("L3", 12), min(o.get("L3hi"+k.role, 12), k.HRN-5)
    hiat = o.get("hiat", 2)
    def tagcheck():
        out = []
        for jj in range(4):
            r = PLD+jj*4
            out += [f"v_perm_b32 v{PK}, v{r+1}, v{r}, v{TGV+5}", f"v_perm_b32 v{PK+1}, v{r+3}, v{r+2}, v{TGV+6}",
                    f"v_or_b32 v{PK}, v{PK}, v{PK+1}", f"v_xor_b32 v{PK+2+jj}, s{TAGB}, v{PK}"]
        return out + [f"v_or3_b32 v{PK}, v{PK+2}, v{PK+3}, v{PK+4}", f"v_or_b32 v{PK}, v{PK}, v{PK+5}", f"v_cmp_ne_u32 vcc, 0, v{PK}"]
    k.L = o.get("L3", 12)
    k("s_waitcnt lgkmcnt(0)")
    k.stamp("v_done")
    for p in range(8):
        own = (p % 4 == 3)
        off = 0 if p < 4 else P2R
        for j in range(k.NS):
            n = p*k.NS+j
            need(k, f"h{p}_{j}")
            if j == 2 and p % 4 != 0:
                for jj in range(4):
                    k.fill([f"ds_write_b128 v{V_RW}, {accname(p-1, jj, False)} offset:{off+((p-1) % 4)*4096+jj*1024}"] + [""]*(FN-1))
            if own and j == o.get('barat'+k.role, 4 if k.NS >= 14 else 3):
                k.fill(["s_waitcnt lgkmcnt(0)", "s_barrier"] + rreads(off) + ["s_waitcnt lgkmcnt(4)"] + adds(RT, RT+16) + ["s_waitcnt lgkmcnt(0)"] + adds(RT, RT+32))
            if p == 7 and j == o.get("tcat", 4):
                assert k.isdone("pld")
                k.fill(tagcheck())
            if p == 7 and j == max(o.get("tcat", 4), o.get('barat'+k.role, 4 if k.NS >= 14 else 3)): k.fill(adds(PLD, RT))
            if p == hiat and j == 0: k.L = LH
            if p == 4 and j == 2:
                k.drain()
                k.fill(adds(RT, OWN) + [f"v_bfi_b32 v{RT+r}, v{TGV+4}, v{TGV+(r % 4)}, v{RT+r}" for r in range(16)])
            for jj in range(4):
                acc = accname(p, jj, own)
                k(f"v_mfma_f32_16x16x32_bf16 {acc}, {vreg(k, j, jj*4, 4)}, {vr(WQ+4*(n % k.HRN),4)}, {'0' if j == 0 else acc}")
                if jj == 0: k.pump(o.get("pumpn", 2) if k.L > L3 else 99)
                else: k.drain(o.get("fn7", 3) if p == 7 else FN)
            if p == 4 and j == 7:
                k.drain()
                for jj in range(4):
                    k.vmem(f"buffer_store_dwordx4 {vr(RT+jj*4,4)}, v{V_L16}, {srdr(SRD_WS)}, s{PA} offen offset:{jj*1024} sc1", "pst")
                k.L = LH + 4
                k.stamp("part_st")
            if "pst" in k.vm and k.isdone("pst"): k.L = o.get("L3", 12)
            if j == 0: k.stamp(f"pos{p}")
    k.drain()
    L = k.lab("RETRY"); E = k.lab("RETRYX")
    k(f"s_mov_b32 s{S_CNT}, 0")
    k("s_nop 2")
    k(f"s_cbranch_vccz {E}")
    k.a.label(L)
    for jj in range(4): k(pld_ins(jj))
    k(f"s_add_u32 s{S_CNT}, s{S_CNT}, 1")
    k("s_waitcnt vmcnt(0)")
    for x in tagcheck(): k(x)
    pkadd(k, PLD, RT)
    k(f"s_cmp_gt_u32 s{S_CNT}, 0x40000")
    k(f"s_cbranch_scc1 {E}")
    k(f"s_cbranch_vccnz {L}")
    k.a.label(E)
    k.stamp("p3_mfma")
    k("s_nop 1")
    pkadd(k, OWN, PLD)
    for q in range(8):
        k(f"v_cvt_pk_bf16_f32 v{PK+q}, v{OWN+2*q}, v{OWN+2*q+1}")
    k("s_nop 1")
    for pr in range(2):
        k(f"v_permlane16_swap_b32 v{PK+4*pr}, v{PK+4*pr+2}")
        k(f"v_permlane16_swap_b32 v{PK+4*pr+1}, v{PK+4*pr+3}")
    yfl = o.get("yfl", "")
    for pr in range(2):
        k(f"buffer_store_dwordx4 v[{PK+4*pr}:{PK+4*pr+3}], v5, {srdr(SRD_OUT)}, s{YB} offen offset:{64*pr} {yfl}")
    assert k.sp == len(k.stream)

def line_loop(k, srd_, rowbytes, s_off, count, label, lpr=8, n=8):
    sh = {8: 3, 16: 4}[lpr]
    k(f"v_lshrrev_b32 v5, {sh}, v1")
    k(f"v_mul_u32_u24 v5, {rowbytes}, v5")
    k(f"v_and_b32 v6, {lpr-1}, v1")
    k("v_lshl_add_u32 v5, v6, 4, v5")
    k(f"s_mov_b32 s{S_CNT}, {count}")
    k.a.label(label)
    for t in range(n):
        k(f"buffer_load_dwordx4 {vr(16+t*4,4)}, v5, {srdr(srd_)}, s{s_off} offen")
        k(f"s_add_u32 s{s_off}, s{s_off}, {(64//lpr)*rowbytes}")
    k(f"s_add_u32 s{s_off}, s{s_off}, s{T3}")
    k(f"s_sub_u32 s{S_CNT}, s{S_CNT}, 1")
    k(f"s_cmp_lg_u32 s{S_CNT}, 0")
    k(f"s_cbranch_scc1 {label}")

def help_q(k, rows):
    k(f"s_mul_i32 s{T0}, s{S_XCD}, 7")
    k(f"s_sub_u32 s{T1}, 1, s{T0}")
    k(f"s_and_b32 s{T1}, s{T1}, 3")
    k(f"s_lshl_b32 s{T2}, s{S_HALF}, 2")
    k(f"s_add_u32 s{T2}, s{T2}, s{T1}")
    k(f"s_cmp_lt_u32 s{T2}, 7")
    k(f"s_cselect_b32 s{T1}, s{T2}, s{T1}")
    k(f"s_add_u32 s{T0}, s{T0}, s{T1}")
    k(f"s_lshl_b32 s{T0}, s{T0}, 8")
    k(f"s_add_u32 s{T0}, s{T0}, {(128-rows)*14336}")
    k(f"s_mul_i32 s{T1}, s{S_WAVE}, {256*14336}")
    k(f"s_add_u32 s{T0}, s{T0}, s{T1}")
    k(f"s_mov_b32 s{T3}, {(128-rows)*14336}")
    line_loop(k, SRD_QW, 14336, T0, 2, "HQ", 16, rows//4)

def help_v(k, blk0, nblk, label, blk0o, nblko, blk2, nblk2):
    k(f"s_lshr_b32 s{T0}, s{S_XCD}, 1")
    k(f"s_mul_i32 s{T0}, s{T0}, 14")
    k(f"s_sub_u32 s{T1}, 3, s{T0}")
    k(f"s_and_b32 s{T1}, s{T1}, 7")
    k(f"s_lshl_b32 s{T2}, s{S_HALF}, 3")
    k(f"s_add_u32 s{T2}, s{T2}, s{T1}")
    k(f"s_cmp_lt_u32 s{T2}, 14")
    k(f"s_cselect_b32 s{T1}, s{T2}, s{T1}")
    k(f"s_add_u32 s{T0}, s{T0}, s{T1}")
    k(f"s_lshl_b32 s{T0}, s{T0}, 7")
    NA = k.o.get("NA", 16)
    k(f"s_xor_b32 s{L0}, s{T0}, 128")
    k(f"s_mul_i32 s{T1}, s{S_WAVE}, {28-NA}")
    k(f"s_mul_i32 s{T2}, s{S_WAVE}, {NA}")
    k(f"s_add_u32 s{T2}, s{T2}, {112-4*NA}")
    k(f"s_bitcmp1_b32 s{S_XCD}, 0")
    k(f"s_cselect_b32 s{T1}, s{T2}, s{T1}")
    k(f"s_mul_i32 s{T1}, s{T1}, {32*7168}")
    k(f"s_add_u32 s{T0}, s{T0}, s{T1}")
    k(f"s_bitcmp1_b32 s{S_XCD}, 0")
    k(f"s_cselect_b32 s{T1}, {blk0o}, {blk0}")
    k(f"s_cselect_b32 s{T2}, {nblko}, {nblk}")
    k(f"s_cselect_b32 s{T3}, {hex((-2*64*7168 if k.o.get('hback', 1) else 0) & 0xffffffff)}, 0")
    k(f"s_mul_i32 s{T1}, s{T1}, {64*7168}")
    k(f"s_add_u32 s{T0}, s{T0}, s{T1}")
    line_loop(k, SRD_V, 7168, T0, f"s{T2}", label)
    if k.o.get('deleg', 1) and nblk2:
        k(f"s_bitcmp1_b32 s{S_XCD}, 0")
        k(f"s_cbranch_scc0 {label}X")
        k(f"s_mul_i32 s{T1}, s{S_WAVE}, {(28-NA)*32*7168}")
        k(f"s_add_u32 s{L0}, s{L0}, s{T1}")
        k(f"s_add_u32 s{L0}, s{L0}, {(4*NA*32 + blk2*64)*7168}")
        k(f"s_mov_b32 s{T3}, 0")
        line_loop(k, SRD_V, 7168, L0, nblk2, label+"B")
        k.a.label(label+"X")

def mid_main(k, nv1, vat):
    def vpart():
        for n in range(nv1):
            if n == nv1//2: k.L = k.o.get("L", 12)
            v_fetch(k, n)
        if nv1:
            k("s_waitcnt lgkmcnt(0)")
            k.open(f"vfree{nv1-1}")
    for pr in range(32):
        if pr == vat//2: vpart()
        if pr == 16 and k.role == "B": k.L = k.o.get("L", 12)
        dequant_pair(k, pr)
        if pr == 15: k.stamp("q_half")
    if vat == 64: vpart()

def role_a(a, o):
    k = K(a, o); k.role = "A"; k.NS = o.get("NA", 16); k.HRN = 32 - 4*max(0, k.NS-14); NS = k.NS
    a.label("ROLE_A")
    k(f"s_lshr_b32 s{T0}, s{S_I2}, 1")
    k(f"s_and_b32 s{T1}, s{T0}, 1")
    k(f"s_lshl_b32 s{S_N64}, s{S_XCD}, 1")
    k(f"s_add_u32 s{S_N64}, s{S_N64}, s{T1}")
    k(f"s_lshr_b32 s{T0}, s{T0}, 1")
    k(f"s_lshl_b32 s{S_M32}, s{S_HALF}, 2")
    k(f"s_add_u32 s{S_M32}, s{S_M32}, s{T0}")
    k(f"s_lshl_b32 s{T1}, s{T1}, 1")
    k(f"s_add_u32 s{RHO}, s{S_M32}, s{T1}")
    k(f"s_lshl_b32 s{T0}, s{S_N64}, 7")
    k(f"s_lshl_b32 s{T1}, s{S_WAVE}, 19")
    k(f"s_add_u32 s{T0}, s{T0}, s{T1}")
    dma_voff(k, V_U0, V_U1, 2048, T0)
    k(f"v_lshrrev_b32 v{V_X0}, 3, v1")
    k(f"v_lshlrev_b32 v{V_X0}, 11, v{V_X0}")
    k(f"v_xor_b32 v{V_T2}, v{V_T2}, v2")
    k(f"v_lshl_add_u32 v{V_X0}, v{V_T2}, 4, v{V_X0}")
    k(f"s_lshl_b32 s{T0}, s{S_M32}, 16")
    k(f"s_lshl_b32 s{T1}, s{S_WAVE}, 9")
    k(f"s_add_u32 s{T0}, s{T0}, s{T1}")
    k(f"v_add_u32 v{V_X0}, s{T0}, v{V_X0}")
    k(f"v_xor_b32 v{V_X1}, 64, v{V_X0}")
    k("s_waitcnt lgkmcnt(0)")
    srd(a, SRD_U, 16, U_BYTES)
    srd(a, SRD_X, 8, X_BYTES)
    k(f"s_lshl_b32 s{XST_}, s{S_HALF}, 16")
    def p1_item(jp, i):
        def f(tag):
            if i in (0, 4, 8):
                k(f"s_add_u32 s{L1}, s{RHO}, {jp}")
                k(f"s_and_b32 s{L1}, s{L1}, 3")
            if i == 0: k(f"s_lshl_b32 s{L0}, s{L1}, 7")
            if i in (4, 8):
                k(f"s_lshl_b32 s{L0}, s{L1}, 17")
                if i == 8: k(f"s_add_u32 s{L0}, s{L0}, 0x10000")
                k(f"s_xor_b32 s{L0}, s{L0}, s{XST_}")
            k(f"s_add_u32 m0, s{S_AREA}, {P1R + (jp % 2)*4096 + i*1024 if i < 4 else jp*8192 + (i-4)*1024}")
            if i not in (0, 4, 8): k(f"s_add_u32 s{L0}, s{L0}, 0x4000")
            else: k("s_nop 0")
            if i < 4: k.vmem(f"buffer_load_dwordx4 v{V_X0+(i&1)}, {srdr(SRD_X)}, s{L0} offen lds", tag)
            else: k.vmem(f"buffer_load_dwordx4 v{V_U0+(i&1)}, {srdr(SRD_U)}, s{L0} offen lds", tag)
        k.add(f"p1x{jp//2}" if i < 4 else f"p1u{jp}_{0 if i < 8 else 1}", f, "p1free" if (jp == 2 and i == 0) else None)
    X = lambda jp: [(jp, i) for i in range(4)]
    U = lambda jp, u: [(jp, i) for i in range(4+4*u, 8+4*u)]
    for jp, i in X(0) + X(1) + U(0, 0): p1_item(jp, i)
    for jp, i in U(0, 1) + X(2) + X(3) + U(1, 0) + U(1, 1) + U(2, 0) + U(2, 1) + U(3, 0) + U(3, 1): p1_item(jp, i)
    k.nv1 = 0
    npf = o.get("npfA", 14-NS//2)
    pfat = NS - o.get("pfbackA", 0)
    pford = list(range(npf)) if o.get("pffwd", 0) else list(range(13-NS//2, 13-NS//2-npf, -1))
    def pfs():
        for st in pford:
            for q in range(4): vpf_item(k, st, q)
    for n in range(NS):
        if n == pfat: pfs()
        for q in range(4): v_item(k, n, q, "setup")
    if pfat == NS: pfs()
    k.add("poll2a", k.poll_item(f"v{V_P2}", f"s{PF1}"))
    h_stream(k, o)
    k.pump()
    epoch_load(k)
    srd(a, SRD_V, 18, V_BYTES); srd(a, SRD_OUT, 20, OUT_BYTES); srd(a, SRD_WS, 24, WS_BYTES)
    tr_addrs(k)
    k(f"v_lshrrev_b32 v{V_XR0}, 1, v3")
    k(f"v_xor_b32 v{V_XR0}, v{V_XR0}, v2")
    k(f"v_lshlrev_b32 v{V_XR0}, 4, v{V_XR0}")
    k(f"v_lshl_add_u32 v{V_XR0}, v3, 7, v{V_XR0}")
    k(f"v_add_u32 v{V_XR0}, s{S_AREA}, v{V_XR0}")
    k(f"s_lshl_b32 s{T0}, s{S_HALF}, 6")
    k(f"v_xor_b32 v{V_XR0}, s{T0}, v{V_XR0}")
    k(f"v_xor_b32 v{V_XR1}, 64, v{V_XR0}")
    k(f"v_add_u32 v{V_RW}, s{S_AREA}, v{V_L16}")
    k(f"s_lshl_b32 s{T0}, s{S_WAVE}, 11")
    k(f"s_add_u32 s{T0}, s{T0}, {P1R}")
    k(f"v_add_u32 v{V_RR}, s{T0}, v{V_L16}")
    k(f"v_add_u32 v{V_RR+1}, {hex(2*AREA_SZ)}, v{V_RR}")
    k(f"s_and_b32 s{T1}, s{S_WAVE}, 1")
    k(f"s_lshl_b32 s{T0}, s{S_M32}, 1")
    k(f"s_add_u32 s{T0}, s{T0}, s{T1}")
    k(f"s_lshr_b32 s{T1}, s{S_WAVE}, 1")
    k(f"s_lshl_b32 s{T2}, s{S_N64}, 1")
    k(f"s_add_u32 s{T2}, s{T2}, s{T1}")
    k(f"s_lshl_b32 s{XSO}, s{T0}, 5")
    k(f"s_add_u32 s{XSO}, s{XSO}, s{T2}")
    k(f"s_lshl_b32 s{XSO}, s{XSO}, 10")
    k(f"s_lshl_b32 s{T1}, s{S_HALF}, 4")
    k(f"s_add_u32 s{T1}, s{T1}, s{S_N64}")
    k(f"s_lshl_b32 s{T1}, s{T1}, 2")
    k(f"s_and_b32 s{T0}, s{S_M32}, 3")
    k(f"s_add_u32 s{T1}, s{T1}, s{T0}")
    k(f"s_lshl_b32 s{T1}, s{T1}, 7")
    k(f"s_add_u32 s{FL1}, s{T1}, {hex(F1_OFF)}")
    v_setup(k)
    k.stamp("issue0")
    k.L = o.get("Lp1", 18)
    k.pump()
    A1 = 224
    def acc1(jj, mi): return ar(A1 + (((jj >> 1)*2 + mi)*2 + (jj & 1))*4, 4)
    def xreads(jp0):
        for jp in (jp0, jp0+1):
            for u in range(2):
                for mi in range(2):
                    k(f"ds_read_b128 {ar(((2*jp+u)*2+mi)*4,4)}, v{V_XR0+u} offset:{P1R+(jp % 2)*4096+mi*2048}")
    def ureads(j):
        for jj in range(4):
            for h in range(2):
                k(f"ds_read_b64_tr_b16 {ar(64+(j % 2)*16+jj*4+2*h,2)}, v{V_TR+jj} offset:{j*4096+h*512}")
    k.wait("p1x0")
    xreads(0)
    tag_calc(k)
    k.open("p1free")
    k.pump()
    k.wait("p1u0_0")
    k.stamp("p1s0")
    ureads(0)
    for j in range(8):
        if j == 2: xreads(2)
        if j < 7:
            k.wait(f"p1u{(j+1)//2}_{(j+1) % 2}")
            if j == 6:
                k.stamp("p1_loaded"); k.L = o.get("L", 12)
            k.stamp(f"p1s{j+1}")
            k("s_waitcnt lgkmcnt(0)")
            ureads(j+1)
        else:
            k("s_waitcnt lgkmcnt(0)")
        for jj in range(4):
            for mi in range(2):
                k(f"v_mfma_f32_16x16x32_bf16 {acc1(jj, mi)}, {ar(64+(j % 2)*16+jj*4,4)}, {ar((j*2+mi)*4,4)}, {'0' if j == 0 else acc1(jj, mi)}")
            k.pump(2)
    k(f"s_mov_b32 s{T0}, 0x58000000")
    k(f"v_mov_b32 v{V_X1}, s{T0}")
    k("s_nop 3")
    for q in (0, 2, 1, 3, 4, 6, 5, 7):
        k(f"ds_write_b128 v{V_RW}, {ar(A1+q*4,4)} offset:{P1R+q*1024}")
    k("s_waitcnt lgkmcnt(0)")
    k("s_barrier")
    k.stamp("p1_bar")
    R = 16
    for w in range(4):
        for c in range(2):
            k(f"ds_read_b128 {vr(R+(w*2+c)*4,4)}, v{V_RR+w//2} offset:{(w % 2)*AREA_SZ+c*1024}")
    k("s_waitcnt lgkmcnt(4)")
    pkadd(k, R, R+8, 4)
    k("s_waitcnt lgkmcnt(0)")
    pkadd(k, R+16, R+24, 4)
    pkadd(k, R, R+16, 4)
    for q in range(4):
        d = R+2*q
        k(f"v_pk_mul_f32 v[{d}:{d+1}], v[{d}:{d+1}], v[{V_X1}:{V_X1+1}] op_sel_hi:[1,0]")
    for q in range(4):
        k(f"v_cvt_pk_bf16_f32 v{R+32+q}, v{R+2*q}, v{R+2*q+1}")
    k.vmem(f"buffer_store_dwordx4 v[{R+32}:{R+35}], v{V_L16}, {srdr(SRD_WS)}, s{XSO} offen sc1", "xrst")
    k.stamp("p1_done")
    k(f"s_cmp_lt_u32 s{S_I2}, 14")
    k("s_cbranch_scc1 WORKER_A")
    k("s_waitcnt vmcnt(0)")
    sv = list(k.vm)
    k.flag(f"s{FL1}")
    if o.get("n14", 4): help_v(k, o.get("b14", 3), o.get("n14", 3), "HV14", o.get("b14o", 7), o.get("n14o", 4), o.get("b14d", 3), o.get("n14d", 3))
    k("s_waitcnt vmcnt(0)")
    k("s_branch FINISH")
    k.vm = sv
    a.label("WORKER_A")
    k.open("setup")
    k.L = o.get("LA", 12)
    k.pump(o.get("nxA", 0))
    red_addrs(k, 0)
    p3_setup(k)
    k.wait("xrst")
    k.flag(f"s{FL1}"); k.open("f1"); k.open("f1done")
    k.stamp("h_flag")
    k.pump()
    def pfw():
        for st in pford:
            need(k, f"pf{st}"); k.pump()
    for n in range(NS):
        if n == pfat: pfw()
        v_fetch(k, n)
        if n == 6: k.stamp("q_half")
    k.stamp("v1_done")
    if pfat == NS: pfw()
    p3_main(k, o)
    k(f"s_or_b32 s{T0}, s{S_XCD}, s{S_I2}")
    k(f"s_or_b32 s{T0}, s{T0}, s{S_WAVE}")
    k(f"s_cmp_lg_u32 s{T0}, 0")
    k("s_cbranch_scc1 FINISH")
    k(f"s_add_u32 s{T0}, s{S_EP}, 1")
    k(f"v_mov_b32 v{V_T}, s{T0}")
    k(f"s_lshl_b32 s{T0}, s{S_HALF}, 7")
    k(f"s_add_u32 s{T0}, s{T0}, {hex(EP_OFF)}")
    k("s_mov_b64 exec, 1")
    k(f"buffer_store_dword v{V_T}, v0, {srdr(SRD_WS)}, s{T0} offen sc1")
    k("s_mov_b64 exec, -1")
    k("s_branch FINISH")

def role_b(a, o):
    k = K(a, o); k.role = "B"; k.NS = 28 - o.get("NA", 16); k.HRN = 32
    k.L = o.get("LB0", 12)
    a.label("ROLE_B")
    k(f"s_cmp_lt_u32 s{S_I2}, 14")
    k("s_cbranch_scc1 WORKER_B")
    k("s_waitcnt lgkmcnt(0)")
    srd(a, SRD_V, 18, V_BYTES)
    srd(a, SRD_QW, 10, QW_BYTES)
    if o.get("hq", 32): help_q(k, o.get("hq", 32))
    if o.get("n15", 3): help_v(k, o.get("b15", 0), o.get("n15", 3), "HV15", o.get("b15o", 3), o.get("n15o", 4), o.get("b15d", 0), o.get("n15d", 3))
    k("s_waitcnt vmcnt(0)")
    k("s_branch FINISH")
    a.label("WORKER_B")
    role_ids(k)
    q_setup(k, False)
    k("s_waitcnt lgkmcnt(0)")
    srd(a, SRD_QW, 10, QW_BYTES); srd(a, SRD_SC, 12, SC_BYTES); srd(a, SRD_Z, 14, SC_BYTES)
    nv1, vat = o.get("nv1B", 0), o.get("vatB", 32)
    k.nv1 = nv1
    sz_items(k)
    q_stream(k, 0, vat, o, "B")
    for n in range(nv1):
        for q in range(4): v_item(k, n, q, "setup")
    q_stream(k, vat, 64, o, "B")
    tail_stream(k, nv1, o, "B")
    k.pump()
    epoch_load(k)
    srd(a, SRD_V, 18, V_BYTES); srd(a, SRD_OUT, 20, OUT_BYTES); srd(a, SRD_WS, 24, WS_BYTES)
    k("s_setreg_imm32_b32 hwreg(HW_REG_MODE, 4, 2), 3")
    tr_addrs(k)
    v_setup(k)
    p2_setup(k)
    red_addrs(k, 0)
    k.open("setup")
    k.L = o.get("LB1", 16)
    k.pump()
    k.wait("sz")
    tag_calc(k)
    mid_main(k, nv1, vat)
    p2_main(k, nv1, o)
    p3_main(k, o)

def build(opt):
    a = Asm(); K.uid = 0
    a.raw(HEADER.rstrip())
    a.raw(f"; @launch grid=(256,1,1) block=(256,1,1) lds={LDS_BYTES}")
    a.raw('.amdgcn_target "amdgcn-amd-amdhsa--gfx950"')
    kernel_begin(a, KNAME)
    a("s_cmp_ge_u32 s2, 256")
    a("s_cbranch_scc1 DONE")
    if opt.get("stamp"): a(f"{TIMER(opt)} s[92:93]")
    a("s_load_dwordx16 s[8:23], s[0:1], 0")
    a("s_load_dwordx2 s[24:25], s[0:1], 64")
    a("v_lshrrev_b32 v4, 6, v0")
    a("v_and_b32 v1, 63, v0")
    a(f"v_readfirstlane_b32 s{S_WAVE}, v4")
    a("v_lshrrev_b32 v2, 4, v1")
    a("v_and_b32 v3, 15, v1")
    a(f"v_lshlrev_b32 v{V_L16}, 4, v1")
    a("v_mov_b32 v0, 0")
    a(f"s_and_b32 s{S_XCD}, s2, 7")
    a(f"s_lshr_b32 s{T0}, s2, 3")
    a(f"s_and_b32 s{S_HALF}, s{T0}, 1")
    a(f"s_lshr_b32 s{S_I2}, s{T0}, 1")
    a(f"s_mul_i32 s{S_AREA}, s{S_WAVE}, {AREA_SZ}")
    a(f"s_bitcmp1_b32 s{S_I2}, 0")
    a("s_cbranch_scc1 ROLE_B")
    role_a(a, opt)
    role_b(a, opt)
    a.label("FINISH")
    if opt.get("stamp"):
        a("s_waitcnt vmcnt(0)")
        a(f"{TIMER(opt)} s[72:73]")
        a("s_load_dwordx2 s[70:71], s[0:1], 64")
        a("s_waitcnt lgkmcnt(0)")
        srd(a, 76, 70, 1 << 20, STAMP_OFF)
        a("s_lshl_b32 s70, s2, 2")
        a(f"s_add_u32 s70, s70, s{S_WAVE}")
        a("s_lshl_b32 s70, s70, 7")
        regs = [92] + STAMP_REGS[:len(STAMP_NAMES)] + [72]
        a("s_mov_b64 exec, 1")
        for i, r in enumerate(regs):
            a(f"v_mov_b32 v16, s{r}")
            a(f"v_mov_b32 v17, s{r+1}")
            a(f"buffer_store_dwordx2 v[16:17], v0, s[76:79], s70 offen offset:{i*8}")
            a("s_nop 1")
    a.label("DONE")
    a("s_endpgm")
    kernel_desc(a, KNAME, 512, 102, 256)
    return a.text(), ["start"] + stamp_names(opt) + ["end"]

if __name__ == "__main__":
    opt = eval(sys.argv[2]) if len(sys.argv) > 2 else {}
    txt, names = build(opt)
    open(sys.argv[1], "w").write(txt)
    print(len(txt))
```

```python
import sys
from asmlib import *

KNAME = "standalone__weight_only_int_quip__sampling_kernel"
XR_OFF   = 0
H_OFF    = 1 << 20
F1_OFF   = 3 << 20
F2_OFF   = F1_OFF + 16384
EP_OFF   = F1_OFF + 32768
F2A_D    = 32768
PFB = 78
PART_OFF = 4 << 20
WS_BYTES = 8 << 20
STAMP_OFF = 128 << 20
OOB = 0x7f000000
AREA_SZ = 40960
P2R = 20480
P1R = 32768
LDS_BYTES = 163840
RING = 5

S_WAVE, S_EP = 4, 5
SRD_X, SRD_QW, SRD_SC, SRD_Z, SRD_U, SRD_V, SRD_OUT, SRD_WS = 28, 32, 36, 40, 44, 48, 52, 56
S_XCD, S_HALF, S_I2, S_M32, S_N64, S_M64, S_T2, S_KS, S_T, S_TAG = 60, 61, 62, 63, 64, 65, 66, 67, 68, 69
T0, T1, T2, T3 = 70, 71, 72, 73
S_AREA, S_CNT = 74, 75
L0, L1 = 76, 77
QB, GI = 78, 82
FL1, XST_, XRB, RHO = 86, 87, 88, 89
VB = 90
HB = 36
MOTH, MOWN, L2, TAGB, WT = 40, 41, 42, 43, 3
PF1, PF2, FL2, HST = 6, 7, 26, 27
PA, PB, YB, XSO = 94, 95, 96, 97
XO = 98

V_L16, V_X0, V_X1, V_T2, V_Q, V_T, V_VD0, V_VD1, V_TR = 4, 5, 6, 7, 8, 9, 10, 11, 12
WQ, STG, SZ, RAW, OWN = 16, 144, 240, 252, 240
QR = 20
V_U0, V_U1, V_XR0, V_XR1 = 224, 225, 226, 227
TGV = 224
XRN = 16
V_RW, V_RR = 232, 233
V_P1, V_P2, V_PR = 236, 237, 238
RT, PK, PLD = 144, 192, 208
STAMP_REGS = list(range(8, 26, 2)) + [28, 30, 44]
STAMP_NAMES = ["p1_loaded", "p1_done", "q_half", "v1_done", "h1_seen", "q_all", "p2_mfma", "h_flag", "h2_seen", "v_done", "part_st", "p3_mfma"]

def stamp_names(o):
    f = o.get("fine")
    if f == "p3": return ["h_flag", "h2_seen", "v_done"] + [f"pos{p}" for p in range(8)] + ["p3_mfma"]
    if f == "v": return ["p2_mfma", "h_flag"] + [f"vf{n}" for n in (0, 2, 4, 6, 7, 8, 10, 12)] + ["h2_seen", "v_done"]
    if f == "p1": return ["issue0"] + [f"p1s{j}" for j in range(8)] + ["p1_bar", "p1_done", "q_half"]
    if f == "p2": return ["h1_seen", "q_all"] + [f"p2_{p}{h}" for p in range(4) for h in "ab"] + ["p2_mfma", "h_flag"]
    if f == "q": return ["p1_done"] + [f"qp{n}" for n in (0, 3, 7, 11, 15, 19, 23, 27)] + ["v1_done", "h1_seen", "q_all"]
    return STAMP_NAMES
def TIMER(o): return "s_memtime" if o.get("cyc") else "s_memrealtime"
def srdr(b): return f"s[{b}:{b+3}]"
def vreg(k, j, off, n):
    if j < 10: return ar(64 + 16*j + off, n)
    if j < 14: return ar(16*(j-10) + off, n)
    return vr(WQ + 4*k.HRN + 16*(j-14) + off, n)
def step_base(k, d, ns):
    k(f"s_mul_i32 s{d}, s{S_KS}, {112-4*ns}")
    k(f"s_mul_i32 s{T1}, s{S_WAVE}, {ns}")
    k(f"s_add_u32 s{d}, s{d}, s{T1}")

class K:
    uid = 0
    def __init__(self, a, opt):
        self.a = a; self.o = opt
        self.vm = []; self.done = 0
        self.stream = []; self.sp = 0; self.gates = set()
        self.L = opt.get("L", 12)
    def __call__(self, s): self.a(s)
    def vmem(self, s, tag):
        self.a(s); self.vm.append(tag)
    def isdone(self, tag):
        return tag in self.vm and tag not in [t for t, _, _ in self.stream[self.sp:]] and self.done > max(i for i, t in enumerate(self.vm) if t == tag)
    def wait(self, tag):
        while tag in [t for t, _, _ in self.stream[self.sp:]]:
            assert self.issue_one(force=True), f"gate closed while waiting for {tag}: {self.stream[self.sp]}"
        idx = max(i for i, t in enumerate(self.vm) if t == tag)
        if idx < self.done: return
        n = len(self.vm) - 1 - idx
        self.a(f"s_waitcnt vmcnt({min(n, 63)})")
        self.done = idx + 1
    def add(self, tag, fn, *gates): self.stream.append((tag, fn, [g for g in gates if g]))
    def issue_one(self, force=False):
        if self.sp >= len(self.stream): return False
        tag, fn, gates = self.stream[self.sp]
        if any(g not in self.gates for g in gates): return False
        if not force and len(self.vm) - self.done >= self.L: return False
        self.sp += 1
        fn(tag)
        return True
    def pump(self, n=99):
        while n > 0 and self.issue_one(): n -= 1
    def open(self, g): self.gates.add(g)
    def fill(self, items): self.fq = getattr(self, "fq", []) + list(items)
    def drain(self, n=999):
        q = getattr(self, "fq", [])
        while q and n > 0:
            self.a(q.pop(0)); n -= 1
    def stamp(self, name):
        if not self.o.get("stamp"): return
        names = stamp_names(self.o)
        if name not in names: return
        r = STAMP_REGS[names.index(name)]
        self.a(f"{TIMER(self.o)} s[{r}:{r+1}]")
        self.a("s_waitcnt lgkmcnt(0)")
    def lab(self, p):
        K.uid += 1
        return f"{p}_{K.uid}"
    def poll_item(self, voff, soff):
        return lambda tag: self.vmem(f"buffer_load_dword v{V_PR}, {voff}, {srdr(SRD_WS)}, {soff} offen sc1", tag)
    def poll_check(self, tag, voff, soff):
        self.wait(tag)
        L = self.lab("POLL"); E = self.lab("POLLX")
        self(f"v_cmp_ne_u32 vcc, s{S_TAG}, v{V_PR}")
        self(f"s_mov_b32 s{S_CNT}, 0")
        self(f"s_cbranch_vccz {E}")
        self.a.label(L)
        self(f"s_sleep {self.o.get('nap', 8)}")
        self(f"buffer_load_dword v{V_PR}, {voff}, {srdr(SRD_WS)}, {soff} offen sc1")
        self(f"s_add_u32 s{S_CNT}, s{S_CNT}, 1")
        self("s_waitcnt vmcnt(0)")
        self(f"v_cmp_ne_u32 vcc, s{S_TAG}, v{V_PR}")
        self(f"s_cmp_gt_u32 s{S_CNT}, 0x40000")
        self(f"s_cbranch_scc1 {E}")
        self(f"s_cbranch_vccnz {L}")
        self.a.label(E)
    def flag(self, soff, who=0):
        self(f"s_cmp_eq_u32 s{S_WAVE}, {who}")
        self(f"s_cselect_b32 s{T0}, 0, {hex(OOB)}")
        self(f"v_mov_b32 v{V_T2}, s{S_TAG}")
        self(f"v_mov_b32 v{V_PR+1}, s{T0}")
        self("s_barrier")
        self("s_mov_b64 exec, 1")
        self.vmem(f"buffer_store_dword v{V_T2}, v{V_PR+1}, {srdr(SRD_WS)}, {soff} offen sc1", "flag")
        self("s_mov_b64 exec, -1")

def dma_voff(k, d0, d1, rowbytes, s_add):
    k(f"v_lshrrev_b32 v{d0}, 3, v1")
    k(f"v_and_b32 v{d1}, 2, v{d0}")
    k(f"v_mul_u32_u24 v{d0}, {rowbytes}, v{d0}")
    k(f"v_and_b32 v{V_T2}, 7, v1")
    k(f"v_xor_b32 v{d1}, v{d1}, v{V_T2}")
    k(f"v_lshl_add_u32 v{d0}, v{d1}, 4, v{d0}")
    k(f"v_add_u32 v{d0}, s{s_add}, v{d0}")
    k(f"v_xor_b32 v{d1}, 64, v{d0}")

def tr_addrs(k):
    k("v_lshrrev_b32 v12, 2, v3")
    k("v_lshrrev_b32 v13, 1, v12")
    k("v_and_b32 v14, 1, v2")
    k("v_lshl_add_u32 v13, v14, 1, v13")
    k("v_lshl_add_u32 v12, v2, 3, v12")
    k("v_lshlrev_b32 v12, 7, v12")
    k("v_lshl_add_u32 v12, v13, 5, v12")
    k("v_and_b32 v13, 3, v1")
    k("v_lshl_add_u32 v12, v13, 3, v12")
    k(f"v_add_u32 v12, s{S_AREA}, v12")
    k("v_xor_b32 v13, 32, v12")
    k("v_xor_b32 v14, 64, v12")
    k("v_xor_b32 v15, 96, v12")

def role_ids(k):
    k(f"s_lshl_b32 s{S_M64}, s{S_HALF}, 1")
    k(f"s_lshr_b32 s{T0}, s{S_I2}, 1")
    k(f"s_mul_i32 s{S_T2}, s{S_XCD}, 7")
    k(f"s_add_u32 s{S_T2}, s{S_T2}, s{T0}")

def q_setup(k, oob, order=(0, 1, 2, 3)):
    if oob:
        k(f"s_cmp_lt_u32 s{S_I2}, 14")
        k(f"s_cselect_b32 s{T2}, 0, {hex(OOB)}")
    k(f"v_mul_u32_u24 v{V_Q}, {4*14336}, v2")
    k(f"v_lshl_add_u32 v{V_Q}, v3, 4, v{V_Q}")
    k(f"s_lshl_b32 s{T0}, s{S_T2}, 8")
    if oob: k(f"s_add_u32 s{T0}, s{T0}, s{T2}")
    k(f"v_add_u32 v{V_Q}, s{T0}, v{V_Q}")
    k(f"v_mul_u32_u24 v{V_T}, 7168, v2")
    k(f"v_lshl_add_u32 v{V_T}, v3, 3, v{V_T}")
    k(f"s_mul_i32 s{T0}, s{S_WAVE}, {4*7168}")
    k(f"s_lshl_b32 s{T1}, s{S_T2}, 7")
    k(f"s_add_u32 s{T0}, s{T0}, s{T1}")
    if oob: k(f"s_add_u32 s{T0}, s{T0}, s{T2}")
    k(f"v_add_u32 v{V_T}, s{T0}, v{V_T}")
    k(f"s_lshl_b32 s{T1}, s{S_HALF}, 1")
    for j in range(4):
        k(f"s_xor_b32 s{GI+j}, s{T1}, {order[j]}")
        k(f"s_lshl_b32 s{T0}, s{S_WAVE}, 2")
        k(f"s_add_u32 s{T0}, s{T0}, s{GI+j}")
        k(f"s_mul_i32 s{QB+j}, s{T0}, {64*14336}")

def epoch_load(k):
    k(f"s_lshl_b32 s{T0}, s{S_HALF}, 7")
    k(f"s_add_u32 s{T0}, s{T0}, {hex(EP_OFF)}")
    k(f"s_load_dword s{S_EP}, s[24:25], s{T0}")

def tag_calc(k):
    k("s_waitcnt lgkmcnt(0)")
    k(f"s_mul_i32 s{S_TAG}, s{S_EP}, 0x9e3779b1")
    k(f"s_add_u32 s{S_TAG}, s{S_TAG}, 0x7f4a7c15")
    k(f"s_lshr_b32 s{T0}, s{S_TAG}, 15")
    k(f"s_xor_b32 s{S_TAG}, s{S_TAG}, s{T0}")
    k(f"s_mul_i32 s{S_TAG}, s{S_TAG}, 0x85ebca6b")

def red_addrs(k, add):
    k(f"s_add_u32 s{T0}, s{S_AREA}, {add}")
    k(f"v_add_u32 v{V_RW}, s{T0}, v{V_L16}")
    for p in range(3):
        k(f"s_sub_u32 s{T1}, s{S_WAVE}, {p+1}")
        k(f"s_and_b32 s{T1}, s{T1}, 3")
        k(f"s_mul_i32 s{T1}, s{T1}, {AREA_SZ}")
        k(f"s_add_u32 s{T1}, s{T1}, {add+p*4096}")
        k(f"v_add_u32 v{V_RR+p}, s{T1}, v{V_L16}")

def v_setup(k):
    k(f"s_and_b32 s{S_KS}, s{S_XCD}, 1")
    k(f"s_lshr_b32 s{T0}, s{S_XCD}, 1")
    k(f"s_mul_i32 s{S_T}, s{T0}, 14")
    k(f"s_xor_b32 s{T0}, s{S_I2}, s{S_KS}")
    k(f"s_add_u32 s{S_T}, s{S_T}, s{T0}")
    k(f"s_lshl_b32 s{T0}, s{S_T}, 7")
    dma_voff(k, V_VD0, V_VD1, 7168, T0)
    step_base(k, T0, k.NS)
    k(f"s_mul_i32 s{VB}, s{T0}, {32*7168}")
    k(f"v_min_u32 v{V_P2}, {k.NS//2-1}, v1")
    k(f"v_lshlrev_b32 v{V_P2}, 7, v{V_P2}")
    k(f"s_lshr_b32 s{T0}, s{T0}, 1")
    k(f"s_mul_i32 s{T1}, s{S_HALF}, 56")
    k(f"s_add_u32 s{T1}, s{T0}, s{T1}")
    k(f"s_lshl_b32 s{T1}, s{T1}, 7")
    k(f"s_add_u32 s{PF2}, s{T1}, {hex(F2_OFF)}")
    if k.role == "A":
        k(f"s_add_u32 s{PF1}, s{PF2}, {F2A_D}")
        step_base(k, T0, 28-k.NS)
        k(f"s_mul_i32 s{PFB}, s{T0}, {32*7168}")
        k(f"s_lshl_b32 s{T0}, s{S_KS}, 8")
        k(f"s_add_u32 s{PFB}, s{PFB}, 128")
        k(f"s_sub_u32 s{PFB}, s{PFB}, s{T0}")
        k(f"s_and_b32 s{T0}, s{S_T}, 7")
        k(f"s_cmp_eq_u32 s{T0}, {3 if k.o.get('deleg', 1) else 9}")
        k(f"s_cselect_b32 s{T0}, {hex(OOB)}, 0")
        k(f"v_add_u32 v{V_P1}, s{T0}, v{V_VD0}")

def poll1_setup(k):
    k(f"v_min_u32 v{V_P1}, 15, v1")
    k(f"v_lshlrev_b32 v{V_P1}, 7, v{V_P1}")
    k(f"s_lshl_b32 s{T0}, s{S_HALF}, 13")
    k(f"s_lshl_b32 s{T1}, s{S_WAVE}, 11")
    k(f"s_add_u32 s{T0}, s{T0}, s{T1}")
    k(f"s_add_u32 s{PF1}, s{T0}, {hex(F1_OFF)}")

def xpf_item(k, i):
    def f(tag):
        if i == 0:
            k(f"s_lshr_b32 s{L1}, s{S_I2}, 1")
            k(f"s_lshl_b32 s{L0}, s{S_HALF}, 3")
            k(f"s_add_u32 s{L0}, s{L0}, s{L1}")
            k(f"s_lshl_b32 s{L0}, s{L0}, 2")
            k(f"s_add_u32 s{L0}, s{L0}, s{S_WAVE}")
            k(f"s_lshl_b32 s{L0}, s{L0}, 13")
        if i == 4: k(f"s_add_u32 s{L0}, s{L0}, 4096")
        if i == 8:
            k(f"s_lshl_b32 s{L0}, s{S_HALF}, 5")
            k(f"s_add_u32 s{L0}, s{L0}, s{S_WAVE}")
            k(f"s_add_u32 s{L0}, s{L0}, 28")
            k(f"s_lshl_b32 s{L0}, s{L0}, 3")
            k(f"s_add_u32 s{L0}, s{L0}, s{L1}")
            k(f"s_lshl_b32 s{L0}, s{L0}, 10")
        k.vmem(f"buffer_load_dwordx4 {vr(STG+4*(i % 4),4)}, v{V_L16}, {srdr(SRD_WS)}, s{L0} offen offset:{(i % 4)*1024} sc1", tag)
    k.add("xpf", f, "h1")

def p2_setup(k):
    k(f"s_add_u32 s{XRB}, s{S_WAVE}, s{S_T2}")
    k(f"s_lshl_b32 s{T0}, s{S_M64}, 4")
    k(f"s_add_u32 s{T0}, s{T0}, s{S_WAVE}")
    k(f"s_lshl_b32 s{T0}, s{T0}, 13")
    for j in range(4):
        k(f"s_lshl_b32 s{T1}, s{GI+j}, 11")
        k(f"s_add_u32 s{XO+j}, s{T0}, s{T1}")
    poll1_setup(k)
    k(f"s_and_b32 s{T1}, s{XRB}, 3")
    k(f"s_lshl_b32 s{T2}, s{S_M64}, 2")
    k(f"s_add_u32 s{T2}, s{T2}, s{T1}")
    k(f"s_mul_i32 s{T2}, s{T2}, 112")
    k(f"s_lshl_b32 s{T3}, s{S_T2}, 1")
    k(f"s_add_u32 s{T2}, s{T2}, s{T3}")
    k(f"s_lshl_b32 s{T2}, s{T2}, 10")
    k(f"s_add_u32 s{HST}, s{T2}, {hex(H_OFF)}")
    k(f"s_mul_i32 s{T0}, s{S_HALF}, 56")
    k(f"s_add_u32 s{FL2}, s{T0}, s{S_T2}")
    k(f"s_lshl_b32 s{FL2}, s{FL2}, 7")
    k(f"s_add_u32 s{FL2}, s{FL2}, {hex(F2_OFF)}")
    k(f"s_add_u32 s{FL1}, s{FL2}, {F2A_D}")

def p3_setup(k):
    step_base(k, T0, k.NS)
    k(f"s_lshl_b32 s{T0}, s{T0}, 10")
    k(f"s_add_u32 s{T0}, s{T0}, {hex(H_OFF)}")
    for r, (lo, hi, d) in enumerate(vruns(k)):
        k(f"s_mul_i32 s{T1}, s{S_HALF}, {d*1024}")
        k(f"s_add_u32 s{T1}, s{T1}, {lo*1024}")
        k(f"s_add_u32 s{HB+r}, s{T0}, s{T1}")
    k(f"s_lshl_b32 s{T0}, s{S_HALF}, 1")
    k(f"s_add_u32 s{MOWN}, s{T0}, {1 if k.role == 'A' else 0}")
    k(f"s_xor_b32 s{MOTH}, s{MOWN}, 1")
    k(f"s_lshl_b32 s{MOWN}, s{MOWN}, 2")
    k(f"s_lshl_b32 s{MOTH}, s{MOTH}, 2")
    k(f"s_add_u32 s{WT}, s{S_WAVE}, s{S_T}")
    k(f"s_mul_i32 s{T0}, s{S_HALF}, 56")
    k(f"s_add_u32 s{T0}, s{T0}, s{S_T}")
    k(f"s_lshl_b32 s{T0}, s{T0}, 1")
    k(f"s_add_u32 s{T0}, s{T0}, s{S_KS}")
    k(f"s_lshl_b32 s{T0}, s{T0}, 2")
    k(f"s_add_u32 s{T0}, s{T0}, s{S_WAVE}")
    k(f"s_xor_b32 s{T1}, s{T0}, 4")
    k(f"s_lshl_b32 s{PA}, s{T0}, 12")
    k(f"s_add_u32 s{PA}, s{PA}, {hex(PART_OFF)}")
    k(f"s_lshl_b32 s{PB}, s{T1}, 12")
    k(f"s_add_u32 s{PB}, s{PB}, {hex(PART_OFF)}")
    k(f"s_mul_i32 s{T0}, s{S_EP}, 37")
    k(f"s_add_u32 s{T0}, s{T0}, 11")
    for i in range(4):
        k(f"s_add_u32 s{T1}, s{T0}, {64*i}")
        k(f"s_and_b32 s{T1}, s{T1}, 0xff")
        k(f"v_mov_b32 v{TGV+i}, s{T1}")
        if i == 0: k(f"s_mov_b32 s{TAGB}, s{T1}")
        else:
            k(f"s_lshl_b32 s{T1}, s{T1}, {8*i}")
            k(f"s_or_b32 s{TAGB}, s{TAGB}, s{T1}")
    k(f"v_mov_b32 v{TGV+4}, 0xff")
    k(f"v_mov_b32 v{TGV+5}, 0x0c0c0400")
    k(f"v_mov_b32 v{TGV+6}, 0x04000c0c")
    k(f"s_and_b32 s{T1}, s{WT}, 3")
    k(f"s_add_u32 s{T1}, s{T1}, s{MOWN}")
    k(f"s_mul_i32 s{T1}, s{T1}, {16*7168}")
    k(f"s_lshl_b32 s{T0}, s{S_T}, 7")
    k(f"s_add_u32 s{YB}, s{T1}, s{T0}")
    k("v_mul_u32_u24 v5, 7168, v3")
    k("v_and_b32 v6, 1, v2")
    k("v_lshl_add_u32 v5, v6, 5, v5")
    k("v_lshrrev_b32 v6, 1, v2")
    k("v_lshl_add_u32 v5, v6, 4, v5")

def pkadd(k, d, s, n=8):
    for q in range(n):
        k(f"v_pk_add_f32 v[{d+2*q}:{d+2*q+1}], v[{d+2*q}:{d+2*q+1}], v[{s+2*q}:{s+2*q+1}]")

def sz_items(k, *g):
    k.add("sz", lambda t: k.vmem(f"buffer_load_dwordx2 v[{RAW}:{RAW+1}], v{V_T}, {srdr(SRD_SC)}, 0 offen", t), *g)
    k.add("sz", lambda t: k.vmem(f"buffer_load_dwordx2 v[{RAW+2}:{RAW+3}], v{V_T}, {srdr(SRD_Z)}, 0 offen", t))
def qreg(n): return 80 + 4*n if n < 16 else STG + 4*((n-16) % QR)
def q_item(k, n, fl, *g):
    st, i = n//8, n % 8
    j, u = st//2, st % 2
    ro = 32*u + (i if i < 4 else 12+i)
    def f(tag):
        so = f"s{QB+j}"
        if ro:
            k(f"s_add_u32 s{L0}, s{QB+j}, {hex(ro*14336)}")
            so = f"s{L0}"
        k.vmem(f"buffer_load_dwordx4 {vr(qreg(n),4)}, v{V_Q}, {srdr(SRD_QW)}, {so} offen {fl}", tag)
    k.add(f"q{n//2}", f, f"qfree{n-QR}" if n >= QR+16 else None, *g)
def xr_item(k, p, st):
    j, u = st//2, st % 2
    def f(tag):
        if st == 0:
            k(f"s_add_u32 s{L1}, s{XRB}, {(p % 4)+1}")
            k(f"s_and_b32 s{L1}, s{L1}, 3")
            if p >= 4: k(f"s_add_u32 s{L1}, s{L1}, 4")
            k(f"s_lshl_b32 s{L1}, s{L1}, 15")
        if u == 0:
            k(f"s_add_u32 s{L0}, s{XO+j}, s{L1}")
        k.vmem(f"buffer_load_dwordx4 {ar(((p*8+st) % XRN)*4,4)}, v{V_L16}, {srdr(SRD_WS)}, s{L0} offen offset:{u*1024} sc1", tag)
    k.add(f"x{p}_{st}", f, "h1", f"xfree{p*8+st-XRN}" if p*8+st >= XRN else None)
def vruns(k):
    out = []
    for lo, hi in ((0, k.nv1), (k.nv1, k.NS)):
        if hi == lo: continue
        assert (hi - lo) % 2 == 0
        m = (hi - lo)//2
        out += [(lo, lo+m, m), (lo+m, hi, -m)]
    return out
def rowoff(st): return 64*(st >> 1) + 8*(st & 1)
def v_item(k, n, q, *g):
    d = [d for lo, hi, d in vruns(k) if lo <= n < hi][0]
    def f(tag):
        if q == 0:
            k(f"s_mul_i32 s{VB+1}, s{S_HALF}, {(rowoff(n+d) - rowoff(n))*7168}")
            k(f"s_add_u32 s{VB+1}, s{VB+1}, s{VB}")
        k(f"s_add_u32 m0, s{S_AREA}, {(n % RING)*4096 + q*1024}")
        k(f"s_add_u32 s{L0}, s{VB+1}, {hex((rowoff(n) + 16*q)*7168)}")
        k.vmem(f"buffer_load_dwordx4 v{V_VD0+(q&1)}, {srdr(SRD_V)}, s{L0} offen lds {k.o.get('vfl','')}", tag)
    k.add(f"v{n}", f, f"vfree{n-RING}" if (n >= RING and q == 0) else None, *g)
def h_item(k, p, j):
    n = p*k.NS+j
    r, lo = [(r, lo) for r, (lo, hi, d) in enumerate(vruns(k)) if lo <= j < hi][0]
    def f(tag):
        if j == 0:
            k(f"s_add_u32 s{L2}, s{WT}, {(p % 4)+1}")
            k(f"s_and_b32 s{L2}, s{L2}, 3")
            k(f"s_add_u32 s{L2}, s{L2}, s{MOTH if p < 4 else MOWN}")
            k(f"s_mul_i32 s{L2}, s{L2}, {112*1024}")
        if j == lo: k(f"s_add_u32 s{L0}, s{L2}, s{HB+r}")
        elif (j - lo) % 4 == 0: k(f"s_add_u32 s{L0}, s{L0}, 4096")
        k.vmem(f"buffer_load_dwordx4 {vr(WQ+4*(n % k.HRN),4)}, v{V_L16}, {srdr(SRD_WS)}, s{L0} offen offset:{((j-lo) % 4)*1024} {k.o.get('hfl', 'sc1')}", tag)
    k.add(f"h{p}_{j}", f, "h2a" if (k.role == "A" and p < 4) else "h2")
def pld_ins(jj):
    return f"buffer_load_dwordx4 {vr(PLD+jj*4,4)}, v{V_L16}, {srdr(SRD_WS)}, s{PB} offen offset:{jj*1024} sc1"

def sz_prep(k, j):
    k(f"s_lshl_b32 s{T0}, s{GI+j}, 6")
    k(f"v_lshl_add_u32 v{V_PR+1}, v3, 2, s{T0}")
    for q in range(4):
        k(f"ds_bpermute_b32 v{248+q}, v{V_PR+1}, v{RAW+q}")
    k(f"s_mov_b32 s{T2}, 0x71800000")
    k(f"s_mov_b32 s{T3}, 0xa7000000")
    k("s_waitcnt lgkmcnt(0)")
    for jj in range(4):
        if jj % 2 == 0:
            k(f"v_lshlrev_b32 v{SZ+jj}, 16, v{248+jj//2}")
            k(f"v_lshlrev_b32 v{SZ+4+jj}, 16, v{250+jj//2}")
        else:
            k(f"v_and_b32 v{SZ+jj}, 0xffff0000, v{248+jj//2}")
            k(f"v_and_b32 v{SZ+4+jj}, 0xffff0000, v{250+jj//2}")
    for jj in range(4):
        k(f"v_mul_f32 v{SZ+4+jj}, v{SZ+4+jj}, v{SZ+jj}")
    for jj in range(4):
        k(f"v_mul_f32 v{SZ+jj}, s{T2}, v{SZ+jj}")
        k(f"v_mul_f32 v{SZ+4+jj}, s{T3}, v{SZ+4+jj}")

def events(k):
    if "xrst" in k.vm and "f1" not in k.gates and k.isdone("xrst"):
        k.flag(f"s{FL1}"); k.open("f1"); k.L = k.o.get("Lf1", 24)
    if "f1" in k.gates and "f1done" not in k.gates and k.isdone("flag"):
        k.open("f1done"); k.L = k.o.get("L", 12)
    if "hflag" in k.gates and "f2done" not in k.gates and k.isdone("flag"):
        k.open("f2done"); k.L = k.o.get("LV", 12)
    if "h1" not in k.gates and k.isdone("poll1"):
        k.poll_check("poll1", f"v{V_P1}", f"s{PF1}"); k.open("h1"); k.stamp("h1_seen")
    if "h2a" not in k.gates and k.isdone("poll2a"):
        k.poll_check("poll2a", f"v{V_P2}", f"s{PF1}"); k.open("h2a"); k.stamp("h2_seen")
    if "h2" not in k.gates and k.isdone("poll2"):
        k.poll_check("poll2", f"v{V_P2}", f"s{PF2}"); k.open("h2"); k.stamp("h2_seen" if k.role == "B" else "q_all")

def need(k, tag):
    while tag in [t for t, _, _ in k.stream[k.sp:]]:
        if k.issue_one(force=True): continue
        g = [g for g in k.stream[k.sp][2] if g not in k.gates][0]
        k.wait({"h1": "poll1", "h2": "poll2", "h2a": "poll2a"}[g])
        events(k)
        if k.o.get("gpump", 1): k.pump()
    k.wait(tag)
    events(k)

def dequant_pair(k, pr):
    st, p = pr//4, pr % 4
    if pr % 8 == 0 and f"sz{pr//8}" not in k.gates: sz_prep(k, pr//8)
    need(k, f"q{pr}")
    k.stamp(f"qp{pr}")
    k.pump()
    r0, r1 = qreg(2*pr), qreg(2*pr+1)
    for r in (r0, r1):
        for hh in range(2):
            q = r+2*hh
            k(f"v_pk_fma_f32 v[{q}:{q+1}], v[{q}:{q+1}], v[{SZ+2*hh}:{SZ+2*hh+1}], v[{SZ+4+2*hh}:{SZ+4+2*hh+1}]")
    for jj in range(4):
        k(f"v_cvt_pk_bf16_f32 v{WQ+(st*4+jj)*4+p}, v{r0+jj}, v{r1+jj}")
    k.open(f"qfree{2*pr}"); k.open(f"qfree{2*pr+1}")

def v_fetch(k, n):
    need(k, f"v{n}")
    k.stamp(f"vf{n}")
    if n >= 1 and f"vfree{n-1}" not in k.gates:
        k("s_waitcnt lgkmcnt(0)")
        k.open(f"vfree{n-1}")
    for jj in range(4):
        for h in range(2):
            k(f"ds_read_b64_tr_b16 {vreg(k, n, jj*4+2*h, 2)}, v{V_TR+jj} offset:{(n % RING)*4096 + h*512}")
    k.pump()

def accname(p, jj, own):
    return vr(OWN+jj*4, 4) if own else ar(224+(p % 2)*16+jj*4, 4)
def red_read(k, off):
    for p in range(3):
        for jj in range(4):
            k(f"ds_read_b128 {vr(RT+(p*4+jj)*4,4)}, v{V_RR+p} offset:{off+jj*1024}")

def vpf_item(k, st, q):
    def f(tag):
        if q == 0:
            k(f"s_mul_i32 s{VB+1}, s{S_HALF}, {(rowoff(st+14-k.NS//2) - rowoff(st))*7168}")
            k(f"s_add_u32 s{VB+1}, s{VB+1}, s{PFB}")
        k(f"s_add_u32 s{L0}, s{VB+1}, {hex((rowoff(st) + 16*q)*7168)}")
        k.vmem(f"buffer_load_dwordx4 {vr(STG+4*q,4)}, v{V_P1}, {srdr(SRD_V)}, s{L0} offen", tag)
    k.add(f"pf{st}", f)

def h_stream(k, o):
    for p in range(8):
        for j in range(k.NS):
            if k.role == "A" and p == 3 and j == o.get("p2atA", 1):
                k.add("poll2", k.poll_item(f"v{V_P2}", f"s{PF2}"))
            if p == 7 and j == o.get("tcat", 4):
                for jj in range(4):
                    k.add("pld", (lambda jj: lambda t: k.vmem(pld_ins(jj), t))(jj))
            h_item(k, p, j)

def tail_stream(k, nv1, o, role):
    for p in range(8):
        for st in range(8): xr_item(k, p, st)
    vpre, vmid = o.get("vpre"+role, 4), o.get("vmid"+role, 10)
    p2back = o.get("p2back"+role, 8)
    rest = [(n, q) for n in range(nv1, k.NS) for q in range(4)]
    for i, (n, q) in enumerate(rest):
        if i == len(rest) - p2back:
            k.add("poll2", k.poll_item(f"v{V_P2}", f"s{PF2}"), "hflag")
        v_item(k, n, q, "hstored" if i == vpre else None, "hflag" if i == vmid else None)
    if p2back == 0: k.add("poll2", k.poll_item(f"v{V_P2}", f"s{PF2}"), "hflag")
    h_stream(k, o)

def q_stream(k, lo, hi, o, role):
    p1pos = o.get("p1pos"+role, 63)
    for n in range(lo, hi):
        if n == p1pos: k.add("poll1", k.poll_item(f"v{V_P1}", f"s{PF1}"), "setup")
        fl = o.get("qfl", "") if (role == "A" or n >= 32) else ""
        q_item(k, n, fl, "xstored" if (role == "A" and n == o.get("qpreA", 99)) else None)

def adds(d, s_, n=16): return [f"v_add_f32 v{d+q}, v{d+q}, v{s_+q}" for q in range(n)]
def rreads(off): return [f"ds_read_b128 {vr(RT+(p*4+jj)*4,4)}, v{V_RR+p} offset:{off+jj*1024}" for p in range(3) for jj in range(4)]
def hpack(dst, src):
    return [f"v_cvt_pk_bf16_f32 v{dst+f*4+rr*2+hh}, v{src+(2*hh)*4+2*f+rr}, v{src+(2*hh+1)*4+2*f+rr}" for f in range(2) for rr in range(2) for hh in range(2)]

def p2_main(k, nv1, o):
    k.stamp("q_all")
    for p in range(8):
        own = (p % 4 == 3)
        for st in range(8):
            need(k, f"x{p}_{st}")
            if st == 0: k.stamp(f"p2_{p//2}{'ab'[p % 2]}")
            if p % 4 != 0 and st == 2:
                k.fill(f"ds_write_b128 v{V_RW}, {accname(p-1, jj, False)} offset:{P2R+((p-1) % 4)*4096+jj*1024}" for jj in range(4))
            if p == 7 and st == 3:
                k.fill(["s_waitcnt lgkmcnt(0)", "s_barrier"] + rreads(P2R) + ["s_waitcnt lgkmcnt(4)"] + adds(RT, RT+16) + ["s_waitcnt lgkmcnt(0)"] + adds(RT, RT+32))
            if p == 3 and st == 6:
                k.fill(["s_waitcnt lgkmcnt(0)", "s_barrier"] + rreads(P2R) + ["s_waitcnt lgkmcnt(4)"] + adds(RT, RT+16) + ["s_waitcnt lgkmcnt(0)", "s_barrier"] + adds(RT, RT+32))
            if (p, st) == tuple(o.get("hpat", (4, 2))):
                k.fill(adds(RT, OWN) + hpack(PK+8, RT))
            if p == 5 and st == 1: k.drain()
            if (p, st) == tuple(o.get("hs0at", (5, 1))):
                k.drain()
                k.vmem(f"buffer_store_dwordx4 v[{PK+8}:{PK+11}], v{V_L16}, {srdr(SRD_WS)}, s{HST} offen sc1", "hst0")
                k.vmem(f"buffer_store_dwordx4 v[{PK+12}:{PK+15}], v{V_L16}, {srdr(SRD_WS)}, s{HST} offen offset:1024 sc1", "hst0")
                k(f"s_add_u32 s{HST}, s{HST}, {4*112*1024}")
                k.L += 2
            if (p, st) == tuple(o.get("f2at", (6, 6))):
                k.wait("hst0")
                k.flag(f"s{FL1}")
                k.stamp("v1_done")
                k.L -= 1
            for jj in range(4):
                acc = accname(p, jj, own)
                k(f"v_mfma_f32_16x16x32_bf16 {acc}, {vr(WQ+(st*4+jj)*4,4)}, {ar(((p*8+st) % XRN)*4,4)}, {'0' if st == 0 else acc}")
                if jj == 0: k.pump()
                if p == 7: k.drain(1 if st == 2 else 3)
                elif jj: k.drain(o.get('fn2', 3) if p in (3, 4) else 2)
            k.open(f"xfree{p*8+st}")
        if p == 6: k.drain()
    k.drain()
    k.stamp("p2_mfma")
    k("s_nop 4")
    pkadd(k, OWN, RT)
    for x in hpack(PK, OWN): k(x)
    k.vmem(f"buffer_store_dwordx4 v[{PK}:{PK+3}], v{V_L16}, {srdr(SRD_WS)}, s{HST} offen sc1", "hst")
    k.vmem(f"buffer_store_dwordx4 v[{PK+4}:{PK+7}], v{V_L16}, {srdr(SRD_WS)}, s{HST} offen offset:1024 sc1", "hst")
    k.open("hstored")
    k.L = o.get("L", 12) + 4
    k.pump()
    p3_setup(k)
    k.wait("hst")
    k.flag(f"s{FL2}")
    k.stamp("h_flag")
    k.open("hflag")
    k.L = o.get("Lf2", 20)
    k.pump()
    for n in range(nv1, k.NS): v_fetch(k, n)

def p3_main(k, o):
    FN = o.get("fn", 2)
    L3, LH = o.get("L3", 12), min(o.get("L3hi"+k.role, 12), k.HRN-5)
    hiat = o.get("hiat", 2)
    def tagcheck():
        out = []
        for jj in range(4):
            r = PLD+jj*4
            out += [f"v_perm_b32 v{PK}, v{r+1}, v{r}, v{TGV+5}", f"v_perm_b32 v{PK+1}, v{r+3}, v{r+2}, v{TGV+6}",
                    f"v_or_b32 v{PK}, v{PK}, v{PK+1}", f"v_xor_b32 v{PK+2+jj}, s{TAGB}, v{PK}"]
        return out + [f"v_or3_b32 v{PK}, v{PK+2}, v{PK+3}, v{PK+4}", f"v_or_b32 v{PK}, v{PK}, v{PK+5}", f"v_cmp_ne_u32 vcc, 0, v{PK}"]
    k.L = o.get("L3", 12)
    k("s_waitcnt lgkmcnt(0)")
    k.stamp("v_done")
    for p in range(8):
        own = (p % 4 == 3)
        off = 0 if p < 4 else P2R
        for j in range(k.NS):
            n = p*k.NS+j
            need(k, f"h{p}_{j}")
            if j == 2 and p % 4 != 0:
                for jj in range(4):
                    k.fill([f"ds_write_b128 v{V_RW}, {accname(p-1, jj, False)} offset:{off+((p-1) % 4)*4096+jj*1024}"] + [""]*(FN-1))
            if own and j == o.get('barat'+k.role, 4 if k.NS >= 14 else 3):
                k.fill(["s_waitcnt lgkmcnt(0)", "s_barrier"] + rreads(off) + ["s_waitcnt lgkmcnt(4)"] + adds(RT, RT+16) + ["s_waitcnt lgkmcnt(0)"] + adds(RT, RT+32))
            if p == 7 and j == o.get("tcat", 4):
                assert k.isdone("pld")
                k.fill(tagcheck())
            if p == 7 and j == max(o.get("tcat", 4), o.get('barat'+k.role, 4 if k.NS >= 14 else 3)): k.fill(adds(PLD, RT))
            if p == hiat and j == 0: k.L = LH
            if p == 4 and j == 2:
                k.drain()
                k.fill(adds(RT, OWN) + [f"v_bfi_b32 v{RT+r}, v{TGV+4}, v{TGV+(r % 4)}, v{RT+r}" for r in range(16)])
            for jj in range(4):
                acc = accname(p, jj, own)
                k(f"v_mfma_f32_16x16x32_bf16 {acc}, {vreg(k, j, jj*4, 4)}, {vr(WQ+4*(n % k.HRN),4)}, {'0' if j == 0 else acc}")
                if jj == 0: k.pump(o.get("pumpn", 2) if k.L > L3 else 99)
                else: k.drain(o.get("fn7", 3) if p == 7 else FN)
            if p == 4 and j == 7:
                k.drain()
                for jj in range(4):
                    k.vmem(f"buffer_store_dwordx4 {vr(RT+jj*4,4)}, v{V_L16}, {srdr(SRD_WS)}, s{PA} offen offset:{jj*1024} sc1", "pst")
                k.L = LH + 4
                k.stamp("part_st")
            if "pst" in k.vm and k.isdone("pst"): k.L = o.get("L3", 12)
            if j == 0: k.stamp(f"pos{p}")
    k.drain()
    L = k.lab("RETRY"); E = k.lab("RETRYX")
    k(f"s_mov_b32 s{S_CNT}, 0")
    k("s_nop 2")
    k(f"s_cbranch_vccz {E}")
    k.a.label(L)
    for jj in range(4): k(pld_ins(jj))
    k(f"s_add_u32 s{S_CNT}, s{S_CNT}, 1")
    k("s_waitcnt vmcnt(0)")
    for x in tagcheck(): k(x)
    pkadd(k, PLD, RT)
    k(f"s_cmp_gt_u32 s{S_CNT}, 0x40000")
    k(f"s_cbranch_scc1 {E}")
    k(f"s_cbranch_vccnz {L}")
    k.a.label(E)
    k.stamp("p3_mfma")
    k("s_nop 1")
    pkadd(k, OWN, PLD)
    for q in range(8):
        k(f"v_cvt_pk_bf16_f32 v{PK+q}, v{OWN+2*q}, v{OWN+2*q+1}")
    k("s_nop 1")
    for pr in range(2):
        k(f"v_permlane16_swap_b32 v{PK+4*pr}, v{PK+4*pr+2}")
        k(f"v_permlane16_swap_b32 v{PK+4*pr+1}, v{PK+4*pr+3}")
    yfl = o.get("yfl", "")
    for pr in range(2):
        k(f"buffer_store_dwordx4 v[{PK+4*pr}:{PK+4*pr+3}], v5, {srdr(SRD_OUT)}, s{YB} offen offset:{64*pr} {yfl}")
    assert k.sp == len(k.stream)

def line_loop(k, srd_, rowbytes, s_off, count, label, lpr=8, n=8):
    sh = {8: 3, 16: 4}[lpr]
    k(f"v_lshrrev_b32 v5, {sh}, v1")
    k(f"v_mul_u32_u24 v5, {rowbytes}, v5")
    k(f"v_and_b32 v6, {lpr-1}, v1")
    k("v_lshl_add_u32 v5, v6, 4, v5")
    k(f"s_mov_b32 s{S_CNT}, {count}")
    k.a.label(label)
    for t in range(n):
        k(f"buffer_load_dwordx4 {vr(16+t*4,4)}, v5, {srdr(srd_)}, s{s_off} offen")
        k(f"s_add_u32 s{s_off}, s{s_off}, {(64//lpr)*rowbytes}")
    k(f"s_add_u32 s{s_off}, s{s_off}, s{T3}")
    k(f"s_sub_u32 s{S_CNT}, s{S_CNT}, 1")
    k(f"s_cmp_lg_u32 s{S_CNT}, 0")
    k(f"s_cbranch_scc1 {label}")

def help_q(k, rows):
    k(f"s_mul_i32 s{T0}, s{S_XCD}, 7")
    k(f"s_sub_u32 s{T1}, 1, s{T0}")
    k(f"s_and_b32 s{T1}, s{T1}, 3")
    k(f"s_lshl_b32 s{T2}, s{S_HALF}, 2")
    k(f"s_add_u32 s{T2}, s{T2}, s{T1}")
    k(f"s_cmp_lt_u32 s{T2}, 7")
    k(f"s_cselect_b32 s{T1}, s{T2}, s{T1}")
    k(f"s_add_u32 s{T0}, s{T0}, s{T1}")
    k(f"s_lshl_b32 s{T0}, s{T0}, 8")
    k(f"s_add_u32 s{T0}, s{T0}, {(128-rows)*14336}")
    k(f"s_mul_i32 s{T1}, s{S_WAVE}, {256*14336}")
    k(f"s_add_u32 s{T0}, s{T0}, s{T1}")
    k(f"s_mov_b32 s{T3}, {(128-rows)*14336}")
    m = k.o.get("hqm", 0)
    if m == 0:
        line_loop(k, SRD_QW, 14336, T0, 2, "HQ", 16, rows//4)
        return
    k("v_lshrrev_b32 v5, 4, v1")
    k("v_mul_u32_u24 v5, 14336, v5")
    k("v_lshl_add_u32 v5, v3, 4, v5")
    for t in range(rows//4):
        for g in range(2):
            ch = t if m == 1 else rows//4-1-t
            k(f"s_add_u32 s{T1}, s{T0}, {(128*g + 4*ch)*14336}")
            k(f"buffer_load_dwordx4 {vr(16+(2*t+g)*4,4)}, v5, {srdr(SRD_QW)}, s{T1} offen")

def help_v(k, blk0, nblk, label, blk0o, nblko, blk2, nblk2):
    k(f"s_lshr_b32 s{T0}, s{S_XCD}, 1")
    k(f"s_mul_i32 s{T0}, s{T0}, 14")
    k(f"s_sub_u32 s{T1}, 3, s{T0}")
    k(f"s_and_b32 s{T1}, s{T1}, 7")
    k(f"s_lshl_b32 s{T2}, s{S_HALF}, 3")
    k(f"s_add_u32 s{T2}, s{T2}, s{T1}")
    k(f"s_cmp_lt_u32 s{T2}, 14")
    k(f"s_cselect_b32 s{T1}, s{T2}, s{T1}")
    k(f"s_add_u32 s{T0}, s{T0}, s{T1}")
    k(f"s_lshl_b32 s{T0}, s{T0}, 7")
    NA = k.o.get("NA", 16)
    k(f"s_xor_b32 s{L0}, s{T0}, 128")
    k(f"s_mul_i32 s{T1}, s{S_WAVE}, {28-NA}")
    k(f"s_mul_i32 s{T2}, s{S_WAVE}, {NA}")
    k(f"s_add_u32 s{T2}, s{T2}, {112-4*NA}")
    k(f"s_bitcmp1_b32 s{S_XCD}, 0")
    k(f"s_cselect_b32 s{T1}, s{T2}, s{T1}")
    k(f"s_mul_i32 s{T1}, s{T1}, {32*7168}")
    k(f"s_add_u32 s{T0}, s{T0}, s{T1}")
    k(f"s_bitcmp1_b32 s{S_XCD}, 0")
    k(f"s_cselect_b32 s{T1}, {blk0o}, {blk0}")
    k(f"s_cselect_b32 s{T2}, {nblko}, {nblk}")
    k(f"s_cselect_b32 s{T3}, {hex((-2*64*7168 if k.o.get('hback', 1) else 0) & 0xffffffff)}, 0")
    k(f"s_mul_i32 s{T1}, s{T1}, {64*7168}")
    k(f"s_add_u32 s{T0}, s{T0}, s{T1}")
    line_loop(k, SRD_V, 7168, T0, f"s{T2}", label)
    if k.o.get('deleg', 1) and nblk2:
        k(f"s_bitcmp1_b32 s{S_XCD}, 0")
        k(f"s_cbranch_scc0 {label}X")
        k(f"s_mul_i32 s{T1}, s{S_WAVE}, {(28-NA)*32*7168}")
        k(f"s_add_u32 s{L0}, s{L0}, s{T1}")
        k(f"s_add_u32 s{L0}, s{L0}, {(4*NA*32 + blk2*64)*7168}")
        k(f"s_mov_b32 s{T3}, 0")
        line_loop(k, SRD_V, 7168, L0, nblk2, label+"B")
        k.a.label(label+"X")

def mid_main(k, nv1, vat):
    def vpart():
        for n in range(nv1):
            if n == nv1//2: k.L = k.o.get("L", 12)
            v_fetch(k, n)
        if nv1:
            k("s_waitcnt lgkmcnt(0)")
            k.open(f"vfree{nv1-1}")
    for pr in range(32):
        if pr == vat//2: vpart()
        if pr == 16 and k.role == "B": k.L = k.o.get("L", 12)
        dequant_pair(k, pr)
        if pr == 15: k.stamp("q_half")
    if vat == 64: vpart()

def role_a(a, o):
    k = K(a, o); k.role = "A"; k.NS = o.get("NA", 16); k.HRN = 32 - 4*max(0, k.NS-14); NS = k.NS
    a.label("ROLE_A")
    k(f"s_lshr_b32 s{T0}, s{S_I2}, 1")
    k(f"s_and_b32 s{T1}, s{T0}, 1")
    k(f"s_lshl_b32 s{S_N64}, s{S_XCD}, 1")
    k(f"s_add_u32 s{S_N64}, s{S_N64}, s{T1}")
    k(f"s_lshr_b32 s{T0}, s{T0}, 1")
    k(f"s_lshl_b32 s{S_M32}, s{S_HALF}, 2")
    k(f"s_add_u32 s{S_M32}, s{S_M32}, s{T0}")
    k(f"s_lshl_b32 s{T1}, s{T1}, 1")
    k(f"s_add_u32 s{RHO}, s{S_M32}, s{T1}")
    k(f"s_lshl_b32 s{T0}, s{S_N64}, 7")
    k(f"s_lshl_b32 s{T1}, s{S_WAVE}, 19")
    k(f"s_add_u32 s{T0}, s{T0}, s{T1}")
    dma_voff(k, V_U0, V_U1, 2048, T0)
    k(f"v_lshrrev_b32 v{V_X0}, 3, v1")
    k(f"v_lshlrev_b32 v{V_X0}, 11, v{V_X0}")
    k(f"v_xor_b32 v{V_T2}, v{V_T2}, v2")
    k(f"v_lshl_add_u32 v{V_X0}, v{V_T2}, 4, v{V_X0}")
    k(f"s_lshl_b32 s{T0}, s{S_M32}, 16")
    k(f"s_lshl_b32 s{T1}, s{S_WAVE}, 9")
    k(f"s_add_u32 s{T0}, s{T0}, s{T1}")
    k(f"v_add_u32 v{V_X0}, s{T0}, v{V_X0}")
    k(f"v_xor_b32 v{V_X1}, 64, v{V_X0}")
    k("s_waitcnt lgkmcnt(0)")
    srd(a, SRD_U, 16, U_BYTES)
    srd(a, SRD_X, 8, X_BYTES)
    k(f"s_lshl_b32 s{XST_}, s{S_HALF}, 16")
    def p1_item(jp, i):
        def f(tag):
            if i in (0, 4, 8):
                k(f"s_add_u32 s{L1}, s{RHO}, {jp}")
                k(f"s_and_b32 s{L1}, s{L1}, 3")
            if i == 0: k(f"s_lshl_b32 s{L0}, s{L1}, 7")
            if i in (4, 8):
                k(f"s_lshl_b32 s{L0}, s{L1}, 17")
                if i == 8: k(f"s_add_u32 s{L0}, s{L0}, 0x10000")
                k(f"s_xor_b32 s{L0}, s{L0}, s{XST_}")
            k(f"s_add_u32 m0, s{S_AREA}, {P1R + (jp % 2)*4096 + i*1024 if i < 4 else jp*8192 + (i-4)*1024}")
            if i not in (0, 4, 8): k(f"s_add_u32 s{L0}, s{L0}, 0x4000")
            else: k("s_nop 0")
            if i < 4: k.vmem(f"buffer_load_dwordx4 v{V_X0+(i&1)}, {srdr(SRD_X)}, s{L0} offen lds", tag)
            else: k.vmem(f"buffer_load_dwordx4 v{V_U0+(i&1)}, {srdr(SRD_U)}, s{L0} offen lds", tag)
        k.add(f"p1x{jp//2}" if i < 4 else f"p1u{jp}_{0 if i < 8 else 1}", f, "p1free" if (jp == 2 and i == 0) else None)
    X = lambda jp: [(jp, i) for i in range(4)]
    U = lambda jp, u: [(jp, i) for i in range(4+4*u, 8+4*u)]
    for jp, i in X(0) + X(1) + U(0, 0): p1_item(jp, i)
    for jp, i in U(0, 1) + X(2) + X(3) + U(1, 0) + U(1, 1) + U(2, 0) + U(2, 1) + U(3, 0) + U(3, 1): p1_item(jp, i)
    k.nv1 = 0
    npf = o.get("npfA", 14-NS//2)
    pfat = NS - o.get("pfbackA", 0)
    pford = list(range(npf)) if o.get("pffwd", 0) else list(range(13-NS//2, 13-NS//2-npf, -1))
    def pfs():
        for st in pford:
            for q in range(4): vpf_item(k, st, q)
    for n in range(NS):
        if n == pfat: pfs()
        for q in range(4): v_item(k, n, q, "setup")
    if pfat == NS: pfs()
    k.add("poll2a", k.poll_item(f"v{V_P2}", f"s{PF1}"))
    h_stream(k, o)
    k.pump()
    epoch_load(k)
    srd(a, SRD_V, 18, V_BYTES); srd(a, SRD_OUT, 20, OUT_BYTES); srd(a, SRD_WS, 24, WS_BYTES)
    tr_addrs(k)
    k(f"v_lshrrev_b32 v{V_XR0}, 1, v3")
    k(f"v_xor_b32 v{V_XR0}, v{V_XR0}, v2")
    k(f"v_lshlrev_b32 v{V_XR0}, 4, v{V_XR0}")
    k(f"v_lshl_add_u32 v{V_XR0}, v3, 7, v{V_XR0}")
    k(f"v_add_u32 v{V_XR0}, s{S_AREA}, v{V_XR0}")
    k(f"s_lshl_b32 s{T0}, s{S_HALF}, 6")
    k(f"v_xor_b32 v{V_XR0}, s{T0}, v{V_XR0}")
    k(f"v_xor_b32 v{V_XR1}, 64, v{V_XR0}")
    k(f"v_add_u32 v{V_RW}, s{S_AREA}, v{V_L16}")
    k(f"s_lshl_b32 s{T0}, s{S_WAVE}, 11")
    k(f"s_add_u32 s{T0}, s{T0}, {P1R}")
    k(f"v_add_u32 v{V_RR}, s{T0}, v{V_L16}")
    k(f"v_add_u32 v{V_RR+1}, {hex(2*AREA_SZ)}, v{V_RR}")
    k(f"s_and_b32 s{T1}, s{S_WAVE}, 1")
    k(f"s_lshl_b32 s{T0}, s{S_M32}, 1")
    k(f"s_add_u32 s{T0}, s{T0}, s{T1}")
    k(f"s_lshr_b32 s{T1}, s{S_WAVE}, 1")
    k(f"s_lshl_b32 s{T2}, s{S_N64}, 1")
    k(f"s_add_u32 s{T2}, s{T2}, s{T1}")
    k(f"s_lshl_b32 s{XSO}, s{T0}, 5")
    k(f"s_add_u32 s{XSO}, s{XSO}, s{T2}")
    k(f"s_lshl_b32 s{XSO}, s{XSO}, 10")
    k(f"s_lshl_b32 s{T1}, s{S_HALF}, 4")
    k(f"s_add_u32 s{T1}, s{T1}, s{S_N64}")
    k(f"s_lshl_b32 s{T1}, s{T1}, 2")
    k(f"s_and_b32 s{T0}, s{S_M32}, 3")
    k(f"s_add_u32 s{T1}, s{T1}, s{T0}")
    k(f"s_lshl_b32 s{T1}, s{T1}, 7")
    k(f"s_add_u32 s{FL1}, s{T1}, {hex(F1_OFF)}")
    v_setup(k)
    k.stamp("issue0")
    k.L = o.get("Lp1", 18)
    k.pump()
    A1 = 224
    def acc1(jj, mi): return ar(A1 + (((jj >> 1)*2 + mi)*2 + (jj & 1))*4, 4)
    def xreads(jp0):
        for jp in (jp0, jp0+1):
            for u in range(2):
                for mi in range(2):
                    k(f"ds_read_b128 {ar(((2*jp+u)*2+mi)*4,4)}, v{V_XR0+u} offset:{P1R+(jp % 2)*4096+mi*2048}")
    def ureads(j):
        for jj in range(4):
            for h in range(2):
                k(f"ds_read_b64_tr_b16 {ar(64+(j % 2)*16+jj*4+2*h,2)}, v{V_TR+jj} offset:{j*4096+h*512}")
    k.wait("p1x0")
    xreads(0)
    tag_calc(k)
    k.open("p1free")
    k.pump()
    k.wait("p1u0_0")
    k.stamp("p1s0")
    ureads(0)
    for j in range(8):
        if j == 2: xreads(2)
        if j < 7:
            k.wait(f"p1u{(j+1)//2}_{(j+1) % 2}")
            if j == 6:
                k.stamp("p1_loaded"); k.L = o.get("L", 12)
            k.stamp(f"p1s{j+1}")
            k("s_waitcnt lgkmcnt(0)")
            ureads(j+1)
        else:
            k("s_waitcnt lgkmcnt(0)")
        for jj in range(4):
            for mi in range(2):
                k(f"v_mfma_f32_16x16x32_bf16 {acc1(jj, mi)}, {ar(64+(j % 2)*16+jj*4,4)}, {ar((j*2+mi)*4,4)}, {'0' if j == 0 else acc1(jj, mi)}")
            k.pump(2)
    k(f"s_mov_b32 s{T0}, 0x58000000")
    k(f"v_mov_b32 v{V_X1}, s{T0}")
    k("s_nop 3")
    for q in (0, 2, 1, 3, 4, 6, 5, 7):
        k(f"ds_write_b128 v{V_RW}, {ar(A1+q*4,4)} offset:{P1R+q*1024}")
    k("s_waitcnt lgkmcnt(0)")
    k("s_barrier")
    k.stamp("p1_bar")
    R = 16
    for w in range(4):
        for c in range(2):
            k(f"ds_read_b128 {vr(R+(w*2+c)*4,4)}, v{V_RR+w//2} offset:{(w % 2)*AREA_SZ+c*1024}")
    k("s_waitcnt lgkmcnt(4)")
    pkadd(k, R, R+8, 4)
    k("s_waitcnt lgkmcnt(0)")
    pkadd(k, R+16, R+24, 4)
    pkadd(k, R, R+16, 4)
    for q in range(4):
        d = R+2*q
        k(f"v_pk_mul_f32 v[{d}:{d+1}], v[{d}:{d+1}], v[{V_X1}:{V_X1+1}] op_sel_hi:[1,0]")
    for q in range(4):
        k(f"v_cvt_pk_bf16_f32 v{R+32+q}, v{R+2*q}, v{R+2*q+1}")
    k.vmem(f"buffer_store_dwordx4 v[{R+32}:{R+35}], v{V_L16}, {srdr(SRD_WS)}, s{XSO} offen sc1", "xrst")
    k.stamp("p1_done")
    k(f"s_cmp_lt_u32 s{S_I2}, 14")
    k("s_cbranch_scc1 WORKER_A")
    k("s_waitcnt vmcnt(0)")
    sv = list(k.vm)
    k.flag(f"s{FL1}")
    if o.get("n14", 4): help_v(k, o.get("b14", 3), o.get("n14", 3), "HV14", o.get("b14o", 7), o.get("n14o", 2), o.get("b14d", 3), o.get("n14d", 3))
    k("s_waitcnt vmcnt(0)")
    k("s_branch FINISH")
    k.vm = sv
    a.label("WORKER_A")
    k.open("setup")
    k.L = o.get("LA", 12)
    k.pump(o.get("nxA", 0))
    red_addrs(k, 0)
    p3_setup(k)
    k.wait("xrst")
    k.flag(f"s{FL1}"); k.open("f1"); k.open("f1done")
    k.stamp("h_flag")
    k.pump()
    def pfw():
        for st in pford:
            need(k, f"pf{st}"); k.pump()
    for n in range(NS):
        if n == pfat: pfw()
        v_fetch(k, n)
        if n == 6: k.stamp("q_half")
    k.stamp("v1_done")
    if pfat == NS: pfw()
    p3_main(k, o)
    k(f"s_or_b32 s{T0}, s{S_XCD}, s{S_I2}")
    k(f"s_or_b32 s{T0}, s{T0}, s{S_WAVE}")
    k(f"s_cmp_lg_u32 s{T0}, 0")
    k("s_cbranch_scc1 FINISH")
    k(f"s_add_u32 s{T0}, s{S_EP}, 1")
    k(f"v_mov_b32 v{V_T}, s{T0}")
    k(f"s_lshl_b32 s{T0}, s{S_HALF}, 7")
    k(f"s_add_u32 s{T0}, s{T0}, {hex(EP_OFF)}")
    k("s_mov_b64 exec, 1")
    k(f"buffer_store_dword v{V_T}, v0, {srdr(SRD_WS)}, s{T0} offen sc1")
    k("s_mov_b64 exec, -1")
    k("s_branch FINISH")

def role_b(a, o):
    k = K(a, o); k.role = "B"; k.NS = 28 - o.get("NA", 16); k.HRN = 32
    k.L = o.get("LB0", 12)
    a.label("ROLE_B")
    k(f"s_cmp_lt_u32 s{S_I2}, 14")
    k("s_cbranch_scc1 WORKER_B")
    k("s_waitcnt lgkmcnt(0)")
    srd(a, SRD_V, 18, V_BYTES)
    srd(a, SRD_QW, 10, QW_BYTES)
    if o.get("hq", 52): help_q(k, o.get("hq", 52))
    if o.get("n15", 3): help_v(k, o.get("b15", 0), o.get("n15", 3), "HV15", o.get("b15o", 3), o.get("n15o", 4), o.get("b15d", 0), o.get("n15d", 3))
    k("s_waitcnt vmcnt(0)")
    k("s_branch FINISH")
    a.label("WORKER_B")
    role_ids(k)
    q_setup(k, False)
    k("s_waitcnt lgkmcnt(0)")
    srd(a, SRD_QW, 10, QW_BYTES); srd(a, SRD_SC, 12, SC_BYTES); srd(a, SRD_Z, 14, SC_BYTES)
    nv1, vat = o.get("nv1B", 0), o.get("vatB", 32)
    k.nv1 = nv1
    sz_items(k)
    q_stream(k, 0, vat, o, "B")
    for n in range(nv1):
        for q in range(4): v_item(k, n, q, "setup")
    q_stream(k, vat, 64, o, "B")
    tail_stream(k, nv1, o, "B")
    k.pump()
    epoch_load(k)
    srd(a, SRD_V, 18, V_BYTES); srd(a, SRD_OUT, 20, OUT_BYTES); srd(a, SRD_WS, 24, WS_BYTES)
    k("s_setreg_imm32_b32 hwreg(HW_REG_MODE, 4, 2), 3")
    tr_addrs(k)
    v_setup(k)
    p2_setup(k)
    red_addrs(k, 0)
    k.open("setup")
    k.L = o.get("LB1", 16)
    k.pump()
    k.wait("sz")
    tag_calc(k)
    mid_main(k, nv1, vat)
    p2_main(k, nv1, o)
    p3_main(k, o)

def build(opt):
    a = Asm(); K.uid = 0
    a.raw(HEADER.rstrip())
    a.raw(f"; @launch grid=(256,1,1) block=(256,1,1) lds={LDS_BYTES}")
    a.raw('.amdgcn_target "amdgcn-amd-amdhsa--gfx950"')
    kernel_begin(a, KNAME)
    a("s_cmp_ge_u32 s2, 256")
    a("s_cbranch_scc1 DONE")
    if opt.get("stamp"): a(f"{TIMER(opt)} s[92:93]")
    a("s_load_dwordx16 s[8:23], s[0:1], 0")
    a("s_load_dwordx2 s[24:25], s[0:1], 64")
    a("v_lshrrev_b32 v4, 6, v0")
    a("v_and_b32 v1, 63, v0")
    a(f"v_readfirstlane_b32 s{S_WAVE}, v4")
    a("v_lshrrev_b32 v2, 4, v1")
    a("v_and_b32 v3, 15, v1")
    a(f"v_lshlrev_b32 v{V_L16}, 4, v1")
    a("v_mov_b32 v0, 0")
    a(f"s_and_b32 s{S_XCD}, s2, 7")
    a(f"s_lshr_b32 s{T0}, s2, 3")
    a(f"s_and_b32 s{S_HALF}, s{T0}, 1")
    a(f"s_lshr_b32 s{S_I2}, s{T0}, 1")
    a(f"s_mul_i32 s{S_AREA}, s{S_WAVE}, {AREA_SZ}")
    a(f"s_bitcmp1_b32 s{S_I2}, 0")
    a("s_cbranch_scc1 ROLE_B")
    role_a(a, opt)
    role_b(a, opt)
    a.label("FINISH")
    if opt.get("stamp"):
        a("s_waitcnt vmcnt(0)")
        a(f"{TIMER(opt)} s[72:73]")
        a("s_load_dwordx2 s[70:71], s[0:1], 64")
        a("s_waitcnt lgkmcnt(0)")
        srd(a, 76, 70, 1 << 20, STAMP_OFF)
        a("s_lshl_b32 s70, s2, 2")
        a(f"s_add_u32 s70, s70, s{S_WAVE}")
        a("s_lshl_b32 s70, s70, 7")
        regs = [92] + STAMP_REGS[:len(STAMP_NAMES)] + [72]
        a("s_mov_b64 exec, 1")
        for i, r in enumerate(regs):
            a(f"v_mov_b32 v16, s{r}")
            a(f"v_mov_b32 v17, s{r+1}")
            a(f"buffer_store_dwordx2 v[16:17], v0, s[76:79], s70 offen offset:{i*8}")
            a("s_nop 1")
    a.label("DONE")
    a("s_endpgm")
    kernel_desc(a, KNAME, 512, 102, 256)
    return a.text(), ["start"] + stamp_names(opt) + ["end"]

if __name__ == "__main__":
    opt = eval(sys.argv[2]) if len(sys.argv) > 2 else {}
    txt, names = build(opt)
    open(sys.argv[1], "w").write(txt)
    print(len(txt))
```

```python
import sys
from asmlib import *

KNAME = "standalone__weight_only_int_quip__sampling_kernel"
XR_OFF   = 0
H_OFF    = 1 << 20
F1_OFF   = 3 << 20
F2_OFF   = F1_OFF + 16384
EP_OFF   = F1_OFF + 32768
F2A_D    = 32768
PFB = 78
PART_OFF = 4 << 20
WS_BYTES = 8 << 20
STAMP_OFF = 128 << 20
OOB = 0x7f000000
AREA_SZ = 40960
P2R = 20480
P1R = 32768
LDS_BYTES = 163840
RING = 5

S_WAVE, S_EP = 4, 5
SRD_X, SRD_QW, SRD_SC, SRD_Z, SRD_U, SRD_V, SRD_OUT, SRD_WS = 28, 32, 36, 40, 44, 48, 52, 56
S_XCD, S_HALF, S_I2, S_M32, S_N64, S_M64, S_T2, S_KS, S_T, S_TAG = 60, 61, 62, 63, 64, 65, 66, 67, 68, 69
T0, T1, T2, T3 = 70, 71, 72, 73
S_AREA, S_CNT = 74, 75
L0, L1 = 76, 77
QB, GI = 78, 82
FL1, XST_, XRB, RHO = 86, 87, 88, 89
VB = 90
HB = 36
MOTH, MOWN, L2, TAGB, WT = 40, 41, 42, 43, 3
PF1, PF2, FL2, HST = 6, 7, 26, 27
PA, PB, YB, XSO = 94, 95, 96, 97
XO = 98

V_L16, V_X0, V_X1, V_T2, V_Q, V_T, V_VD0, V_VD1, V_TR = 4, 5, 6, 7, 8, 9, 10, 11, 12
WQ, STG, SZ, RAW, OWN = 16, 144, 240, 252, 240
QR = 20
V_U0, V_U1, V_XR0, V_XR1 = 224, 225, 226, 227
TGV = 224
XRN = 16
V_RW, V_RR = 232, 233
V_P1, V_P2, V_PR = 236, 237, 238
RT, PK, PLD = 144, 192, 208
STAMP_REGS = list(range(8, 26, 2)) + [28, 30, 44]
STAMP_NAMES = ["p1_loaded", "p1_done", "q_half", "v1_done", "h1_seen", "q_all", "p2_mfma", "h_flag", "h2_seen", "v_done", "part_st", "p3_mfma"]

def stamp_names(o):
    f = o.get("fine")
    if f == "p3": return ["h_flag", "h2_seen", "v_done"] + [f"pos{p}" for p in range(8)] + ["p3_mfma"]
    if f == "v": return ["p2_mfma", "h_flag"] + [f"vf{n}" for n in (0, 2, 4, 6, 7, 8, 10, 12)] + ["h2_seen", "v_done"]
    if f == "p1": return ["issue0"] + [f"p1s{j}" for j in range(8)] + ["p1_bar", "p1_done", "q_half"]
    if f == "p2": return ["h1_seen", "q_all"] + [f"p2_{p}{h}" for p in range(4) for h in "ab"] + ["p2_mfma", "h_flag"]
    if f == "q": return ["p1_done"] + [f"qp{n}" for n in (0, 3, 7, 11, 15, 19, 23, 27)] + ["v1_done", "h1_seen", "q_all"]
    return STAMP_NAMES
def TIMER(o): return "s_memtime" if o.get("cyc") else "s_memrealtime"
def srdr(b): return f"s[{b}:{b+3}]"
def vreg(k, j, off, n):
    if j < 10: return ar(64 + 16*j + off, n)
    if j < 14: return ar(16*(j-10) + off, n)
    return vr(WQ + 4*k.HRN + 16*(j-14) + off, n)
def step_base(k, d, ns):
    k(f"s_mul_i32 s{d}, s{S_KS}, {112-4*ns}")
    k(f"s_mul_i32 s{T1}, s{S_WAVE}, {ns}")
    k(f"s_add_u32 s{d}, s{d}, s{T1}")

class K:
    uid = 0
    def __init__(self, a, opt):
        self.a = a; self.o = opt
        self.vm = []; self.done = 0
        self.stream = []; self.sp = 0; self.gates = set()
        self.L = opt.get("L", 12)
    def __call__(self, s): self.a(s)
    def vmem(self, s, tag):
        self.a(s); self.vm.append(tag)
    def isdone(self, tag):
        return tag in self.vm and tag not in [t for t, _, _ in self.stream[self.sp:]] and self.done > max(i for i, t in enumerate(self.vm) if t == tag)
    def wait(self, tag):
        while tag in [t for t, _, _ in self.stream[self.sp:]]:
            assert self.issue_one(force=True), f"gate closed while waiting for {tag}: {self.stream[self.sp]}"
        idx = max(i for i, t in enumerate(self.vm) if t == tag)
        if idx < self.done: return
        n = len(self.vm) - 1 - idx
        self.a(f"s_waitcnt vmcnt({min(n, 63)})")
        self.done = idx + 1
    def add(self, tag, fn, *gates): self.stream.append((tag, fn, [g for g in gates if g]))
    def issue_one(self, force=False):
        if self.sp >= len(self.stream): return False
        tag, fn, gates = self.stream[self.sp]
        if any(g not in self.gates for g in gates): return False
        if not force and len(self.vm) - self.done >= self.L: return False
        self.sp += 1
        fn(tag)
        return True
    def pump(self, n=99):
        while n > 0 and self.issue_one(): n -= 1
    def open(self, g): self.gates.add(g)
    def fill(self, items): self.fq = getattr(self, "fq", []) + list(items)
    def drain(self, n=999):
        q = getattr(self, "fq", [])
        while q and n > 0:
            self.a(q.pop(0)); n -= 1
    def stamp(self, name):
        if not self.o.get("stamp"): return
        names = stamp_names(self.o)
        if name not in names: return
        r = STAMP_REGS[names.index(name)]
        self.a(f"{TIMER(self.o)} s[{r}:{r+1}]")
        self.a("s_waitcnt lgkmcnt(0)")
    def lab(self, p):
        K.uid += 1
        return f"{p}_{K.uid}"
    def poll_item(self, voff, soff):
        return lambda tag: self.vmem(f"buffer_load_dword v{V_PR}, {voff}, {srdr(SRD_WS)}, {soff} offen sc1", tag)
    def poll_check(self, tag, voff, soff):
        self.wait(tag)
        L = self.lab("POLL"); E = self.lab("POLLX")
        self(f"v_cmp_ne_u32 vcc, s{S_TAG}, v{V_PR}")
        self(f"s_mov_b32 s{S_CNT}, 0")
        self(f"s_cbranch_vccz {E}")
        self.a.label(L)
        self(f"s_sleep {self.o.get('nap', 8)}")
        self(f"buffer_load_dword v{V_PR}, {voff}, {srdr(SRD_WS)}, {soff} offen sc1")
        self(f"s_add_u32 s{S_CNT}, s{S_CNT}, 1")
        self("s_waitcnt vmcnt(0)")
        self(f"v_cmp_ne_u32 vcc, s{S_TAG}, v{V_PR}")
        self(f"s_cmp_gt_u32 s{S_CNT}, 0x40000")
        self(f"s_cbranch_scc1 {E}")
        self(f"s_cbranch_vccnz {L}")
        self.a.label(E)
    def flag(self, soff, who=0):
        self(f"s_cmp_eq_u32 s{S_WAVE}, {who}")
        self(f"s_cselect_b32 s{T0}, 0, {hex(OOB)}")
        self(f"v_mov_b32 v{V_T2}, s{S_TAG}")
        self(f"v_mov_b32 v{V_PR+1}, s{T0}")
        self("s_barrier")
        self("s_mov_b64 exec, 1")
        self.vmem(f"buffer_store_dword v{V_T2}, v{V_PR+1}, {srdr(SRD_WS)}, {soff} offen sc1", "flag")
        self("s_mov_b64 exec, -1")

def dma_voff(k, d0, d1, rowbytes, s_add):
    k(f"v_lshrrev_b32 v{d0}, 3, v1")
    k(f"v_and_b32 v{d1}, 2, v{d0}")
    k(f"v_mul_u32_u24 v{d0}, {rowbytes}, v{d0}")
    k(f"v_and_b32 v{V_T2}, 7, v1")
    k(f"v_xor_b32 v{d1}, v{d1}, v{V_T2}")
    k(f"v_lshl_add_u32 v{d0}, v{d1}, 4, v{d0}")
    k(f"v_add_u32 v{d0}, s{s_add}, v{d0}")
    k(f"v_xor_b32 v{d1}, 64, v{d0}")

def tr_addrs(k):
    k("v_lshrrev_b32 v12, 2, v3")
    k("v_lshrrev_b32 v13, 1, v12")
    k("v_and_b32 v14, 1, v2")
    k("v_lshl_add_u32 v13, v14, 1, v13")
    k("v_lshl_add_u32 v12, v2, 3, v12")
    k("v_lshlrev_b32 v12, 7, v12")
    k("v_lshl_add_u32 v12, v13, 5, v12")
    k("v_and_b32 v13, 3, v1")
    k("v_lshl_add_u32 v12, v13, 3, v12")
    k(f"v_add_u32 v12, s{S_AREA}, v12")
    k("v_xor_b32 v13, 32, v12")
    k("v_xor_b32 v14, 64, v12")
    k("v_xor_b32 v15, 96, v12")

def role_ids(k):
    k(f"s_lshl_b32 s{S_M64}, s{S_HALF}, 1")
    k(f"s_lshr_b32 s{T0}, s{S_I2}, 1")
    k(f"s_mul_i32 s{S_T2}, s{S_XCD}, 7")
    k(f"s_add_u32 s{S_T2}, s{S_T2}, s{T0}")

def q_setup(k, oob, order=(0, 1, 2, 3)):
    if oob:
        k(f"s_cmp_lt_u32 s{S_I2}, 14")
        k(f"s_cselect_b32 s{T2}, 0, {hex(OOB)}")
    k(f"v_mul_u32_u24 v{V_Q}, {4*14336}, v2")
    k(f"v_lshl_add_u32 v{V_Q}, v3, 4, v{V_Q}")
    k(f"s_lshl_b32 s{T0}, s{S_T2}, 8")
    if oob: k(f"s_add_u32 s{T0}, s{T0}, s{T2}")
    k(f"v_add_u32 v{V_Q}, s{T0}, v{V_Q}")
    k(f"v_mul_u32_u24 v{V_T}, 7168, v2")
    k(f"v_lshl_add_u32 v{V_T}, v3, 3, v{V_T}")
    k(f"s_mul_i32 s{T0}, s{S_WAVE}, {4*7168}")
    k(f"s_lshl_b32 s{T1}, s{S_T2}, 7")
    k(f"s_add_u32 s{T0}, s{T0}, s{T1}")
    if oob: k(f"s_add_u32 s{T0}, s{T0}, s{T2}")
    k(f"v_add_u32 v{V_T}, s{T0}, v{V_T}")
    k(f"s_lshl_b32 s{T1}, s{S_HALF}, 1")
    for j in range(4):
        k(f"s_xor_b32 s{GI+j}, s{T1}, {order[j]}")
        k(f"s_lshl_b32 s{T0}, s{S_WAVE}, 2")
        k(f"s_add_u32 s{T0}, s{T0}, s{GI+j}")
        k(f"s_mul_i32 s{QB+j}, s{T0}, {64*14336}")

def epoch_load(k):
    k(f"s_lshl_b32 s{T0}, s{S_HALF}, 7")
    k(f"s_add_u32 s{T0}, s{T0}, {hex(EP_OFF)}")
    k(f"s_load_dword s{S_EP}, s[24:25], s{T0}")

def tag_calc(k):
    k("s_waitcnt lgkmcnt(0)")
    k(f"s_mul_i32 s{S_TAG}, s{S_EP}, 0x9e3779b1")
    k(f"s_add_u32 s{S_TAG}, s{S_TAG}, 0x7f4a7c15")
    k(f"s_lshr_b32 s{T0}, s{S_TAG}, 15")
    k(f"s_xor_b32 s{S_TAG}, s{S_TAG}, s{T0}")
    k(f"s_mul_i32 s{S_TAG}, s{S_TAG}, 0x85ebca6b")

def red_addrs(k, add):
    k(f"s_add_u32 s{T0}, s{S_AREA}, {add}")
    k(f"v_add_u32 v{V_RW}, s{T0}, v{V_L16}")
    for p in range(3):
        k(f"s_sub_u32 s{T1}, s{S_WAVE}, {p+1}")
        k(f"s_and_b32 s{T1}, s{T1}, 3")
        k(f"s_mul_i32 s{T1}, s{T1}, {AREA_SZ}")
        k(f"s_add_u32 s{T1}, s{T1}, {add+p*4096}")
        k(f"v_add_u32 v{V_RR+p}, s{T1}, v{V_L16}")

def v_setup(k):
    k(f"s_and_b32 s{S_KS}, s{S_XCD}, 1")
    k(f"s_lshr_b32 s{T0}, s{S_XCD}, 1")
    k(f"s_mul_i32 s{S_T}, s{T0}, 14")
    k(f"s_xor_b32 s{T0}, s{S_I2}, s{S_KS}")
    k(f"s_add_u32 s{S_T}, s{S_T}, s{T0}")
    k(f"s_lshl_b32 s{T0}, s{S_T}, 7")
    dma_voff(k, V_VD0, V_VD1, 7168, T0)
    step_base(k, T0, k.NS)
    k(f"s_mul_i32 s{VB}, s{T0}, {32*7168}")
    k(f"v_min_u32 v{V_P2}, {k.NS//2-1}, v1")
    k(f"v_lshlrev_b32 v{V_P2}, 7, v{V_P2}")
    k(f"s_lshr_b32 s{T0}, s{T0}, 1")
    k(f"s_mul_i32 s{T1}, s{S_HALF}, 56")
    k(f"s_add_u32 s{T1}, s{T0}, s{T1}")
    k(f"s_lshl_b32 s{T1}, s{T1}, 7")
    k(f"s_add_u32 s{PF2}, s{T1}, {hex(F2_OFF)}")
    if k.role == "A":
        k(f"s_add_u32 s{PF1}, s{PF2}, {F2A_D}")
        step_base(k, T0, 28-k.NS)
        k(f"s_mul_i32 s{PFB}, s{T0}, {32*7168}")
        k(f"s_lshl_b32 s{T0}, s{S_KS}, 8")
        k(f"s_add_u32 s{PFB}, s{PFB}, 128")
        k(f"s_sub_u32 s{PFB}, s{PFB}, s{T0}")
        k(f"s_and_b32 s{T0}, s{S_T}, 7")
        k(f"s_cmp_eq_u32 s{T0}, {3 if k.o.get('deleg', 1) else 9}")
        k(f"s_cselect_b32 s{T0}, {hex(OOB)}, 0")
        k(f"v_add_u32 v{V_P1}, s{T0}, v{V_VD0}")

def poll1_setup(k):
    k(f"v_min_u32 v{V_P1}, 15, v1")
    k(f"v_lshlrev_b32 v{V_P1}, 7, v{V_P1}")
    k(f"s_lshl_b32 s{T0}, s{S_HALF}, 13")
    k(f"s_lshl_b32 s{T1}, s{S_WAVE}, 11")
    k(f"s_add_u32 s{T0}, s{T0}, s{T1}")
    k(f"s_add_u32 s{PF1}, s{T0}, {hex(F1_OFF)}")

def xpf_item(k, i):
    def f(tag):
        if i == 0:
            k(f"s_lshr_b32 s{L1}, s{S_I2}, 1")
            k(f"s_lshl_b32 s{L0}, s{S_HALF}, 3")
            k(f"s_add_u32 s{L0}, s{L0}, s{L1}")
            k(f"s_lshl_b32 s{L0}, s{L0}, 2")
            k(f"s_add_u32 s{L0}, s{L0}, s{S_WAVE}")
            k(f"s_lshl_b32 s{L0}, s{L0}, 13")
        if i == 4: k(f"s_add_u32 s{L0}, s{L0}, 4096")
        if i == 8:
            k(f"s_lshl_b32 s{L0}, s{S_HALF}, 5")
            k(f"s_add_u32 s{L0}, s{L0}, s{S_WAVE}")
            k(f"s_add_u32 s{L0}, s{L0}, 28")
            k(f"s_lshl_b32 s{L0}, s{L0}, 3")
            k(f"s_add_u32 s{L0}, s{L0}, s{L1}")
            k(f"s_lshl_b32 s{L0}, s{L0}, 10")
        k.vmem(f"buffer_load_dwordx4 {vr(STG+4*(i % 4),4)}, v{V_L16}, {srdr(SRD_WS)}, s{L0} offen offset:{(i % 4)*1024} sc1", tag)
    k.add("xpf", f, "h1")

def p2_setup(k):
    k(f"s_add_u32 s{XRB}, s{S_WAVE}, s{S_T2}")
    k(f"s_lshl_b32 s{T0}, s{S_M64}, 4")
    k(f"s_add_u32 s{T0}, s{T0}, s{S_WAVE}")
    k(f"s_lshl_b32 s{T0}, s{T0}, 13")
    for j in range(4):
        k(f"s_lshl_b32 s{T1}, s{GI+j}, 11")
        k(f"s_add_u32 s{XO+j}, s{T0}, s{T1}")
    poll1_setup(k)
    k(f"s_and_b32 s{T1}, s{XRB}, 3")
    k(f"s_lshl_b32 s{T2}, s{S_M64}, 2")
    k(f"s_add_u32 s{T2}, s{T2}, s{T1}")
    k(f"s_mul_i32 s{T2}, s{T2}, 112")
    k(f"s_lshl_b32 s{T3}, s{S_T2}, 1")
    k(f"s_add_u32 s{T2}, s{T2}, s{T3}")
    k(f"s_lshl_b32 s{T2}, s{T2}, 10")
    k(f"s_add_u32 s{HST}, s{T2}, {hex(H_OFF)}")
    k(f"s_mul_i32 s{T0}, s{S_HALF}, 56")
    k(f"s_add_u32 s{FL2}, s{T0}, s{S_T2}")
    k(f"s_lshl_b32 s{FL2}, s{FL2}, 7")
    k(f"s_add_u32 s{FL2}, s{FL2}, {hex(F2_OFF)}")
    k(f"s_add_u32 s{FL1}, s{FL2}, {F2A_D}")

def p3_setup(k):
    step_base(k, T0, k.NS)
    k(f"s_lshl_b32 s{T0}, s{T0}, 10")
    k(f"s_add_u32 s{T0}, s{T0}, {hex(H_OFF)}")
    for r, (lo, hi, d) in enumerate(vruns(k)):
        k(f"s_mul_i32 s{T1}, s{S_HALF}, {d*1024}")
        k(f"s_add_u32 s{T1}, s{T1}, {lo*1024}")
        k(f"s_add_u32 s{HB+r}, s{T0}, s{T1}")
    k(f"s_lshl_b32 s{T0}, s{S_HALF}, 1")
    k(f"s_add_u32 s{MOWN}, s{T0}, {1 if k.role == 'A' else 0}")
    k(f"s_xor_b32 s{MOTH}, s{MOWN}, 1")
    k(f"s_lshl_b32 s{MOWN}, s{MOWN}, 2")
    k(f"s_lshl_b32 s{MOTH}, s{MOTH}, 2")
    k(f"s_add_u32 s{WT}, s{S_WAVE}, s{S_T}")
    k(f"s_mul_i32 s{T0}, s{S_HALF}, 56")
    k(f"s_add_u32 s{T0}, s{T0}, s{S_T}")
    k(f"s_lshl_b32 s{T0}, s{T0}, 1")
    k(f"s_add_u32 s{T0}, s{T0}, s{S_KS}")
    k(f"s_lshl_b32 s{T0}, s{T0}, 2")
    k(f"s_add_u32 s{T0}, s{T0}, s{S_WAVE}")
    k(f"s_xor_b32 s{T1}, s{T0}, 4")
    k(f"s_lshl_b32 s{PA}, s{T0}, 12")
    k(f"s_add_u32 s{PA}, s{PA}, {hex(PART_OFF)}")
    k(f"s_lshl_b32 s{PB}, s{T1}, 12")
    k(f"s_add_u32 s{PB}, s{PB}, {hex(PART_OFF)}")
    k(f"s_mul_i32 s{T0}, s{S_EP}, 37")
    k(f"s_add_u32 s{T0}, s{T0}, 11")
    for i in range(4):
        k(f"s_add_u32 s{T1}, s{T0}, {64*i}")
        k(f"s_and_b32 s{T1}, s{T1}, 0xff")
        k(f"v_mov_b32 v{TGV+i}, s{T1}")
        if i == 0: k(f"s_mov_b32 s{TAGB}, s{T1}")
        else:
            k(f"s_lshl_b32 s{T1}, s{T1}, {8*i}")
            k(f"s_or_b32 s{TAGB}, s{TAGB}, s{T1}")
    k(f"v_mov_b32 v{TGV+4}, 0xff")
    k(f"v_mov_b32 v{TGV+5}, 0x0c0c0400")
    k(f"v_mov_b32 v{TGV+6}, 0x04000c0c")
    k(f"s_and_b32 s{T1}, s{WT}, 3")
    k(f"s_add_u32 s{T1}, s{T1}, s{MOWN}")
    k(f"s_mul_i32 s{T1}, s{T1}, {16*7168}")
    k(f"s_lshl_b32 s{T0}, s{S_T}, 7")
    k(f"s_add_u32 s{YB}, s{T1}, s{T0}")
    k("v_mul_u32_u24 v5, 7168, v3")
    k("v_and_b32 v6, 1, v2")
    k("v_lshl_add_u32 v5, v6, 5, v5")
    k("v_lshrrev_b32 v6, 1, v2")
    k("v_lshl_add_u32 v5, v6, 4, v5")

def pkadd(k, d, s, n=8):
    for q in range(n):
        k(f"v_pk_add_f32 v[{d+2*q}:{d+2*q+1}], v[{d+2*q}:{d+2*q+1}], v[{s+2*q}:{s+2*q+1}]")

def sz_items(k, *g):
    k.add("sz", lambda t: k.vmem(f"buffer_load_dwordx2 v[{RAW}:{RAW+1}], v{V_T}, {srdr(SRD_SC)}, 0 offen", t), *g)
    k.add("sz", lambda t: k.vmem(f"buffer_load_dwordx2 v[{RAW+2}:{RAW+3}], v{V_T}, {srdr(SRD_Z)}, 0 offen", t))
def qreg(n): return 80 + 4*n if n < 16 else STG + 4*((n-16) % QR)
def q_item(k, n, fl, *g):
    st, i = n//8, n % 8
    j, u = st//2, st % 2
    ro = 32*u + (i if i < 4 else 12+i)
    def f(tag):
        so = f"s{QB+j}"
        if ro:
            k(f"s_add_u32 s{L0}, s{QB+j}, {hex(ro*14336)}")
            so = f"s{L0}"
        k.vmem(f"buffer_load_dwordx4 {vr(qreg(n),4)}, v{V_Q}, {srdr(SRD_QW)}, {so} offen {fl}", tag)
    k.add(f"q{n//2}", f, f"qfree{n-QR}" if n >= QR+16 else None, *g)
def xr_item(k, p, st):
    j, u = st//2, st % 2
    def f(tag):
        if st == 0:
            k(f"s_add_u32 s{L1}, s{XRB}, {(p % 4)+1}")
            k(f"s_and_b32 s{L1}, s{L1}, 3")
            if p >= 4: k(f"s_add_u32 s{L1}, s{L1}, 4")
            k(f"s_lshl_b32 s{L1}, s{L1}, 15")
        if u == 0:
            k(f"s_add_u32 s{L0}, s{XO+j}, s{L1}")
        k.vmem(f"buffer_load_dwordx4 {ar(((p*8+st) % XRN)*4,4)}, v{V_L16}, {srdr(SRD_WS)}, s{L0} offen offset:{u*1024} sc1", tag)
    k.add(f"x{p}_{st}", f, "h1", f"xfree{p*8+st-XRN}" if p*8+st >= XRN else None)
def vruns(k):
    out = []
    for lo, hi in ((0, k.nv1), (k.nv1, k.NS)):
        if hi == lo: continue
        assert (hi - lo) % 2 == 0
        m = (hi - lo)//2
        out += [(lo, lo+m, m), (lo+m, hi, -m)]
    return out
def rowoff(st): return 64*(st >> 1) + 8*(st & 1)
def v_item(k, n, q, *g):
    d = [d for lo, hi, d in vruns(k) if lo <= n < hi][0]
    def f(tag):
        if q == 0:
            k(f"s_mul_i32 s{VB+1}, s{S_HALF}, {(rowoff(n+d) - rowoff(n))*7168}")
            k(f"s_add_u32 s{VB+1}, s{VB+1}, s{VB}")
        k(f"s_add_u32 m0, s{S_AREA}, {(n % RING)*4096 + q*1024}")
        k(f"s_add_u32 s{L0}, s{VB+1}, {hex((rowoff(n) + 16*q)*7168)}")
        k.vmem(f"buffer_load_dwordx4 v{V_VD0+(q&1)}, {srdr(SRD_V)}, s{L0} offen {k.o.get('vfl'+k.role,'') if n >= k.NS//2 else ''} lds", tag)
    k.add(f"v{n}", f, f"vfree{n-RING}" if (n >= RING and q == 0) else None, *g)
def h_item(k, p, j):
    n = p*k.NS+j
    r, lo = [(r, lo) for r, (lo, hi, d) in enumerate(vruns(k)) if lo <= j < hi][0]
    def f(tag):
        if j == 0:
            k(f"s_add_u32 s{L2}, s{WT}, {(p % 4)+1}")
            k(f"s_and_b32 s{L2}, s{L2}, 3")
            k(f"s_add_u32 s{L2}, s{L2}, s{MOTH if p < 4 else MOWN}")
            k(f"s_mul_i32 s{L2}, s{L2}, {112*1024}")
        if j == lo: k(f"s_add_u32 s{L0}, s{L2}, s{HB+r}")
        elif (j - lo) % 4 == 0: k(f"s_add_u32 s{L0}, s{L0}, 4096")
        k.vmem(f"buffer_load_dwordx4 {vr(WQ+4*(n % k.HRN),4)}, v{V_L16}, {srdr(SRD_WS)}, s{L0} offen offset:{((j-lo) % 4)*1024} {k.o.get('hfl', 'sc1')}", tag)
    k.add(f"h{p}_{j}", f, "h2a" if (k.role == "A" and p < 4) else "h2")
def pld_ins(jj):
    return f"buffer_load_dwordx4 {vr(PLD+jj*4,4)}, v{V_L16}, {srdr(SRD_WS)}, s{PB} offen offset:{jj*1024} sc1"

def sz_prep(k, j):
    k(f"s_lshl_b32 s{T0}, s{GI+j}, 6")
    k(f"v_lshl_add_u32 v{V_PR+1}, v3, 2, s{T0}")
    for q in range(4):
        k(f"ds_bpermute_b32 v{248+q}, v{V_PR+1}, v{RAW+q}")
    k(f"s_mov_b32 s{T2}, 0x71800000")
    k(f"s_mov_b32 s{T3}, 0xa7000000")
    k("s_waitcnt lgkmcnt(0)")
    for jj in range(4):
        if jj % 2 == 0:
            k(f"v_lshlrev_b32 v{SZ+jj}, 16, v{248+jj//2}")
            k(f"v_lshlrev_b32 v{SZ+4+jj}, 16, v{250+jj//2}")
        else:
            k(f"v_and_b32 v{SZ+jj}, 0xffff0000, v{248+jj//2}")
            k(f"v_and_b32 v{SZ+4+jj}, 0xffff0000, v{250+jj//2}")
    for jj in range(4):
        k(f"v_mul_f32 v{SZ+4+jj}, v{SZ+4+jj}, v{SZ+jj}")
    for jj in range(4):
        k(f"v_mul_f32 v{SZ+jj}, s{T2}, v{SZ+jj}")
        k(f"v_mul_f32 v{SZ+4+jj}, s{T3}, v{SZ+4+jj}")

def events(k):
    if "xrst" in k.vm and "f1" not in k.gates and k.isdone("xrst"):
        k.flag(f"s{FL1}"); k.open("f1"); k.L = k.o.get("Lf1", 24)
    if "f1" in k.gates and "f1done" not in k.gates and k.isdone("flag"):
        k.open("f1done"); k.L = k.o.get("L", 12)
    if "hflag" in k.gates and "f2done" not in k.gates and k.isdone("flag"):
        k.open("f2done"); k.L = k.o.get("LV", 12)
    if "h1" not in k.gates and k.isdone("poll1"):
        k.poll_check("poll1", f"v{V_P1}", f"s{PF1}"); k.open("h1"); k.stamp("h1_seen")
    if "h2a" not in k.gates and k.isdone("poll2a"):
        k.poll_check("poll2a", f"v{V_P2}", f"s{PF1}"); k.open("h2a"); k.stamp("h2_seen")
    if "h2" not in k.gates and k.isdone("poll2"):
        k.poll_check("poll2", f"v{V_P2}", f"s{PF2}"); k.open("h2"); k.stamp("h2_seen" if k.role == "B" else "q_all")

def need(k, tag):
    while tag in [t for t, _, _ in k.stream[k.sp:]]:
        if k.issue_one(force=True): continue
        g = [g for g in k.stream[k.sp][2] if g not in k.gates][0]
        k.wait({"h1": "poll1", "h2": "poll2", "h2a": "poll2a"}[g])
        events(k)
        if k.o.get("gpump", 1): k.pump()
    k.wait(tag)
    events(k)

def dequant_pair(k, pr):
    st, p = pr//4, pr % 4
    if pr % 8 == 0 and f"sz{pr//8}" not in k.gates: sz_prep(k, pr//8)
    need(k, f"q{pr}")
    k.stamp(f"qp{pr}")
    k.pump()
    r0, r1 = qreg(2*pr), qreg(2*pr+1)
    for r in (r0, r1):
        for hh in range(2):
            q = r+2*hh
            k(f"v_pk_fma_f32 v[{q}:{q+1}], v[{q}:{q+1}], v[{SZ+2*hh}:{SZ+2*hh+1}], v[{SZ+4+2*hh}:{SZ+4+2*hh+1}]")
    for jj in range(4):
        k(f"v_cvt_pk_bf16_f32 v{WQ+(st*4+jj)*4+p}, v{r0+jj}, v{r1+jj}")
    k.open(f"qfree{2*pr}"); k.open(f"qfree{2*pr+1}")

def v_fetch(k, n):
    need(k, f"v{n}")
    k.stamp(f"vf{n}")
    if n >= 1 and f"vfree{n-1}" not in k.gates:
        k("s_waitcnt lgkmcnt(0)")
        k.open(f"vfree{n-1}")
    for jj in range(4):
        for h in range(2):
            k(f"ds_read_b64_tr_b16 {vreg(k, n, jj*4+2*h, 2)}, v{V_TR+jj} offset:{(n % RING)*4096 + h*512}")
    k.pump()

def accname(p, jj, own):
    return vr(OWN+jj*4, 4) if own else ar(224+(p % 2)*16+jj*4, 4)
def red_read(k, off):
    for p in range(3):
        for jj in range(4):
            k(f"ds_read_b128 {vr(RT+(p*4+jj)*4,4)}, v{V_RR+p} offset:{off+jj*1024}")

def vpf_item(k, st, q):
    def f(tag):
        if q == 0:
            k(f"s_mul_i32 s{VB+1}, s{S_HALF}, {(rowoff(st+14-k.NS//2) - rowoff(st))*7168}")
            k(f"s_add_u32 s{VB+1}, s{VB+1}, s{PFB}")
        k(f"s_add_u32 s{L0}, s{VB+1}, {hex((rowoff(st) + 16*q)*7168)}")
        k.vmem(f"buffer_load_dwordx4 {vr(STG+4*q,4)}, v{V_P1}, {srdr(SRD_V)}, s{L0} offen", tag)
    k.add(f"pf{st}", f)

def h_stream(k, o):
    for p in range(8):
        for j in range(k.NS):
            if k.role == "A" and p == 3 and j == o.get("p2atA", 1):
                k.add("poll2", k.poll_item(f"v{V_P2}", f"s{PF2}"))
            if p == 7 and j == o.get("tcat", 4):
                for jj in range(4):
                    k.add("pld", (lambda jj: lambda t: k.vmem(pld_ins(jj), t))(jj))
            h_item(k, p, j)

def tail_stream(k, nv1, o, role):
    for p in range(8):
        for st in range(8): xr_item(k, p, st)
    vpre, vmid = o.get("vpre"+role, 4), o.get("vmid"+role, 10)
    p2back = o.get("p2back"+role, 8)
    rest = [(n, q) for n in range(nv1, k.NS) for q in range(4)]
    for i, (n, q) in enumerate(rest):
        if i == len(rest) - p2back:
            k.add("poll2", k.poll_item(f"v{V_P2}", f"s{PF2}"), "hflag")
        v_item(k, n, q, "f2bar" if (i == 0 and o.get("nb", 1)) else None, "hstored" if i == vpre else None, "hflag" if i == vmid else None)
    if p2back == 0: k.add("poll2", k.poll_item(f"v{V_P2}", f"s{PF2}"), "hflag")
    h_stream(k, o)

def q_stream(k, lo, hi, o, role):
    p1pos = o.get("p1pos"+role, 63)
    for n in range(lo, hi):
        if n == p1pos: k.add("poll1", k.poll_item(f"v{V_P1}", f"s{PF1}"), "setup")
        fl = o.get("qfl", "") if (role == "A" or n >= 32) else ""
        q_item(k, n, fl, "xstored" if (role == "A" and n == o.get("qpreA", 99)) else None)

PKA = 0
def adds(d, s_, n=16):
    if PKA: return [f"v_pk_add_f32 v[{d+q}:{d+q+1}], v[{d+q}:{d+q+1}], v[{s_+q}:{s_+q+1}]" for q in range(0, n, 2)]
    return [f"v_add_f32 v{d+q}, v{d+q}, v{s_+q}" for q in range(n)]
def rreads(off): return [f"ds_read_b128 {vr(RT+(p*4+jj)*4,4)}, v{V_RR+p} offset:{off+jj*1024}" for p in range(3) for jj in range(4)]
def hpack(dst, src):
    return [f"v_cvt_pk_bf16_f32 v{dst+f*4+rr*2+hh}, v{src+(2*hh)*4+2*f+rr}, v{src+(2*hh+1)*4+2*f+rr}" for f in range(2) for rr in range(2) for hh in range(2)]

def p2_main(k, nv1, o):
    k.stamp("q_all")
    nb = o.get("nb", 1)
    assert nv1 == 0
    for p in range(8):
        own = (p % 4 == 3)
        for st in range(8):
            need(k, f"x{p}_{st|1 if o.get('w2x', 0) else st}")
            if st == 0: k.stamp(f"p2_{p//2}{'ab'[p % 2]}")
            if p % 4 != 0 and st == 2:
                k.fill(f"ds_write_b128 v{V_RW}, {accname(p-1, jj, False)} offset:{(0 if (nb and p < 4) else P2R)+((p-1) % 4)*4096+jj*1024}" for jj in range(4))
            if p == 7 and st == 3:
                k.fill(["s_waitcnt lgkmcnt(0)", "s_barrier"] + rreads(P2R) + ["s_waitcnt lgkmcnt(4)"] + adds(RT, RT+16) + ["s_waitcnt lgkmcnt(0)"] + adds(RT, RT+32))
            if (p, st) == tuple(o.get("r0at", (3, 6))):
                k.fill(["s_waitcnt lgkmcnt(0)", "s_barrier"] + rreads(0 if nb else P2R) + ["s_waitcnt lgkmcnt(4)"] + adds(RT, RT+16) + ["s_waitcnt lgkmcnt(0)"] + ([] if nb else ["s_barrier"]) + adds(RT, RT+32))
            if (p, st) == tuple(o.get("hpat", (4, 2))):
                k.fill(adds(RT, OWN) + hpack(PK+8, RT))
            if p == 5 and st == 1 and not nb: k.drain()
            if (p, st) == tuple(o.get("hs0at", (5, 1))):
                k.drain()
                k.vmem(f"buffer_store_dwordx4 v[{PK+8}:{PK+11}], v{V_L16}, {srdr(SRD_WS)}, s{HST} offen sc1", "hst0")
                k.vmem(f"buffer_store_dwordx4 v[{PK+12}:{PK+15}], v{V_L16}, {srdr(SRD_WS)}, s{HST} offen offset:1024 sc1", "hst0")
                k(f"s_add_u32 s{HST}, s{HST}, {4*112*1024}")
                k.L += 2
            if (p, st) == tuple(o.get("f2at", (6, 6))):
                k.wait("hst0")
                k.flag(f"s{FL1}")
                k.open("f2bar")
                k.stamp("v1_done")
                k.L -= 1
            for jj in range(4):
                acc = accname(p, jj, own)
                k(f"v_mfma_f32_16x16x32_bf16 {acc}, {vr(WQ+(st*4+jj)*4,4)}, {ar(((p*8+st) % XRN)*4,4)}, {'0' if st == 0 else acc}")
                if jj == 0: k.pump()
                if p == 7: k.drain(1 if st == 2 else 3)
                elif jj: k.drain(o.get('fn2', 3) if p in (3, 4) else 2)
            k.open(f"xfree{p*8+st}")
        if p == 6: k.drain()
    k.drain()
    k.stamp("p2_mfma")
    k("s_nop 4")
    pkadd(k, OWN, RT)
    for x in hpack(PK, OWN): k(x)
    k.vmem(f"buffer_store_dwordx4 v[{PK}:{PK+3}], v{V_L16}, {srdr(SRD_WS)}, s{HST} offen sc1", "hst")
    k.vmem(f"buffer_store_dwordx4 v[{PK+4}:{PK+7}], v{V_L16}, {srdr(SRD_WS)}, s{HST} offen offset:1024 sc1", "hst")
    k.open("hstored")
    k.L = o.get("L", 12) + 4
    k.pump()
    p3_setup(k)
    k.wait("hst")
    k.flag(f"s{FL2}")
    k.stamp("h_flag")
    k.open("hflag")
    k.L = o.get("Lf2", 20)
    k.pump()
    for n in range(nv1, k.NS): v_fetch(k, n)

def p3_main(k, o):
    FN = o.get("fn", 2)
    L3, LH = o.get("L3", 12), min(o.get("L3hi"+k.role, 12), k.HRN-5)
    hiat = o.get("hiat", 2)
    def tagcheck():
        out = []
        for jj in range(4):
            r = PLD+jj*4
            out += [f"v_perm_b32 v{PK}, v{r+1}, v{r}, v{TGV+5}", f"v_perm_b32 v{PK+1}, v{r+3}, v{r+2}, v{TGV+6}",
                    f"v_or_b32 v{PK}, v{PK}, v{PK+1}", f"v_xor_b32 v{PK+2+jj}, s{TAGB}, v{PK}"]
        return out + [f"v_or3_b32 v{PK}, v{PK+2}, v{PK+3}, v{PK+4}", f"v_or_b32 v{PK}, v{PK}, v{PK+5}", f"v_cmp_ne_u32 vcc, 0, v{PK}"]
    k.L = o.get("L3", 12)
    k("s_waitcnt lgkmcnt(0)")
    k.stamp("v_done")
    for p in range(8):
        own = (p % 4 == 3)
        off = 0 if p < 4 else P2R
        for j in range(k.NS):
            n = p*k.NS+j
            need(k, f"h{p}_{j|1 if o.get('w2', 0) else j}")
            if j == 2 and p % 4 != 0:
                for jj in range(4):
                    k.fill([f"ds_write_b128 v{V_RW}, {accname(p-1, jj, False)} offset:{off+((p-1) % 4)*4096+jj*1024}"] + [""]*(FN-1))
            if own and j == o.get('barat'+k.role, 4 if k.NS >= 14 else 3):
                k.fill(["s_waitcnt lgkmcnt(0)", "s_barrier"] + rreads(off) + ["s_waitcnt lgkmcnt(4)"] + adds(RT, RT+16) + ["s_waitcnt lgkmcnt(0)"] + adds(RT, RT+32))
            if p == 7 and j == o.get("tcat", 4):
                assert k.isdone("pld")
                k.fill(tagcheck())
            if p == 7 and j == max(o.get("tcat", 4), o.get('barat'+k.role, 4 if k.NS >= 14 else 3)): k.fill(adds(PLD, RT))
            if p == hiat and j == 0: k.L = LH
            if p == 4 and j == 2:
                k.drain()
                k.fill(adds(RT, OWN) + [f"v_bfi_b32 v{RT+r}, v{TGV+4}, v{TGV+(r % 4)}, v{RT+r}" for r in range(16)])
            for jj in range(4):
                acc = accname(p, jj, own)
                k(f"v_mfma_f32_16x16x32_bf16 {acc}, {vreg(k, j, jj*4, 4)}, {vr(WQ+4*(n % k.HRN),4)}, {'0' if j == 0 else acc}")
                for _ in range(o.get("pad", 0)): k(f"s_mov_b32 s{T2}, 0x12345678")
                if jj == 0: k.pump(o.get("pumpn", 2) if k.L > L3 else 99)
                else: k.drain(o.get("fn7", 3) if p == 7 else FN)
            if p == 4 and j == 7:
                k.drain()
                for jj in range(4):
                    k.vmem(f"buffer_store_dwordx4 {vr(RT+jj*4,4)}, v{V_L16}, {srdr(SRD_WS)}, s{PA} offen offset:{jj*1024} sc1", "pst")
                k.L = LH + 4
                k.stamp("part_st")
            if "pst" in k.vm and k.isdone("pst"): k.L = o.get("L3", 12)
            if j == 0: k.stamp(f"pos{p}")
    k.drain()
    L = k.lab("RETRY"); E = k.lab("RETRYX")
    k(f"s_mov_b32 s{S_CNT}, 0")
    k("s_nop 2")
    k(f"s_cbranch_vccz {E}")
    k.a.label(L)
    for jj in range(4): k(pld_ins(jj))
    k(f"s_add_u32 s{S_CNT}, s{S_CNT}, 1")
    k("s_waitcnt vmcnt(0)")
    for x in tagcheck(): k(x)
    pkadd(k, PLD, RT)
    k(f"s_cmp_gt_u32 s{S_CNT}, 0x40000")
    k(f"s_cbranch_scc1 {E}")
    k(f"s_cbranch_vccnz {L}")
    k.a.label(E)
    k.stamp("p3_mfma")
    k("s_nop 1")
    pkadd(k, OWN, PLD)
    for q in range(8):
        k(f"v_cvt_pk_bf16_f32 v{PK+q}, v{OWN+2*q}, v{OWN+2*q+1}")
    k("s_nop 1")
    for pr in range(2):
        k(f"v_permlane16_swap_b32 v{PK+4*pr}, v{PK+4*pr+2}")
        k(f"v_permlane16_swap_b32 v{PK+4*pr+1}, v{PK+4*pr+3}")
    yfl = o.get("yfl", "")
    for pr in range(2):
        k(f"buffer_store_dwordx4 v[{PK+4*pr}:{PK+4*pr+3}], v5, {srdr(SRD_OUT)}, s{YB} offen offset:{64*pr} {yfl}")
    assert k.sp == len(k.stream)

def line_loop(k, srd_, rowbytes, s_off, count, label, lpr=8, n=8):
    sh = {8: 3, 16: 4}[lpr]
    k(f"v_lshrrev_b32 v5, {sh}, v1")
    k(f"v_mul_u32_u24 v5, {rowbytes}, v5")
    k(f"v_and_b32 v6, {lpr-1}, v1")
    k("v_lshl_add_u32 v5, v6, 4, v5")
    k(f"s_mov_b32 s{S_CNT}, {count}")
    k.a.label(label)
    for t in range(n):
        k(f"buffer_load_dwordx4 {vr(16+t*4,4)}, v5, {srdr(srd_)}, s{s_off} offen")
        k(f"s_add_u32 s{s_off}, s{s_off}, {(64//lpr)*rowbytes}")
    k(f"s_add_u32 s{s_off}, s{s_off}, s{T3}")
    k(f"s_sub_u32 s{S_CNT}, s{S_CNT}, 1")
    k(f"s_cmp_lg_u32 s{S_CNT}, 0")
    k(f"s_cbranch_scc1 {label}")

def help_q(k, rows):
    k(f"s_mul_i32 s{T0}, s{S_XCD}, 7")
    k(f"s_sub_u32 s{T1}, 1, s{T0}")
    k(f"s_and_b32 s{T1}, s{T1}, 3")
    k(f"s_lshl_b32 s{T2}, s{S_HALF}, 2")
    k(f"s_add_u32 s{T2}, s{T2}, s{T1}")
    k(f"s_cmp_lt_u32 s{T2}, 7")
    k(f"s_cselect_b32 s{T1}, s{T2}, s{T1}")
    k(f"s_add_u32 s{T0}, s{T0}, s{T1}")
    k(f"s_lshl_b32 s{T0}, s{T0}, 8")
    k(f"s_add_u32 s{T0}, s{T0}, {(128-rows)*14336}")
    k(f"s_mul_i32 s{T1}, s{S_WAVE}, {256*14336}")
    k(f"s_add_u32 s{T0}, s{T0}, s{T1}")
    k(f"s_mov_b32 s{T3}, {(128-rows)*14336}")
    m = k.o.get("hqm", 0)
    if m == 0:
        line_loop(k, SRD_QW, 14336, T0, 2, "HQ", 16, rows//4)
        return
    k("v_lshrrev_b32 v5, 4, v1")
    k("v_mul_u32_u24 v5, 14336, v5")
    k("v_lshl_add_u32 v5, v3, 4, v5")
    for t in range(rows//4):
        for g in range(2):
            ch = t if m == 1 else rows//4-1-t
            k(f"s_add_u32 s{T1}, s{T0}, {(128*g + 4*ch)*14336}")
            k(f"buffer_load_dwordx4 {vr(16+(2*t+g)*4,4)}, v5, {srdr(SRD_QW)}, s{T1} offen")

def help_v(k, blk0, nblk, label, blk0o, nblko, blk2, nblk2):
    k(f"s_lshr_b32 s{T0}, s{S_XCD}, 1")
    k(f"s_mul_i32 s{T0}, s{T0}, 14")
    k(f"s_sub_u32 s{T1}, 3, s{T0}")
    k(f"s_and_b32 s{T1}, s{T1}, 7")
    k(f"s_lshl_b32 s{T2}, s{S_HALF}, 3")
    k(f"s_add_u32 s{T2}, s{T2}, s{T1}")
    k(f"s_cmp_lt_u32 s{T2}, 14")
    k(f"s_cselect_b32 s{T1}, s{T2}, s{T1}")
    k(f"s_add_u32 s{T0}, s{T0}, s{T1}")
    k(f"s_lshl_b32 s{T0}, s{T0}, 7")
    NA = k.o.get("NA", 16)
    k(f"s_xor_b32 s{L0}, s{T0}, 128")
    k(f"s_mul_i32 s{T1}, s{S_WAVE}, {28-NA}")
    k(f"s_mul_i32 s{T2}, s{S_WAVE}, {NA}")
    k(f"s_add_u32 s{T2}, s{T2}, {112-4*NA}")
    k(f"s_bitcmp1_b32 s{S_XCD}, 0")
    k(f"s_cselect_b32 s{T1}, s{T2}, s{T1}")
    k(f"s_mul_i32 s{T1}, s{T1}, {32*7168}")
    k(f"s_add_u32 s{T0}, s{T0}, s{T1}")
    k(f"s_bitcmp1_b32 s{S_XCD}, 0")
    k(f"s_cselect_b32 s{T1}, {blk0o}, {blk0}")
    k(f"s_cselect_b32 s{T2}, {nblko}, {nblk}")
    k(f"s_cselect_b32 s{T3}, {hex((-2*64*7168 if k.o.get('hback', 1) else 0) & 0xffffffff)}, 0")
    k(f"s_mul_i32 s{T1}, s{T1}, {64*7168}")
    k(f"s_add_u32 s{T0}, s{T0}, s{T1}")
    line_loop(k, SRD_V, 7168, T0, f"s{T2}", label)
    if k.o.get('deleg', 1) and nblk2:
        k(f"s_bitcmp1_b32 s{S_XCD}, 0")
        k(f"s_cbranch_scc0 {label}X")
        k(f"s_mul_i32 s{T1}, s{S_WAVE}, {(28-NA)*32*7168}")
        k(f"s_add_u32 s{L0}, s{L0}, s{T1}")
        k(f"s_add_u32 s{L0}, s{L0}, {(4*NA*32 + blk2*64)*7168}")
        k(f"s_mov_b32 s{T3}, 0")
        line_loop(k, SRD_V, 7168, L0, nblk2, label+"B")
        k.a.label(label+"X")

def mid_main(k, nv1, vat):
    def vpart():
        for n in range(nv1):
            if n == nv1//2: k.L = k.o.get("L", 12)
            v_fetch(k, n)
        if nv1:
            k("s_waitcnt lgkmcnt(0)")
            k.open(f"vfree{nv1-1}")
    for pr in range(32):
        if pr == vat//2: vpart()
        if pr == 16 and k.role == "B": k.L = k.o.get("L", 12)
        dequant_pair(k, pr)
        if pr == 15: k.stamp("q_half")
    if vat == 64: vpart()

def role_a(a, o):
    k = K(a, o); k.role = "A"; k.NS = o.get("NA", 16); k.HRN = 32 - 4*max(0, k.NS-14); NS = k.NS
    a.label("ROLE_A")
    k(f"s_lshr_b32 s{T0}, s{S_I2}, 1")
    k(f"s_and_b32 s{T1}, s{T0}, 1")
    k(f"s_lshl_b32 s{S_N64}, s{S_XCD}, 1")
    k(f"s_add_u32 s{S_N64}, s{S_N64}, s{T1}")
    k(f"s_lshr_b32 s{T0}, s{T0}, 1")
    k(f"s_lshl_b32 s{S_M32}, s{S_HALF}, 2")
    k(f"s_add_u32 s{S_M32}, s{S_M32}, s{T0}")
    k(f"s_lshl_b32 s{T1}, s{T1}, 1")
    k(f"s_add_u32 s{RHO}, s{S_M32}, s{T1}")
    k(f"s_lshl_b32 s{T0}, s{S_N64}, 7")
    k(f"s_lshl_b32 s{T1}, s{S_WAVE}, 19")
    k(f"s_add_u32 s{T0}, s{T0}, s{T1}")
    dma_voff(k, V_U0, V_U1, 2048, T0)
    k(f"v_lshrrev_b32 v{V_X0}, 3, v1")
    k(f"v_lshlrev_b32 v{V_X0}, 11, v{V_X0}")
    k(f"v_xor_b32 v{V_T2}, v{V_T2}, v2")
    k(f"v_lshl_add_u32 v{V_X0}, v{V_T2}, 4, v{V_X0}")
    k(f"s_lshl_b32 s{T0}, s{S_M32}, 16")
    k(f"s_lshl_b32 s{T1}, s{S_WAVE}, 9")
    k(f"s_add_u32 s{T0}, s{T0}, s{T1}")
    k(f"v_add_u32 v{V_X0}, s{T0}, v{V_X0}")
    k(f"v_xor_b32 v{V_X1}, 64, v{V_X0}")
    k("s_waitcnt lgkmcnt(0)")
    srd(a, SRD_U, 16, U_BYTES)
    srd(a, SRD_X, 8, X_BYTES)
    k(f"s_lshl_b32 s{XST_}, s{S_HALF}, 16")
    def p1_item(jp, i):
        def f(tag):
            if i in (0, 4, 8):
                k(f"s_add_u32 s{L1}, s{RHO}, {jp}")
                k(f"s_and_b32 s{L1}, s{L1}, 3")
            if i == 0: k(f"s_lshl_b32 s{L0}, s{L1}, 7")
            if i in (4, 8):
                k(f"s_lshl_b32 s{L0}, s{L1}, 17")
                if i == 8: k(f"s_add_u32 s{L0}, s{L0}, 0x10000")
                k(f"s_xor_b32 s{L0}, s{L0}, s{XST_}")
            k(f"s_add_u32 m0, s{S_AREA}, {P1R + (jp % 2)*4096 + i*1024 if i < 4 else jp*8192 + (i-4)*1024}")
            if i not in (0, 4, 8): k(f"s_add_u32 s{L0}, s{L0}, 0x4000")
            else: k("s_nop 0")
            if i < 4: k.vmem(f"buffer_load_dwordx4 v{V_X0+(i&1)}, {srdr(SRD_X)}, s{L0} offen lds", tag)
            else: k.vmem(f"buffer_load_dwordx4 v{V_U0+(i&1)}, {srdr(SRD_U)}, s{L0} offen lds", tag)
        k.add(f"p1x{jp//2}" if i < 4 else f"p1u{jp}_{0 if i < 8 else 1}", f, "p1free" if (jp == 2 and i == 0) else None)
    X = lambda jp: [(jp, i) for i in range(4)]
    U = lambda jp, u: [(jp, i) for i in range(4+4*u, 8+4*u)]
    for jp, i in X(0) + X(1) + U(0, 0): p1_item(jp, i)
    for jp, i in U(0, 1) + X(2) + X(3) + U(1, 0) + U(1, 1) + U(2, 0) + U(2, 1) + U(3, 0) + U(3, 1): p1_item(jp, i)
    k.nv1 = 0
    npf = o.get("npfA", 14-NS//2)
    pfat = NS - o.get("pfbackA", 0)
    pford = list(range(npf)) if o.get("pffwd", 0) else list(range(13-NS//2, 13-NS//2-npf, -1))
    def pfs():
        for st in pford:
            for q in range(4): vpf_item(k, st, q)
    for n in range(NS):
        if n == pfat: pfs()
        for q in range(4): v_item(k, n, q, "setup")
    if pfat == NS: pfs()
    k.add("poll2a", k.poll_item(f"v{V_P2}", f"s{PF1}"))
    h_stream(k, o)
    k.pump()
    epoch_load(k)
    srd(a, SRD_V, 18, V_BYTES); srd(a, SRD_OUT, 20, OUT_BYTES); srd(a, SRD_WS, 24, WS_BYTES)
    tr_addrs(k)
    k(f"v_lshrrev_b32 v{V_XR0}, 1, v3")
    k(f"v_xor_b32 v{V_XR0}, v{V_XR0}, v2")
    k(f"v_lshlrev_b32 v{V_XR0}, 4, v{V_XR0}")
    k(f"v_lshl_add_u32 v{V_XR0}, v3, 7, v{V_XR0}")
    k(f"v_add_u32 v{V_XR0}, s{S_AREA}, v{V_XR0}")
    k(f"s_lshl_b32 s{T0}, s{S_HALF}, 6")
    k(f"v_xor_b32 v{V_XR0}, s{T0}, v{V_XR0}")
    k(f"v_xor_b32 v{V_XR1}, 64, v{V_XR0}")
    k(f"v_add_u32 v{V_RW}, s{S_AREA}, v{V_L16}")
    k(f"s_lshl_b32 s{T0}, s{S_WAVE}, 11")
    k(f"s_add_u32 s{T0}, s{T0}, {P1R}")
    k(f"v_add_u32 v{V_RR}, s{T0}, v{V_L16}")
    k(f"v_add_u32 v{V_RR+1}, {hex(2*AREA_SZ)}, v{V_RR}")
    k(f"s_and_b32 s{T1}, s{S_WAVE}, 1")
    k(f"s_lshl_b32 s{T0}, s{S_M32}, 1")
    k(f"s_add_u32 s{T0}, s{T0}, s{T1}")
    k(f"s_lshr_b32 s{T1}, s{S_WAVE}, 1")
    k(f"s_lshl_b32 s{T2}, s{S_N64}, 1")
    k(f"s_add_u32 s{T2}, s{T2}, s{T1}")
    k(f"s_lshl_b32 s{XSO}, s{T0}, 5")
    k(f"s_add_u32 s{XSO}, s{XSO}, s{T2}")
    k(f"s_lshl_b32 s{XSO}, s{XSO}, 10")
    k(f"s_lshl_b32 s{T1}, s{S_HALF}, 4")
    k(f"s_add_u32 s{T1}, s{T1}, s{S_N64}")
    k(f"s_lshl_b32 s{T1}, s{T1}, 2")
    k(f"s_and_b32 s{T0}, s{S_M32}, 3")
    k(f"s_add_u32 s{T1}, s{T1}, s{T0}")
    k(f"s_lshl_b32 s{T1}, s{T1}, 7")
    k(f"s_add_u32 s{FL1}, s{T1}, {hex(F1_OFF)}")
    v_setup(k)
    k.stamp("issue0")
    k.L = o.get("Lp1", 18)
    k.pump()
    A1 = 224
    def acc1(jj, mi): return ar(A1 + (((jj >> 1)*2 + mi)*2 + (jj & 1))*4, 4)
    def xreads(jp0):
        for jp in (jp0, jp0+1):
            for u in range(2):
                for mi in range(2):
                    k(f"ds_read_b128 {ar(((2*jp+u)*2+mi)*4,4)}, v{V_XR0+u} offset:{P1R+(jp % 2)*4096+mi*2048}")
    def ureads(j):
        for jj in range(4):
            for h in range(2):
                k(f"ds_read_b64_tr_b16 {ar(64+(j % 2)*16+jj*4+2*h,2)}, v{V_TR+jj} offset:{j*4096+h*512}")
    k.wait("p1x0")
    xreads(0)
    tag_calc(k)
    k.open("p1free")
    k.pump()
    k.wait("p1u0_0")
    k.stamp("p1s0")
    ureads(0)
    for j in range(8):
        if j == 2: xreads(2)
        if j < 7:
            k.wait(f"p1u{(j+1)//2}_{(j+1) % 2}")
            if j == 6:
                k.stamp("p1_loaded"); k.L = o.get("L", 12)
            k.stamp(f"p1s{j+1}")
            k("s_waitcnt lgkmcnt(0)")
            ureads(j+1)
        else:
            k("s_waitcnt lgkmcnt(0)")
        for jj in range(4):
            for mi in range(2):
                k(f"v_mfma_f32_16x16x32_bf16 {acc1(jj, mi)}, {ar(64+(j % 2)*16+jj*4,4)}, {ar((j*2+mi)*4,4)}, {'0' if j == 0 else acc1(jj, mi)}")
            k.pump(2)
    k(f"s_mov_b32 s{T0}, 0x58000000")
    k(f"v_mov_b32 v{V_X1}, s{T0}")
    k("s_nop 3")
    for q in (0, 2, 1, 3, 4, 6, 5, 7):
        k(f"ds_write_b128 v{V_RW}, {ar(A1+q*4,4)} offset:{P1R+q*1024}")
    k("s_waitcnt lgkmcnt(0)")
    k("s_barrier")
    k.stamp("p1_bar")
    R = 16
    for w in range(4):
        for c in range(2):
            k(f"ds_read_b128 {vr(R+(w*2+c)*4,4)}, v{V_RR+w//2} offset:{(w % 2)*AREA_SZ+c*1024}")
    k("s_waitcnt lgkmcnt(4)")
    pkadd(k, R, R+8, 4)
    k("s_waitcnt lgkmcnt(0)")
    pkadd(k, R+16, R+24, 4)
    pkadd(k, R, R+16, 4)
    for q in range(4):
        d = R+2*q
        k(f"v_pk_mul_f32 v[{d}:{d+1}], v[{d}:{d+1}], v[{V_X1}:{V_X1+1}] op_sel_hi:[1,0]")
    for q in range(4):
        k(f"v_cvt_pk_bf16_f32 v{R+32+q}, v{R+2*q}, v{R+2*q+1}")
    k.vmem(f"buffer_store_dwordx4 v[{R+32}:{R+35}], v{V_L16}, {srdr(SRD_WS)}, s{XSO} offen sc1", "xrst")
    k.stamp("p1_done")
    k(f"s_cmp_lt_u32 s{S_I2}, 14")
    k("s_cbranch_scc1 WORKER_A")
    k("s_waitcnt vmcnt(0)")
    sv = list(k.vm)
    k.flag(f"s{FL1}")
    if o.get("n14", 4): help_v(k, o.get("b14", 3), o.get("n14", 3), "HV14", o.get("b14o", 7), o.get("n14o", 2), o.get("b14d", 3), o.get("n14d", 3))
    k("s_waitcnt vmcnt(0)")
    k("s_branch FINISH")
    k.vm = sv
    a.label("WORKER_A")
    k.open("setup")
    k.L = o.get("LA", 12)
    k.pump(o.get("nxA", 0))
    red_addrs(k, 0)
    p3_setup(k)
    k.wait("xrst")
    k.flag(f"s{FL1}"); k.open("f1"); k.open("f1done")
    k.stamp("h_flag")
    k.pump()
    def pfw():
        for st in pford:
            need(k, f"pf{st}"); k.pump()
    for n in range(NS):
        if n == pfat: pfw()
        v_fetch(k, n)
        if n == 6: k.stamp("q_half")
    k.stamp("v1_done")
    if pfat == NS: pfw()
    p3_main(k, o)
    k(f"s_or_b32 s{T0}, s{S_XCD}, s{S_I2}")
    k(f"s_or_b32 s{T0}, s{T0}, s{S_WAVE}")
    k(f"s_cmp_lg_u32 s{T0}, 0")
    k("s_cbranch_scc1 FINISH")
    k(f"s_add_u32 s{T0}, s{S_EP}, 1")
    k(f"v_mov_b32 v{V_T}, s{T0}")
    k(f"s_lshl_b32 s{T0}, s{S_HALF}, 7")
    k(f"s_add_u32 s{T0}, s{T0}, {hex(EP_OFF)}")
    k("s_mov_b64 exec, 1")
    k(f"buffer_store_dword v{V_T}, v0, {srdr(SRD_WS)}, s{T0} offen sc1")
    k("s_mov_b64 exec, -1")
    k("s_branch FINISH")

def role_b(a, o):
    k = K(a, o); k.role = "B"; k.NS = 28 - o.get("NA", 16); k.HRN = 32
    k.L = o.get("LB0", 12)
    a.label("ROLE_B")
    k(f"s_cmp_lt_u32 s{S_I2}, 14")
    k("s_cbranch_scc1 WORKER_B")
    k("s_waitcnt lgkmcnt(0)")
    srd(a, SRD_V, 18, V_BYTES)
    srd(a, SRD_QW, 10, QW_BYTES)
    if o.get("hq", 52): help_q(k, o.get("hq", 52))
    if o.get("n15", 3): help_v(k, o.get("b15", 0), o.get("n15", 3), "HV15", o.get("b15o", 3), o.get("n15o", 4), o.get("b15d", 0), o.get("n15d", 3))
    k("s_waitcnt vmcnt(0)")
    k("s_branch FINISH")
    a.label("WORKER_B")
    role_ids(k)
    q_setup(k, False)
    k("s_waitcnt lgkmcnt(0)")
    srd(a, SRD_QW, 10, QW_BYTES); srd(a, SRD_SC, 12, SC_BYTES); srd(a, SRD_Z, 14, SC_BYTES)
    nv1, vat = o.get("nv1B", 0), o.get("vatB", 32)
    k.nv1 = nv1
    sz_items(k)
    q_stream(k, 0, vat, o, "B")
    for n in range(nv1):
        for q in range(4): v_item(k, n, q, "setup")
    q_stream(k, vat, 64, o, "B")
    tail_stream(k, nv1, o, "B")
    k.pump()
    epoch_load(k)
    srd(a, SRD_V, 18, V_BYTES); srd(a, SRD_OUT, 20, OUT_BYTES); srd(a, SRD_WS, 24, WS_BYTES)
    k("s_setreg_imm32_b32 hwreg(HW_REG_MODE, 4, 2), 3")
    tr_addrs(k)
    v_setup(k)
    p2_setup(k)
    red_addrs(k, 0)
    k.open("setup")
    k.L = o.get("LB1", 16)
    k.pump()
    k.wait("sz")
    tag_calc(k)
    mid_main(k, nv1, vat)
    p2_main(k, nv1, o)
    p3_main(k, o)

def build(opt):
    global PKA
    PKA = opt.get("pk", 0)
    a = Asm(); K.uid = 0
    a.raw(HEADER.rstrip())
    a.raw(f"; @launch grid=(256,1,1) block=(256,1,1) lds={LDS_BYTES}")
    a.raw('.amdgcn_target "amdgcn-amd-amdhsa--gfx950"')
    kernel_begin(a, KNAME)
    a("s_cmp_ge_u32 s2, 256")
    a("s_cbranch_scc1 DONE")
    if opt.get("stamp"): a(f"{TIMER(opt)} s[92:93]")
    a("s_load_dwordx16 s[8:23], s[0:1], 0")
    a("s_load_dwordx2 s[24:25], s[0:1], 64")
    a("v_lshrrev_b32 v4, 6, v0")
    a("v_and_b32 v1, 63, v0")
    a(f"v_readfirstlane_b32 s{S_WAVE}, v4")
    a("v_lshrrev_b32 v2, 4, v1")
    a("v_and_b32 v3, 15, v1")
    a(f"v_lshlrev_b32 v{V_L16}, 4, v1")
    a("v_mov_b32 v0, 0")
    a(f"s_and_b32 s{S_XCD}, s2, 7")
    a(f"s_lshr_b32 s{T0}, s2, 3")
    a(f"s_and_b32 s{S_HALF}, s{T0}, 1")
    a(f"s_lshr_b32 s{S_I2}, s{T0}, 1")
    a(f"s_mul_i32 s{S_AREA}, s{S_WAVE}, {AREA_SZ}")
    a(f"s_bitcmp1_b32 s{S_I2}, 0")
    a("s_cbranch_scc1 ROLE_B")
    role_a(a, opt)
    role_b(a, opt)
    a.label("FINISH")
    if opt.get("stamp"):
        a("s_waitcnt vmcnt(0)")
        a(f"{TIMER(opt)} s[72:73]")
        a("s_load_dwordx2 s[70:71], s[0:1], 64")
        a("s_waitcnt lgkmcnt(0)")
        srd(a, 76, 70, 1 << 20, STAMP_OFF)
        a("s_lshl_b32 s70, s2, 2")
        a(f"s_add_u32 s70, s70, s{S_WAVE}")
        a("s_lshl_b32 s70, s70, 7")
        regs = [92] + STAMP_REGS[:len(STAMP_NAMES)] + [72]
        a("s_mov_b64 exec, 1")
        for i, r in enumerate(regs):
            a(f"v_mov_b32 v16, s{r}")
            a(f"v_mov_b32 v17, s{r+1}")
            a(f"buffer_store_dwordx2 v[16:17], v0, s[76:79], s70 offen offset:{i*8}")
            a("s_nop 1")
    a.label("DONE")
    a("s_endpgm")
    kernel_desc(a, KNAME, 512, 102, 256)
    return a.text(), ["start"] + stamp_names(opt) + ["end"]

if __name__ == "__main__":
    opt = eval(sys.argv[2]) if len(sys.argv) > 2 else {}
    txt, names = build(opt)
    open(sys.argv[1], "w").write(txt)
    print(len(txt))
```

```python
import sys
from asmlib import *

KNAME = "standalone__weight_only_int_quip__sampling_kernel"
XR_OFF   = 0
H_OFF    = 1 << 20
F1_OFF   = 3 << 20
F2_OFF   = F1_OFF + 16384
EP_OFF   = F1_OFF + 32768
F2A_D    = 32768
PFB = 78
PART_OFF = 4 << 20
WS_BYTES = 8 << 20
STAMP_OFF = 128 << 20
OOB = 0x7f000000
AREA_SZ = 40960
P2R = 20480
P1R = 32768
LDS_BYTES = 163840
RING = 5

S_WAVE, S_EP = 4, 5
SRD_X, SRD_QW, SRD_SC, SRD_Z, SRD_U, SRD_V, SRD_OUT, SRD_WS = 28, 32, 36, 40, 44, 48, 52, 56
S_XCD, S_HALF, S_I2, S_M32, S_N64, S_M64, S_T2, S_KS, S_T, S_TAG = 60, 61, 62, 63, 64, 65, 66, 67, 68, 69
T0, T1, T2, T3 = 70, 71, 72, 73
S_AREA, S_CNT = 74, 75
L0, L1 = 76, 77
QB, GI = 78, 82
FL1, XST_, XRB, RHO = 86, 87, 88, 89
VB = 90
HB = 36
MOTH, MOWN, L2, TAGB, WT = 40, 41, 42, 43, 3
PF1, PF2, FL2, HST = 6, 7, 26, 27
PA, PB, YB, XSO = 94, 95, 96, 97
XO = 98

V_L16, V_X0, V_X1, V_T2, V_Q, V_T, V_VD0, V_VD1, V_TR = 4, 5, 6, 7, 8, 9, 10, 11, 12
WQ, STG, SZ, RAW, OWN = 16, 144, 240, 252, 240
QR = 20
V_U0, V_U1, V_XR0, V_XR1 = 224, 225, 226, 227
TGV = 224
XRN = 16
V_RW, V_RR = 232, 233
V_P1, V_P2, V_PR = 236, 237, 238
RT, PK, PLD = 144, 192, 208
STAMP_REGS = list(range(8, 26, 2)) + [28, 30, 44]
STAMP_NAMES = ["p1_loaded", "p1_done", "q_half", "v1_done", "h1_seen", "q_all", "p2_mfma", "h_flag", "h2_seen", "v_done", "part_st", "p3_mfma"]

def stamp_names(o):
    f = o.get("fine")
    if f == "p3": return ["h_flag", "h2_seen", "v_done"] + [f"pos{p}" for p in range(8)] + ["p3_mfma"]
    if f == "v": return ["p2_mfma", "h_flag"] + [f"vf{n}" for n in (0, 2, 4, 6, 7, 8, 10, 12)] + ["h2_seen", "v_done"]
    if f == "p1": return ["issue0"] + [f"p1s{j}" for j in range(8)] + ["p1_bar", "p1_done", "q_half"]
    if f == "p2": return ["h1_seen", "q_all"] + [f"p2_{p}{h}" for p in range(4) for h in "ab"] + ["p2_mfma", "h_flag"]
    if f == "q": return ["p1_done"] + [f"qp{n}" for n in (0, 3, 7, 11, 15, 19, 23, 27)] + ["v1_done", "h1_seen", "q_all"]
    return STAMP_NAMES
def TIMER(o): return "s_memtime" if o.get("cyc") else "s_memrealtime"
def srdr(b): return f"s[{b}:{b+3}]"
def vreg(k, j, off, n):
    if j < 10: return ar(64 + 16*j + off, n)
    if j < 14: return ar(16*(j-10) + off, n)
    return vr(WQ + 4*k.HRN + 16*(j-14) + off, n)
def step_base(k, d, ns):
    k(f"s_mul_i32 s{d}, s{S_KS}, {112-4*ns}")
    k(f"s_mul_i32 s{T1}, s{S_WAVE}, {ns}")
    k(f"s_add_u32 s{d}, s{d}, s{T1}")

class K:
    uid = 0
    def __init__(self, a, opt):
        self.a = a; self.o = opt
        self.vm = []; self.done = 0
        self.stream = []; self.sp = 0; self.gates = set()
        self.L = opt.get("L", 12)
    def __call__(self, s): self.a(s)
    def vmem(self, s, tag):
        self.a(s); self.vm.append(tag)
    def isdone(self, tag):
        return tag in self.vm and tag not in [t for t, _, _ in self.stream[self.sp:]] and self.done > max(i for i, t in enumerate(self.vm) if t == tag)
    def wait(self, tag):
        while tag in [t for t, _, _ in self.stream[self.sp:]]:
            assert self.issue_one(force=True), f"gate closed while waiting for {tag}: {self.stream[self.sp]}"
        idx = max(i for i, t in enumerate(self.vm) if t == tag)
        if idx < self.done: return
        n = len(self.vm) - 1 - idx
        self.a(f"s_waitcnt vmcnt({min(n, 63)})")
        self.done = idx + 1
    def add(self, tag, fn, *gates): self.stream.append((tag, fn, [g for g in gates if g]))
    def issue_one(self, force=False):
        if self.sp >= len(self.stream): return False
        tag, fn, gates = self.stream[self.sp]
        if any(g not in self.gates for g in gates): return False
        if not force and len(self.vm) - self.done >= self.L: return False
        self.sp += 1
        fn(tag)
        return True
    def pump(self, n=99):
        while n > 0 and self.issue_one(): n -= 1
    def open(self, g): self.gates.add(g)
    def fill(self, items): self.fq = getattr(self, "fq", []) + list(items)
    def drain(self, n=999):
        q = getattr(self, "fq", [])
        while q and n > 0:
            self.a(q.pop(0)); n -= 1
    def stamp(self, name):
        if not self.o.get("stamp"): return
        names = stamp_names(self.o)
        if name not in names: return
        r = STAMP_REGS[names.index(name)]
        self.a(f"{TIMER(self.o)} s[{r}:{r+1}]")
        self.a("s_waitcnt lgkmcnt(0)")
    def lab(self, p):
        K.uid += 1
        return f"{p}_{K.uid}"
    def poll_item(self, voff, soff):
        return lambda tag: self.vmem(f"buffer_load_dword v{V_PR}, {voff}, {srdr(SRD_WS)}, {soff} offen sc1", tag)
    def poll_check(self, tag, voff, soff):
        self.wait(tag)
        L = self.lab("POLL"); E = self.lab("POLLX")
        self(f"v_cmp_ne_u32 vcc, s{S_TAG}, v{V_PR}")
        self(f"s_mov_b32 s{S_CNT}, 0")
        self(f"s_cbranch_vccz {E}")
        self.a.label(L)
        self(f"s_sleep {self.o.get('nap', 8)}")
        self(f"buffer_load_dword v{V_PR}, {voff}, {srdr(SRD_WS)}, {soff} offen sc1")
        self(f"s_add_u32 s{S_CNT}, s{S_CNT}, 1")
        self("s_waitcnt vmcnt(0)")
        self(f"v_cmp_ne_u32 vcc, s{S_TAG}, v{V_PR}")
        self(f"s_cmp_gt_u32 s{S_CNT}, 0x40000")
        self(f"s_cbranch_scc1 {E}")
        self(f"s_cbranch_vccnz {L}")
        self.a.label(E)
    def flag(self, soff, who=0):
        self(f"s_cmp_eq_u32 s{S_WAVE}, {who}")
        self(f"s_cselect_b32 s{T0}, 0, {hex(OOB)}")
        self(f"v_mov_b32 v{V_T2}, s{S_TAG}")
        self(f"v_mov_b32 v{V_PR+1}, s{T0}")
        self("s_barrier")
        self("s_mov_b64 exec, 1")
        self.vmem(f"buffer_store_dword v{V_T2}, v{V_PR+1}, {srdr(SRD_WS)}, {soff} offen sc1", "flag")
        self("s_mov_b64 exec, -1")

def dma_voff(k, d0, d1, rowbytes, s_add):
    k(f"v_lshrrev_b32 v{d0}, 3, v1")
    k(f"v_and_b32 v{d1}, 2, v{d0}")
    k(f"v_mul_u32_u24 v{d0}, {rowbytes}, v{d0}")
    k(f"v_and_b32 v{V_T2}, 7, v1")
    k(f"v_xor_b32 v{d1}, v{d1}, v{V_T2}")
    k(f"v_lshl_add_u32 v{d0}, v{d1}, 4, v{d0}")
    k(f"v_add_u32 v{d0}, s{s_add}, v{d0}")
    k(f"v_xor_b32 v{d1}, 64, v{d0}")

def tr_addrs(k):
    k("v_lshrrev_b32 v12, 2, v3")
    k("v_lshrrev_b32 v13, 1, v12")
    k("v_and_b32 v14, 1, v2")
    k("v_lshl_add_u32 v13, v14, 1, v13")
    k("v_lshl_add_u32 v12, v2, 3, v12")
    k("v_lshlrev_b32 v12, 7, v12")
    k("v_lshl_add_u32 v12, v13, 5, v12")
    k("v_and_b32 v13, 3, v1")
    k("v_lshl_add_u32 v12, v13, 3, v12")
    k(f"v_add_u32 v12, s{S_AREA}, v12")
    k("v_xor_b32 v13, 32, v12")
    k("v_xor_b32 v14, 64, v12")
    k("v_xor_b32 v15, 96, v12")

def role_ids(k):
    k(f"s_lshl_b32 s{S_M64}, s{S_HALF}, 1")
    k(f"s_lshr_b32 s{T0}, s{S_I2}, 1")
    k(f"s_mul_i32 s{S_T2}, s{S_XCD}, 7")
    k(f"s_add_u32 s{S_T2}, s{S_T2}, s{T0}")

def q_setup(k, oob, order=(0, 1, 2, 3)):
    if oob:
        k(f"s_cmp_lt_u32 s{S_I2}, 14")
        k(f"s_cselect_b32 s{T2}, 0, {hex(OOB)}")
    k(f"v_mul_u32_u24 v{V_Q}, {4*14336}, v2")
    k(f"v_lshl_add_u32 v{V_Q}, v3, 4, v{V_Q}")
    k(f"s_lshl_b32 s{T0}, s{S_T2}, 8")
    if oob: k(f"s_add_u32 s{T0}, s{T0}, s{T2}")
    k(f"v_add_u32 v{V_Q}, s{T0}, v{V_Q}")
    k(f"v_mul_u32_u24 v{V_T}, 7168, v2")
    k(f"v_lshl_add_u32 v{V_T}, v3, 3, v{V_T}")
    k(f"s_mul_i32 s{T0}, s{S_WAVE}, {4*7168}")
    k(f"s_lshl_b32 s{T1}, s{S_T2}, 7")
    k(f"s_add_u32 s{T0}, s{T0}, s{T1}")
    if oob: k(f"s_add_u32 s{T0}, s{T0}, s{T2}")
    k(f"v_add_u32 v{V_T}, s{T0}, v{V_T}")
    k(f"s_lshl_b32 s{T1}, s{S_HALF}, 1")
    for j in range(4):
        k(f"s_xor_b32 s{GI+j}, s{T1}, {order[j]}")
        k(f"s_lshl_b32 s{T0}, s{S_WAVE}, 2")
        k(f"s_add_u32 s{T0}, s{T0}, s{GI+j}")
        k(f"s_mul_i32 s{QB+j}, s{T0}, {64*14336}")

def epoch_load(k):
    k(f"s_lshl_b32 s{T0}, s{S_HALF}, 7")
    k(f"s_add_u32 s{T0}, s{T0}, {hex(EP_OFF)}")
    k(f"s_load_dword s{S_EP}, s[24:25], s{T0}")

def tag_calc(k):
    k("s_waitcnt lgkmcnt(0)")
    k(f"s_mul_i32 s{S_TAG}, s{S_EP}, 0x9e3779b1")
    k(f"s_add_u32 s{S_TAG}, s{S_TAG}, 0x7f4a7c15")
    k(f"s_lshr_b32 s{T0}, s{S_TAG}, 15")
    k(f"s_xor_b32 s{S_TAG}, s{S_TAG}, s{T0}")
    k(f"s_mul_i32 s{S_TAG}, s{S_TAG}, 0x85ebca6b")

def red_addrs(k, add):
    k(f"s_add_u32 s{T0}, s{S_AREA}, {add}")
    k(f"v_add_u32 v{V_RW}, s{T0}, v{V_L16}")
    for p in range(3):
        k(f"s_sub_u32 s{T1}, s{S_WAVE}, {p+1}")
        k(f"s_and_b32 s{T1}, s{T1}, 3")
        k(f"s_mul_i32 s{T1}, s{T1}, {AREA_SZ}")
        k(f"s_add_u32 s{T1}, s{T1}, {add+p*4096}")
        k(f"v_add_u32 v{V_RR+p}, s{T1}, v{V_L16}")

def v_setup(k):
    k(f"s_and_b32 s{S_KS}, s{S_XCD}, 1")
    k(f"s_lshr_b32 s{T0}, s{S_XCD}, 1")
    k(f"s_mul_i32 s{S_T}, s{T0}, 14")
    k(f"s_xor_b32 s{T0}, s{S_I2}, s{S_KS}")
    k(f"s_add_u32 s{S_T}, s{S_T}, s{T0}")
    k(f"s_lshl_b32 s{T0}, s{S_T}, 7")
    dma_voff(k, V_VD0, V_VD1, 7168, T0)
    step_base(k, T0, k.NS)
    k(f"s_mul_i32 s{VB}, s{T0}, {32*7168}")
    k(f"v_min_u32 v{V_P2}, {k.NS//2-1}, v1")
    k(f"v_lshlrev_b32 v{V_P2}, 7, v{V_P2}")
    k(f"s_lshr_b32 s{T0}, s{T0}, 1")
    k(f"s_mul_i32 s{T1}, s{S_HALF}, 56")
    k(f"s_add_u32 s{T1}, s{T0}, s{T1}")
    k(f"s_lshl_b32 s{T1}, s{T1}, 7")
    k(f"s_add_u32 s{PF2}, s{T1}, {hex(F2_OFF)}")
    if k.role == "A":
        k(f"s_add_u32 s{PF1}, s{PF2}, {F2A_D}")
        step_base(k, T0, 28-k.NS)
        k(f"s_mul_i32 s{PFB}, s{T0}, {32*7168}")
        k(f"s_lshl_b32 s{T0}, s{S_KS}, 8")
        k(f"s_add_u32 s{PFB}, s{PFB}, 128")
        k(f"s_sub_u32 s{PFB}, s{PFB}, s{T0}")
        k(f"s_and_b32 s{T0}, s{S_T}, 7")
        k(f"s_cmp_eq_u32 s{T0}, {3 if k.o.get('deleg', 1) else 9}")
        k(f"s_cselect_b32 s{T0}, {hex(OOB)}, 0")
        k(f"v_add_u32 v{V_P1}, s{T0}, v{V_VD0}")

def poll1_setup(k):
    k(f"v_min_u32 v{V_P1}, 15, v1")
    k(f"v_lshlrev_b32 v{V_P1}, 7, v{V_P1}")
    k(f"s_lshl_b32 s{T0}, s{S_HALF}, 13")
    k(f"s_lshl_b32 s{T1}, s{S_WAVE}, 11")
    k(f"s_add_u32 s{T0}, s{T0}, s{T1}")
    k(f"s_add_u32 s{PF1}, s{T0}, {hex(F1_OFF)}")

def xpf_item(k, i):
    def f(tag):
        if i == 0:
            k(f"s_lshr_b32 s{L1}, s{S_I2}, 1")
            k(f"s_lshl_b32 s{L0}, s{S_HALF}, 3")
            k(f"s_add_u32 s{L0}, s{L0}, s{L1}")
            k(f"s_lshl_b32 s{L0}, s{L0}, 2")
            k(f"s_add_u32 s{L0}, s{L0}, s{S_WAVE}")
            k(f"s_lshl_b32 s{L0}, s{L0}, 13")
        if i == 4: k(f"s_add_u32 s{L0}, s{L0}, 4096")
        if i == 8:
            k(f"s_lshl_b32 s{L0}, s{S_HALF}, 5")
            k(f"s_add_u32 s{L0}, s{L0}, s{S_WAVE}")
            k(f"s_add_u32 s{L0}, s{L0}, 28")
            k(f"s_lshl_b32 s{L0}, s{L0}, 3")
            k(f"s_add_u32 s{L0}, s{L0}, s{L1}")
            k(f"s_lshl_b32 s{L0}, s{L0}, 10")
        k.vmem(f"buffer_load_dwordx4 {vr(STG+4*(i % 4),4)}, v{V_L16}, {srdr(SRD_WS)}, s{L0} offen offset:{(i % 4)*1024} sc1", tag)
    k.add("xpf", f, "h1")

def p2_setup(k):
    k(f"s_add_u32 s{XRB}, s{S_WAVE}, s{S_T2}")
    k(f"s_lshl_b32 s{T0}, s{S_M64}, 4")
    k(f"s_add_u32 s{T0}, s{T0}, s{S_WAVE}")
    k(f"s_lshl_b32 s{T0}, s{T0}, 13")
    for j in range(4):
        k(f"s_lshl_b32 s{T1}, s{GI+j}, 11")
        k(f"s_add_u32 s{XO+j}, s{T0}, s{T1}")
    poll1_setup(k)
    k(f"s_and_b32 s{T1}, s{XRB}, 3")
    k(f"s_lshl_b32 s{T2}, s{S_M64}, 2")
    k(f"s_add_u32 s{T2}, s{T2}, s{T1}")
    k(f"s_mul_i32 s{T2}, s{T2}, 112")
    k(f"s_lshl_b32 s{T3}, s{S_T2}, 1")
    k(f"s_add_u32 s{T2}, s{T2}, s{T3}")
    k(f"s_lshl_b32 s{T2}, s{T2}, 10")
    k(f"s_add_u32 s{HST}, s{T2}, {hex(H_OFF)}")
    k(f"s_mul_i32 s{T0}, s{S_HALF}, 56")
    k(f"s_add_u32 s{FL2}, s{T0}, s{S_T2}")
    k(f"s_lshl_b32 s{FL2}, s{FL2}, 7")
    k(f"s_add_u32 s{FL2}, s{FL2}, {hex(F2_OFF)}")
    k(f"s_add_u32 s{FL1}, s{FL2}, {F2A_D}")

def p3_setup(k):
    step_base(k, T0, k.NS)
    k(f"s_lshl_b32 s{T0}, s{T0}, 10")
    k(f"s_add_u32 s{T0}, s{T0}, {hex(H_OFF)}")
    for r, (lo, hi, d) in enumerate(vruns(k)):
        k(f"s_mul_i32 s{T1}, s{S_HALF}, {d*1024}")
        k(f"s_add_u32 s{T1}, s{T1}, {lo*1024}")
        k(f"s_add_u32 s{HB+r}, s{T0}, s{T1}")
    k(f"s_lshl_b32 s{T0}, s{S_HALF}, 1")
    k(f"s_add_u32 s{MOWN}, s{T0}, {1 if k.role == 'A' else 0}")
    k(f"s_xor_b32 s{MOTH}, s{MOWN}, 1")
    k(f"s_lshl_b32 s{MOWN}, s{MOWN}, 2")
    k(f"s_lshl_b32 s{MOTH}, s{MOTH}, 2")
    k(f"s_add_u32 s{WT}, s{S_WAVE}, s{S_T}")
    k(f"s_mul_i32 s{T0}, s{S_HALF}, 56")
    k(f"s_add_u32 s{T0}, s{T0}, s{S_T}")
    k(f"s_lshl_b32 s{T0}, s{T0}, 1")
    k(f"s_add_u32 s{T0}, s{T0}, s{S_KS}")
    k(f"s_lshl_b32 s{T0}, s{T0}, 2")
    k(f"s_add_u32 s{T0}, s{T0}, s{S_WAVE}")
    k(f"s_xor_b32 s{T1}, s{T0}, 4")
    k(f"s_lshl_b32 s{PA}, s{T0}, 12")
    k(f"s_add_u32 s{PA}, s{PA}, {hex(PART_OFF)}")
    k(f"s_lshl_b32 s{PB}, s{T1}, 12")
    k(f"s_add_u32 s{PB}, s{PB}, {hex(PART_OFF)}")
    k(f"s_mul_i32 s{T0}, s{S_EP}, 37")
    k(f"s_add_u32 s{T0}, s{T0}, 11")
    for i in range(4):
        k(f"s_add_u32 s{T1}, s{T0}, {64*i}")
        k(f"s_and_b32 s{T1}, s{T1}, 0xff")
        k(f"v_mov_b32 v{TGV+i}, s{T1}")
        if i == 0: k(f"s_mov_b32 s{TAGB}, s{T1}")
        else:
            k(f"s_lshl_b32 s{T1}, s{T1}, {8*i}")
            k(f"s_or_b32 s{TAGB}, s{TAGB}, s{T1}")
    k(f"v_mov_b32 v{TGV+4}, 0xff")
    k(f"v_mov_b32 v{TGV+5}, 0x0c0c0400")
    k(f"v_mov_b32 v{TGV+6}, 0x04000c0c")
    k(f"s_and_b32 s{T1}, s{WT}, 3")
    k(f"s_add_u32 s{T1}, s{T1}, s{MOWN}")
    k(f"s_mul_i32 s{T1}, s{T1}, {16*7168}")
    k(f"s_lshl_b32 s{T0}, s{S_T}, 7")
    k(f"s_add_u32 s{YB}, s{T1}, s{T0}")
    k("v_mul_u32_u24 v5, 7168, v3")
    k("v_and_b32 v6, 1, v2")
    k("v_lshl_add_u32 v5, v6, 5, v5")
    k("v_lshrrev_b32 v6, 1, v2")
    k("v_lshl_add_u32 v5, v6, 4, v5")

def pkadd(k, d, s, n=8):
    for q in range(n):
        k(f"v_pk_add_f32 v[{d+2*q}:{d+2*q+1}], v[{d+2*q}:{d+2*q+1}], v[{s+2*q}:{s+2*q+1}]")

def sz_items(k, *g):
    k.add("sz", lambda t: k.vmem(f"buffer_load_dwordx2 v[{RAW}:{RAW+1}], v{V_T}, {srdr(SRD_SC)}, 0 offen", t), *g)
    k.add("sz", lambda t: k.vmem(f"buffer_load_dwordx2 v[{RAW+2}:{RAW+3}], v{V_T}, {srdr(SRD_Z)}, 0 offen", t))
def qreg(n): return 80 + 4*n if n < 16 else STG + 4*((n-16) % QR)
def q_item(k, n, fl, *g):
    st, i = n//8, n % 8
    j, u = st//2, st % 2
    ro = 32*u + (i if i < 4 else 12+i)
    def f(tag):
        so = f"s{QB+j}"
        if ro:
            k(f"s_add_u32 s{L0}, s{QB+j}, {hex(ro*14336)}")
            so = f"s{L0}"
        k.vmem(f"buffer_load_dwordx4 {vr(qreg(n),4)}, v{V_Q}, {srdr(SRD_QW)}, {so} offen {fl}", tag)
    k.add(f"q{n//2}", f, f"qfree{n-QR}" if n >= QR+16 else None, *g)
def xr_item(k, p, st):
    j, u = st//2, st % 2
    def f(tag):
        if st == 0:
            k(f"s_add_u32 s{L1}, s{XRB}, {(p % 4)+1}")
            k(f"s_and_b32 s{L1}, s{L1}, 3")
            if p >= 4: k(f"s_add_u32 s{L1}, s{L1}, 4")
            k(f"s_lshl_b32 s{L1}, s{L1}, 15")
        if u == 0:
            k(f"s_add_u32 s{L0}, s{XO+j}, s{L1}")
        k.vmem(f"buffer_load_dwordx4 {ar(((p*8+st) % XRN)*4,4)}, v{V_L16}, {srdr(SRD_WS)}, s{L0} offen offset:{u*1024} sc1", tag)
    k.add(f"x{p}_{st}", f, "h1", f"xfree{p*8+st-XRN}" if p*8+st >= XRN else None)
def vruns(k):
    out = []
    for lo, hi in ((0, k.nv1), (k.nv1, k.NS)):
        if hi == lo: continue
        assert (hi - lo) % 2 == 0
        m = (hi - lo)//2
        out += [(lo, lo+m, m), (lo+m, hi, -m)]
    return out
def rowoff(st): return 64*(st >> 1) + 8*(st & 1)
def v_item(k, n, q, *g):
    d = [d for lo, hi, d in vruns(k) if lo <= n < hi][0]
    def f(tag):
        if q == 0:
            k(f"s_mul_i32 s{VB+1}, s{S_HALF}, {(rowoff(n+d) - rowoff(n))*7168}")
            k(f"s_add_u32 s{VB+1}, s{VB+1}, s{VB}")
        k(f"s_add_u32 m0, s{S_AREA}, {(n % RING)*4096 + q*1024}")
        k(f"s_add_u32 s{L0}, s{VB+1}, {hex((rowoff(n) + 16*q)*7168)}")
        k.vmem(f"buffer_load_dwordx4 v{V_VD0+(q&1)}, {srdr(SRD_V)}, s{L0} offen {k.o.get('vfl'+k.role,'') if n >= k.NS//2 else ''} lds", tag)
    k.add(f"v{n}", f, f"vfree{n-RING}" if (n >= RING and q == 0) else None, *g)
def h_item(k, p, j):
    n = p*k.NS+j
    r, lo = [(r, lo) for r, (lo, hi, d) in enumerate(vruns(k)) if lo <= j < hi][0]
    def f(tag):
        if j == 0:
            k(f"s_add_u32 s{L2}, s{WT}, {(p % 4)+1}")
            k(f"s_and_b32 s{L2}, s{L2}, 3")
            k(f"s_add_u32 s{L2}, s{L2}, s{MOTH if p < 4 else MOWN}")
            k(f"s_mul_i32 s{L2}, s{L2}, {112*1024}")
        if j == lo: k(f"s_add_u32 s{L0}, s{L2}, s{HB+r}")
        elif (j - lo) % 4 == 0: k(f"s_add_u32 s{L0}, s{L0}, 4096")
        k.vmem(f"buffer_load_dwordx4 {vr(WQ+4*(n % k.HRN),4)}, v{V_L16}, {srdr(SRD_WS)}, s{L0} offen offset:{((j-lo) % 4)*1024} {k.o.get('hfl', 'sc1')}", tag)
    k.add(f"h{p}_{j}", f, "h2a" if (k.role == "A" and p < 4) else "h2")
def pld_ins(jj):
    return f"buffer_load_dwordx4 {vr(PLD+jj*4,4)}, v{V_L16}, {srdr(SRD_WS)}, s{PB} offen offset:{jj*1024} sc1"

def sz_prep(k, j):
    k(f"s_lshl_b32 s{T0}, s{GI+j}, 6")
    k(f"v_lshl_add_u32 v{V_PR+1}, v3, 2, s{T0}")
    for q in range(4):
        k(f"ds_bpermute_b32 v{248+q}, v{V_PR+1}, v{RAW+q}")
    k(f"s_mov_b32 s{T2}, 0x71800000")
    k(f"s_mov_b32 s{T3}, 0xa7000000")
    k("s_waitcnt lgkmcnt(0)")
    for jj in range(4):
        if jj % 2 == 0:
            k(f"v_lshlrev_b32 v{SZ+jj}, 16, v{248+jj//2}")
            k(f"v_lshlrev_b32 v{SZ+4+jj}, 16, v{250+jj//2}")
        else:
            k(f"v_and_b32 v{SZ+jj}, 0xffff0000, v{248+jj//2}")
            k(f"v_and_b32 v{SZ+4+jj}, 0xffff0000, v{250+jj//2}")
    for jj in range(4):
        k(f"v_mul_f32 v{SZ+4+jj}, v{SZ+4+jj}, v{SZ+jj}")
    for jj in range(4):
        k(f"v_mul_f32 v{SZ+jj}, s{T2}, v{SZ+jj}")
        k(f"v_mul_f32 v{SZ+4+jj}, s{T3}, v{SZ+4+jj}")

def events(k):
    if "xrst" in k.vm and "f1" not in k.gates and k.isdone("xrst"):
        k.flag(f"s{FL1}"); k.open("f1"); k.L = k.o.get("Lf1", 24)
    if "f1" in k.gates and "f1done" not in k.gates and k.isdone("flag"):
        k.open("f1done"); k.L = k.o.get("L", 12)
    if "hflag" in k.gates and "f2done" not in k.gates and k.isdone("flag"):
        k.open("f2done"); k.L = k.o.get("LV", 12)
    if "h1" not in k.gates and k.isdone("poll1"):
        k.poll_check("poll1", f"v{V_P1}", f"s{PF1}"); k.open("h1"); k.stamp("h1_seen")
    if "h2a" not in k.gates and k.isdone("poll2a"):
        k.poll_check("poll2a", f"v{V_P2}", f"s{PF1}"); k.open("h2a"); k.stamp("h2_seen")
    if "h2" not in k.gates and k.isdone("poll2"):
        k.poll_check("poll2", f"v{V_P2}", f"s{PF2}"); k.open("h2"); k.stamp("h2_seen" if k.role == "B" else "q_all")

def need(k, tag):
    while tag in [t for t, _, _ in k.stream[k.sp:]]:
        if k.issue_one(force=True): continue
        g = [g for g in k.stream[k.sp][2] if g not in k.gates][0]
        k.wait({"h1": "poll1", "h2": "poll2", "h2a": "poll2a"}[g])
        events(k)
        if k.o.get("gpump", 1): k.pump()
    k.wait(tag)
    events(k)

def dequant_pair(k, pr):
    st, p = pr//4, pr % 4
    if pr % 8 == 0 and f"sz{pr//8}" not in k.gates: sz_prep(k, pr//8)
    need(k, f"q{pr}")
    k.stamp(f"qp{pr}")
    k.pump()
    r0, r1 = qreg(2*pr), qreg(2*pr+1)
    for r in (r0, r1):
        for hh in range(2):
            q = r+2*hh
            k(f"v_pk_fma_f32 v[{q}:{q+1}], v[{q}:{q+1}], v[{SZ+2*hh}:{SZ+2*hh+1}], v[{SZ+4+2*hh}:{SZ+4+2*hh+1}]")
    for jj in range(4):
        k(f"v_cvt_pk_bf16_f32 v{WQ+(st*4+jj)*4+p}, v{r0+jj}, v{r1+jj}")
    k.open(f"qfree{2*pr}"); k.open(f"qfree{2*pr+1}")

def v_fetch(k, n):
    need(k, f"v{n}")
    k.stamp(f"vf{n}")
    if n >= 1 and f"vfree{n-1}" not in k.gates:
        k("s_waitcnt lgkmcnt(0)")
        k.open(f"vfree{n-1}")
    for jj in range(4):
        for h in range(2):
            k(f"ds_read_b64_tr_b16 {vreg(k, n, jj*4+2*h, 2)}, v{V_TR+jj} offset:{(n % RING)*4096 + h*512}")
    k.pump()

def accname(p, jj, own):
    return vr(OWN+jj*4, 4) if own else ar(224+(p % 2)*16+jj*4, 4)
def red_read(k, off):
    for p in range(3):
        for jj in range(4):
            k(f"ds_read_b128 {vr(RT+(p*4+jj)*4,4)}, v{V_RR+p} offset:{off+jj*1024}")

def vpf_item(k, st, q):
    def f(tag):
        if q == 0:
            k(f"s_mul_i32 s{VB+1}, s{S_HALF}, {(rowoff(st+14-k.NS//2) - rowoff(st))*7168}")
            k(f"s_add_u32 s{VB+1}, s{VB+1}, s{PFB}")
        k(f"s_add_u32 s{L0}, s{VB+1}, {hex((rowoff(st) + 16*q)*7168)}")
        k.vmem(f"buffer_load_dwordx4 {vr(STG+4*q,4)}, v{V_P1}, {srdr(SRD_V)}, s{L0} offen", tag)
    k.add(f"pf{st}", f)

def h_stream(k, o):
    for p in range(8):
        for j in range(k.NS):
            if k.role == "A" and p == 3 and j == o.get("p2atA", 1):
                k.add("poll2", k.poll_item(f"v{V_P2}", f"s{PF2}"))
            if p == 7 and j == o.get("tcat", 4):
                for jj in range(4):
                    k.add("pld", (lambda jj: lambda t: k.vmem(pld_ins(jj), t))(jj))
            h_item(k, p, j)

def tail_stream(k, nv1, o, role):
    for p in range(8):
        for st in range(8): xr_item(k, p, st)
    vpre, vmid = o.get("vpre"+role, 4), o.get("vmid"+role, 10)
    p2back = o.get("p2back"+role, 8)
    rest = [(n, q) for n in range(nv1, k.NS) for q in range(4)]
    for i, (n, q) in enumerate(rest):
        if i == len(rest) - p2back:
            k.add("poll2", k.poll_item(f"v{V_P2}", f"s{PF2}"), "hflag")
        v_item(k, n, q, "f2bar" if (i == 0 and o.get("nb", 1)) else None, "hstored" if i == vpre else None, "hflag" if i == vmid else None)
    if p2back == 0: k.add("poll2", k.poll_item(f"v{V_P2}", f"s{PF2}"), "hflag")
    h_stream(k, o)

def q_stream(k, lo, hi, o, role):
    p1pos = o.get("p1pos"+role, 63)
    for n in range(lo, hi):
        if n == p1pos: k.add("poll1", k.poll_item(f"v{V_P1}", f"s{PF1}"), "setup")
        fl = o.get("qfl", "") if (role == "A" or n >= 32) else ""
        q_item(k, n, fl, "xstored" if (role == "A" and n == o.get("qpreA", 99)) else None)

PKA = 0
def adds(d, s_, n=16):
    if PKA: return [f"v_pk_add_f32 v[{d+q}:{d+q+1}], v[{d+q}:{d+q+1}], v[{s_+q}:{s_+q+1}]" for q in range(0, n, 2)]
    return [f"v_add_f32 v{d+q}, v{d+q}, v{s_+q}" for q in range(n)]
def rreads(off): return [f"ds_read_b128 {vr(RT+(p*4+jj)*4,4)}, v{V_RR+p} offset:{off+jj*1024}" for p in range(3) for jj in range(4)]
def hpack(dst, src):
    return [f"v_cvt_pk_bf16_f32 v{dst+f*4+rr*2+hh}, v{src+(2*hh)*4+2*f+rr}, v{src+(2*hh+1)*4+2*f+rr}" for f in range(2) for rr in range(2) for hh in range(2)]

def p2_main(k, nv1, o):
    k.stamp("q_all")
    nb = o.get("nb", 1)
    assert nv1 == 0
    for p in range(8):
        own = (p % 4 == 3)
        for st in range(8):
            need(k, f"x{p}_{st|1 if o.get('w2x', 0) else st}")
            if st == 0: k.stamp(f"p2_{p//2}{'ab'[p % 2]}")
            if p % 4 != 0 and st == 2:
                k.fill(f"ds_write_b128 v{V_RW}, {accname(p-1, jj, False)} offset:{(0 if (nb and p < 4) else P2R)+((p-1) % 4)*4096+jj*1024}" for jj in range(4))
            if p == 7 and st == 3:
                k.fill(["s_waitcnt lgkmcnt(0)", "s_barrier"] + rreads(P2R) + ["s_waitcnt lgkmcnt(4)"] + adds(RT, RT+16) + ["s_waitcnt lgkmcnt(0)"] + adds(RT, RT+32))
            if (p, st) == tuple(o.get("r0at", (3, 6))):
                k.fill(["s_waitcnt lgkmcnt(0)", "s_barrier"] + rreads(0 if nb else P2R) + ["s_waitcnt lgkmcnt(4)"] + adds(RT, RT+16) + ["s_waitcnt lgkmcnt(0)"] + ([] if nb else ["s_barrier"]) + adds(RT, RT+32))
            if (p, st) == tuple(o.get("hpat", (4, 2))):
                k.fill(adds(RT, OWN) + hpack(PK+8, RT))
            if p == 5 and st == 1 and not nb: k.drain()
            if (p, st) == tuple(o.get("hs0at", (5, 1))):
                k.drain()
                k.vmem(f"buffer_store_dwordx4 v[{PK+8}:{PK+11}], v{V_L16}, {srdr(SRD_WS)}, s{HST} offen sc1", "hst0")
                k.vmem(f"buffer_store_dwordx4 v[{PK+12}:{PK+15}], v{V_L16}, {srdr(SRD_WS)}, s{HST} offen offset:1024 sc1", "hst0")
                k(f"s_add_u32 s{HST}, s{HST}, {4*112*1024}")
                k.L += 2
            if (p, st) == tuple(o.get("f2at", (6, 6))):
                k.wait("hst0")
                k.flag(f"s{FL1}")
                k.open("f2bar")
                k.stamp("v1_done")
                k.L -= 1
            for jj in range(4):
                acc = accname(p, jj, own)
                k(f"v_mfma_f32_16x16x32_bf16 {acc}, {vr(WQ+(st*4+jj)*4,4)}, {ar(((p*8+st) % XRN)*4,4)}, {'0' if st == 0 else acc}")
                if jj == 0: k.pump()
                if p == 7: k.drain(1 if st == 2 else 3)
                elif jj: k.drain(o.get('fn2', 3) if p in (3, 4) else 2)
            k.open(f"xfree{p*8+st}")
        if p == 6: k.drain()
    k.drain()
    k.stamp("p2_mfma")
    k("s_nop 4")
    pkadd(k, OWN, RT)
    for x in hpack(PK, OWN): k(x)
    k.vmem(f"buffer_store_dwordx4 v[{PK}:{PK+3}], v{V_L16}, {srdr(SRD_WS)}, s{HST} offen sc1", "hst")
    k.vmem(f"buffer_store_dwordx4 v[{PK+4}:{PK+7}], v{V_L16}, {srdr(SRD_WS)}, s{HST} offen offset:1024 sc1", "hst")
    k.open("hstored")
    k.L = o.get("L", 12) + 4
    k.pump()
    p3_setup(k)
    k.wait("hst")
    k.flag(f"s{FL2}")
    k.stamp("h_flag")
    k.open("hflag")
    k.L = o.get("Lf2", 20)
    k.pump()
    for n in range(nv1, k.NS): v_fetch(k, n)

def p3_main(k, o):
    FN = o.get("fn", 2)
    L3, LH = o.get("L3", 12), min(o.get("L3hi"+k.role, 12), k.HRN-5)
    hiat = o.get("hiat", 2)
    def tagcheck():
        out = []
        for jj in range(4):
            r = PLD+jj*4
            out += [f"v_perm_b32 v{PK}, v{r+1}, v{r}, v{TGV+5}", f"v_perm_b32 v{PK+1}, v{r+3}, v{r+2}, v{TGV+6}",
                    f"v_or_b32 v{PK}, v{PK}, v{PK+1}", f"v_xor_b32 v{PK+2+jj}, s{TAGB}, v{PK}"]
        return out + [f"v_or3_b32 v{PK}, v{PK+2}, v{PK+3}, v{PK+4}", f"v_or_b32 v{PK}, v{PK}, v{PK+5}", f"v_cmp_ne_u32 vcc, 0, v{PK}"]
    k.L = o.get("L3", 12)
    k("s_waitcnt lgkmcnt(0)")
    k.stamp("v_done")
    for p in range(8):
        own = (p % 4 == 3)
        off = 0 if p < 4 else P2R
        for j in range(k.NS):
            n = p*k.NS+j
            need(k, f"h{p}_{j|1 if o.get('w2', 0) else j}")
            if j == 2 and p % 4 != 0:
                for jj in range(4):
                    k.fill([f"ds_write_b128 v{V_RW}, {accname(p-1, jj, False)} offset:{off+((p-1) % 4)*4096+jj*1024}"] + [""]*(FN-1))
            if own and j == o.get('barat'+k.role, 4 if k.NS >= 14 else 3):
                k.fill(["s_waitcnt lgkmcnt(0)", "s_barrier"] + rreads(off) + ["s_waitcnt lgkmcnt(4)"] + adds(RT, RT+16) + ["s_waitcnt lgkmcnt(0)"] + adds(RT, RT+32))
            if p == 7 and j == o.get("tcat", 4):
                assert k.isdone("pld")
                k.fill(tagcheck())
            if p == 7 and j == max(o.get("tcat", 4), o.get('barat'+k.role, 4 if k.NS >= 14 else 3)): k.fill(adds(PLD, RT))
            if p == hiat and j == 0: k.L = LH
            if p == 4 and j == 2:
                k.drain()
                k.fill(adds(RT, OWN) + [f"v_bfi_b32 v{RT+r}, v{TGV+4}, v{TGV+(r % 4)}, v{RT+r}" for r in range(16)])
            for jj in range(4):
                acc = accname(p, jj, own)
                k(f"v_mfma_f32_16x16x32_bf16 {acc}, {vreg(k, j, jj*4, 4)}, {vr(WQ+4*(n % k.HRN),4)}, {'0' if j == 0 else acc}")
                for _ in range(o.get("pad", 0)): k(f"s_mov_b32 s{T2}, 0x12345678")
                if jj == 0: k.pump(o.get("pumpn", 2) if k.L > L3 else 99)
                else: k.drain(o.get("fn7", 3) if p == 7 else FN)
            if p == 4 and j == 7:
                k.drain()
                for jj in range(4):
                    k.vmem(f"buffer_store_dwordx4 {vr(RT+jj*4,4)}, v{V_L16}, {srdr(SRD_WS)}, s{PA} offen offset:{jj*1024} sc1", "pst")
                k.L = LH + 4
                k.stamp("part_st")
            if "pst" in k.vm and k.isdone("pst"): k.L = o.get("L3", 12)
            if j == 0: k.stamp(f"pos{p}")
    k.drain()
    L = k.lab("RETRY"); E = k.lab("RETRYX")
    k(f"s_mov_b32 s{S_CNT}, 0")
    k("s_nop 2")
    k(f"s_cbranch_vccz {E}")
    k.a.label(L)
    for jj in range(4): k(pld_ins(jj))
    k(f"s_add_u32 s{S_CNT}, s{S_CNT}, 1")
    k("s_waitcnt vmcnt(0)")
    for x in tagcheck(): k(x)
    pkadd(k, PLD, RT)
    k(f"s_cmp_gt_u32 s{S_CNT}, 0x40000")
    k(f"s_cbranch_scc1 {E}")
    k(f"s_cbranch_vccnz {L}")
    k.a.label(E)
    k.stamp("p3_mfma")
    k("s_nop 1")
    pkadd(k, OWN, PLD)
    for q in range(8):
        k(f"v_cvt_pk_bf16_f32 v{PK+q}, v{OWN+2*q}, v{OWN+2*q+1}")
    k("s_nop 1")
    for pr in range(2):
        k(f"v_permlane16_swap_b32 v{PK+4*pr}, v{PK+4*pr+2}")
        k(f"v_permlane16_swap_b32 v{PK+4*pr+1}, v{PK+4*pr+3}")
    yfl = o.get("yfl", "")
    for pr in range(2):
        k(f"buffer_store_dwordx4 v[{PK+4*pr}:{PK+4*pr+3}], v5, {srdr(SRD_OUT)}, s{YB} offen offset:{64*pr} {yfl}")
    assert k.sp == len(k.stream)

def cw_setup(a):
    a("s_getpc_b64 s[72:73]")
    a.label("PCREF")
    a(f"s_sub_u32 s72, s72, PCREF-{KNAME}")
    a("s_subb_u32 s73, s73, 0")
    a("v_lshlrev_b32 v240, 7, v0")
    a("v_add_u32 v242, 0x8000, v240")
    a(f"v_min_u32 v242, DONE-{KNAME}, v242")
    a(f"v_min_u32 v240, DONE-{KNAME}, v240")
    a("v_mov_b32 v241, s73")
    a("v_mov_b32 v243, s73")
    a("v_add_co_u32 v240, vcc, s72, v240")
    a("v_addc_co_u32 v241, vcc, 0, v241, vcc")
    a("v_add_co_u32 v242, vcc, s72, v242")
    a("v_addc_co_u32 v243, vcc, 0, v243, vcc")
def cw_go(a):
    a("global_load_dword v244, v[240:241], off")
    a("global_load_dword v245, v[242:243], off")

def line_loop(k, srd_, rowbytes, s_off, count, label, lpr=8, n=8):
    sh = {8: 3, 16: 4}[lpr]
    k(f"v_lshrrev_b32 v5, {sh}, v1")
    k(f"v_mul_u32_u24 v5, {rowbytes}, v5")
    k(f"v_and_b32 v6, {lpr-1}, v1")
    k("v_lshl_add_u32 v5, v6, 4, v5")
    k(f"s_mov_b32 s{S_CNT}, {count}")
    k.a.label(label)
    for t in range(n):
        k(f"buffer_load_dwordx4 {vr(16+t*4,4)}, v5, {srdr(srd_)}, s{s_off} offen")
        k(f"s_add_u32 s{s_off}, s{s_off}, {(64//lpr)*rowbytes}")
    k(f"s_add_u32 s{s_off}, s{s_off}, s{T3}")
    k(f"s_sub_u32 s{S_CNT}, s{S_CNT}, 1")
    k(f"s_cmp_lg_u32 s{S_CNT}, 0")
    k(f"s_cbranch_scc1 {label}")

def help_q(k, rows):
    k(f"s_mul_i32 s{T0}, s{S_XCD}, 7")
    k(f"s_sub_u32 s{T1}, 1, s{T0}")
    k(f"s_and_b32 s{T1}, s{T1}, 3")
    k(f"s_lshl_b32 s{T2}, s{S_HALF}, 2")
    k(f"s_add_u32 s{T2}, s{T2}, s{T1}")
    k(f"s_cmp_lt_u32 s{T2}, 7")
    k(f"s_cselect_b32 s{T1}, s{T2}, s{T1}")
    k(f"s_add_u32 s{T0}, s{T0}, s{T1}")
    k(f"s_lshl_b32 s{T0}, s{T0}, 8")
    k(f"s_add_u32 s{T0}, s{T0}, {(128-rows)*14336}")
    k(f"s_mul_i32 s{T1}, s{S_WAVE}, {256*14336}")
    k(f"s_add_u32 s{T0}, s{T0}, s{T1}")
    k(f"s_mov_b32 s{T3}, {(128-rows)*14336}")
    m = k.o.get("hqm", 0)
    if m == 0:
        line_loop(k, SRD_QW, 14336, T0, 2, "HQ", 16, rows//4)
        return
    k("v_lshrrev_b32 v5, 4, v1")
    k("v_mul_u32_u24 v5, 14336, v5")
    k("v_lshl_add_u32 v5, v3, 4, v5")
    for t in range(rows//4):
        for g in range(2):
            ch = t if m == 1 else rows//4-1-t
            k(f"s_add_u32 s{T1}, s{T0}, {(128*g + 4*ch)*14336}")
            k(f"buffer_load_dwordx4 {vr(16+(2*t+g)*4,4)}, v5, {srdr(SRD_QW)}, s{T1} offen")

def help_v(k, blk0, nblk, label, blk0o, nblko, blk2, nblk2):
    k(f"s_lshr_b32 s{T0}, s{S_XCD}, 1")
    k(f"s_mul_i32 s{T0}, s{T0}, 14")
    k(f"s_sub_u32 s{T1}, 3, s{T0}")
    k(f"s_and_b32 s{T1}, s{T1}, 7")
    k(f"s_lshl_b32 s{T2}, s{S_HALF}, 3")
    k(f"s_add_u32 s{T2}, s{T2}, s{T1}")
    k(f"s_cmp_lt_u32 s{T2}, 14")
    k(f"s_cselect_b32 s{T1}, s{T2}, s{T1}")
    k(f"s_add_u32 s{T0}, s{T0}, s{T1}")
    k(f"s_lshl_b32 s{T0}, s{T0}, 7")
    NA = k.o.get("NA", 16)
    k(f"s_xor_b32 s{L0}, s{T0}, 128")
    k(f"s_mul_i32 s{T1}, s{S_WAVE}, {28-NA}")
    k(f"s_mul_i32 s{T2}, s{S_WAVE}, {NA}")
    k(f"s_add_u32 s{T2}, s{T2}, {112-4*NA}")
    k(f"s_bitcmp1_b32 s{S_XCD}, 0")
    k(f"s_cselect_b32 s{T1}, s{T2}, s{T1}")
    k(f"s_mul_i32 s{T1}, s{T1}, {32*7168}")
    k(f"s_add_u32 s{T0}, s{T0}, s{T1}")
    k(f"s_bitcmp1_b32 s{S_XCD}, 0")
    k(f"s_cselect_b32 s{T1}, {blk0o}, {blk0}")
    k(f"s_cselect_b32 s{T2}, {nblko}, {nblk}")
    k(f"s_cselect_b32 s{T3}, {hex((-2*64*7168 if k.o.get('hback', 1) else 0) & 0xffffffff)}, 0")
    k(f"s_mul_i32 s{T1}, s{T1}, {64*7168}")
    k(f"s_add_u32 s{T0}, s{T0}, s{T1}")
    line_loop(k, SRD_V, 7168, T0, f"s{T2}", label)
    if k.o.get("cw", 0) & 4 and label == "HV15": cw_go(k)
    if k.o.get('deleg', 1) and nblk2:
        k(f"s_bitcmp1_b32 s{S_XCD}, 0")
        k(f"s_cbranch_scc0 {label}X")
        k(f"s_mul_i32 s{T1}, s{S_WAVE}, {(28-NA)*32*7168}")
        k(f"s_add_u32 s{L0}, s{L0}, s{T1}")
        k(f"s_add_u32 s{L0}, s{L0}, {(4*NA*32 + blk2*64)*7168}")
        k(f"s_mov_b32 s{T3}, 0")
        line_loop(k, SRD_V, 7168, L0, nblk2, label+"B")
        k.a.label(label+"X")

def mid_main(k, nv1, vat):
    def vpart():
        for n in range(nv1):
            if n == nv1//2: k.L = k.o.get("L", 12)
            v_fetch(k, n)
        if nv1:
            k("s_waitcnt lgkmcnt(0)")
            k.open(f"vfree{nv1-1}")
    for pr in range(32):
        if pr == vat//2: vpart()
        if pr == 16 and k.role == "B": k.L = k.o.get("L", 12)
        dequant_pair(k, pr)
        if pr == 15: k.stamp("q_half")
    if vat == 64: vpart()

def role_a(a, o):
    k = K(a, o); k.role = "A"; k.NS = o.get("NA", 16); k.HRN = 32 - 4*max(0, k.NS-14); NS = k.NS
    a.label("ROLE_A")
    k(f"s_lshr_b32 s{T0}, s{S_I2}, 1")
    k(f"s_and_b32 s{T1}, s{T0}, 1")
    k(f"s_lshl_b32 s{S_N64}, s{S_XCD}, 1")
    k(f"s_add_u32 s{S_N64}, s{S_N64}, s{T1}")
    k(f"s_lshr_b32 s{T0}, s{T0}, 1")
    k(f"s_lshl_b32 s{S_M32}, s{S_HALF}, 2")
    k(f"s_add_u32 s{S_M32}, s{S_M32}, s{T0}")
    k(f"s_lshl_b32 s{T1}, s{T1}, 1")
    k(f"s_add_u32 s{RHO}, s{S_M32}, s{T1}")
    k(f"s_lshl_b32 s{T0}, s{S_N64}, 7")
    k(f"s_lshl_b32 s{T1}, s{S_WAVE}, 19")
    k(f"s_add_u32 s{T0}, s{T0}, s{T1}")
    dma_voff(k, V_U0, V_U1, 2048, T0)
    k(f"v_lshrrev_b32 v{V_X0}, 3, v1")
    k(f"v_lshlrev_b32 v{V_X0}, 11, v{V_X0}")
    k(f"v_xor_b32 v{V_T2}, v{V_T2}, v2")
    k(f"v_lshl_add_u32 v{V_X0}, v{V_T2}, 4, v{V_X0}")
    k(f"s_lshl_b32 s{T0}, s{S_M32}, 16")
    k(f"s_lshl_b32 s{T1}, s{S_WAVE}, 9")
    k(f"s_add_u32 s{T0}, s{T0}, s{T1}")
    k(f"v_add_u32 v{V_X0}, s{T0}, v{V_X0}")
    k(f"v_xor_b32 v{V_X1}, 64, v{V_X0}")
    k("s_waitcnt lgkmcnt(0)")
    srd(a, SRD_U, 16, U_BYTES)
    srd(a, SRD_X, 8, X_BYTES)
    k(f"s_lshl_b32 s{XST_}, s{S_HALF}, 16")
    def p1_item(jp, i):
        def f(tag):
            if i in (0, 4, 8):
                k(f"s_add_u32 s{L1}, s{RHO}, {jp}")
                k(f"s_and_b32 s{L1}, s{L1}, 3")
            if i == 0: k(f"s_lshl_b32 s{L0}, s{L1}, 7")
            if i in (4, 8):
                k(f"s_lshl_b32 s{L0}, s{L1}, 17")
                if i == 8: k(f"s_add_u32 s{L0}, s{L0}, 0x10000")
                k(f"s_xor_b32 s{L0}, s{L0}, s{XST_}")
            k(f"s_add_u32 m0, s{S_AREA}, {P1R + (jp % 2)*4096 + i*1024 if i < 4 else jp*8192 + (i-4)*1024}")
            if i not in (0, 4, 8): k(f"s_add_u32 s{L0}, s{L0}, 0x4000")
            else: k("s_nop 0")
            if i < 4: k.vmem(f"buffer_load_dwordx4 v{V_X0+(i&1)}, {srdr(SRD_X)}, s{L0} offen lds", tag)
            else: k.vmem(f"buffer_load_dwordx4 v{V_U0+(i&1)}, {srdr(SRD_U)}, s{L0} offen lds", tag)
        k.add(f"p1x{jp//2}" if i < 4 else f"p1u{jp}_{0 if i < 8 else 1}", f, "p1free" if (jp == 2 and i == 0) else None)
    X = lambda jp: [(jp, i) for i in range(4)]
    U = lambda jp, u: [(jp, i) for i in range(4+4*u, 8+4*u)]
    for jp, i in X(0) + X(1) + U(0, 0): p1_item(jp, i)
    for jp, i in U(0, 1) + X(2) + X(3) + U(1, 0) + U(1, 1) + U(2, 0) + U(2, 1) + U(3, 0) + U(3, 1): p1_item(jp, i)
    k.nv1 = 0
    npf = o.get("npfA", 14-NS//2)
    pfat = NS - o.get("pfbackA", 0)
    pford = list(range(npf)) if o.get("pffwd", 0) else list(range(13-NS//2, 13-NS//2-npf, -1))
    def pfs():
        for st in pford:
            for q in range(4): vpf_item(k, st, q)
    for n in range(NS):
        if n == pfat: pfs()
        for q in range(4): v_item(k, n, q, "setup")
    if pfat == NS: pfs()
    k.add("poll2a", k.poll_item(f"v{V_P2}", f"s{PF1}"))
    h_stream(k, o)
    k.pump()
    epoch_load(k)
    srd(a, SRD_V, 18, V_BYTES); srd(a, SRD_OUT, 20, OUT_BYTES); srd(a, SRD_WS, 24, WS_BYTES)
    tr_addrs(k)
    k(f"v_lshrrev_b32 v{V_XR0}, 1, v3")
    k(f"v_xor_b32 v{V_XR0}, v{V_XR0}, v2")
    k(f"v_lshlrev_b32 v{V_XR0}, 4, v{V_XR0}")
    k(f"v_lshl_add_u32 v{V_XR0}, v3, 7, v{V_XR0}")
    k(f"v_add_u32 v{V_XR0}, s{S_AREA}, v{V_XR0}")
    k(f"s_lshl_b32 s{T0}, s{S_HALF}, 6")
    k(f"v_xor_b32 v{V_XR0}, s{T0}, v{V_XR0}")
    k(f"v_xor_b32 v{V_XR1}, 64, v{V_XR0}")
    k(f"v_add_u32 v{V_RW}, s{S_AREA}, v{V_L16}")
    k(f"s_lshl_b32 s{T0}, s{S_WAVE}, 11")
    k(f"s_add_u32 s{T0}, s{T0}, {P1R}")
    k(f"v_add_u32 v{V_RR}, s{T0}, v{V_L16}")
    k(f"v_add_u32 v{V_RR+1}, {hex(2*AREA_SZ)}, v{V_RR}")
    k(f"s_and_b32 s{T1}, s{S_WAVE}, 1")
    k(f"s_lshl_b32 s{T0}, s{S_M32}, 1")
    k(f"s_add_u32 s{T0}, s{T0}, s{T1}")
    k(f"s_lshr_b32 s{T1}, s{S_WAVE}, 1")
    k(f"s_lshl_b32 s{T2}, s{S_N64}, 1")
    k(f"s_add_u32 s{T2}, s{T2}, s{T1}")
    k(f"s_lshl_b32 s{XSO}, s{T0}, 5")
    k(f"s_add_u32 s{XSO}, s{XSO}, s{T2}")
    k(f"s_lshl_b32 s{XSO}, s{XSO}, 10")
    k(f"s_lshl_b32 s{T1}, s{S_HALF}, 4")
    k(f"s_add_u32 s{T1}, s{T1}, s{S_N64}")
    k(f"s_lshl_b32 s{T1}, s{T1}, 2")
    k(f"s_and_b32 s{T0}, s{S_M32}, 3")
    k(f"s_add_u32 s{T1}, s{T1}, s{T0}")
    k(f"s_lshl_b32 s{T1}, s{T1}, 7")
    k(f"s_add_u32 s{FL1}, s{T1}, {hex(F1_OFF)}")
    v_setup(k)
    k.stamp("issue0")
    k.L = o.get("Lp1", 18)
    k.pump()
    A1 = 224
    def acc1(jj, mi): return ar(A1 + (((jj >> 1)*2 + mi)*2 + (jj & 1))*4, 4)
    def xreads(jp0):
        for jp in (jp0, jp0+1):
            for u in range(2):
                for mi in range(2):
                    k(f"ds_read_b128 {ar(((2*jp+u)*2+mi)*4,4)}, v{V_XR0+u} offset:{P1R+(jp % 2)*4096+mi*2048}")
    def ureads(j):
        for jj in range(4):
            for h in range(2):
                k(f"ds_read_b64_tr_b16 {ar(64+(j % 2)*16+jj*4+2*h,2)}, v{V_TR+jj} offset:{j*4096+h*512}")
    k.wait("p1x0")
    xreads(0)
    tag_calc(k)
    k.open("p1free")
    k.pump()
    k.wait("p1u0_0")
    k.stamp("p1s0")
    ureads(0)
    for j in range(8):
        if j == 2: xreads(2)
        if j < 7:
            k.wait(f"p1u{(j+1)//2}_{(j+1) % 2}")
            if j == 6:
                k.stamp("p1_loaded"); k.L = o.get("L", 12)
            k.stamp(f"p1s{j+1}")
            k("s_waitcnt lgkmcnt(0)")
            ureads(j+1)
        else:
            k("s_waitcnt lgkmcnt(0)")
        for jj in range(4):
            for mi in range(2):
                k(f"v_mfma_f32_16x16x32_bf16 {acc1(jj, mi)}, {ar(64+(j % 2)*16+jj*4,4)}, {ar((j*2+mi)*4,4)}, {'0' if j == 0 else acc1(jj, mi)}")
            k.pump(2)
    k(f"s_mov_b32 s{T0}, 0x58000000")
    k(f"v_mov_b32 v{V_X1}, s{T0}")
    k("s_nop 3")
    for q in (0, 2, 1, 3, 4, 6, 5, 7):
        k(f"ds_write_b128 v{V_RW}, {ar(A1+q*4,4)} offset:{P1R+q*1024}")
    k("s_waitcnt lgkmcnt(0)")
    k("s_barrier")
    k.stamp("p1_bar")
    R = 16
    for w in range(4):
        for c in range(2):
            k(f"ds_read_b128 {vr(R+(w*2+c)*4,4)}, v{V_RR+w//2} offset:{(w % 2)*AREA_SZ+c*1024}")
    k("s_waitcnt lgkmcnt(4)")
    pkadd(k, R, R+8, 4)
    k("s_waitcnt lgkmcnt(0)")
    pkadd(k, R+16, R+24, 4)
    pkadd(k, R, R+16, 4)
    for q in range(4):
        d = R+2*q
        k(f"v_pk_mul_f32 v[{d}:{d+1}], v[{d}:{d+1}], v[{V_X1}:{V_X1+1}] op_sel_hi:[1,0]")
    for q in range(4):
        k(f"v_cvt_pk_bf16_f32 v{R+32+q}, v{R+2*q}, v{R+2*q+1}")
    k.vmem(f"buffer_store_dwordx4 v[{R+32}:{R+35}], v{V_L16}, {srdr(SRD_WS)}, s{XSO} offen sc1", "xrst")
    k.stamp("p1_done")
    k(f"s_cmp_lt_u32 s{S_I2}, 14")
    k("s_cbranch_scc1 WORKER_A")
    k("s_waitcnt vmcnt(0)")
    sv = list(k.vm)
    k.flag(f"s{FL1}")
    if o.get("n14", 4): help_v(k, o.get("b14", 3), o.get("n14", 3), "HV14", o.get("b14o", 7), o.get("n14o", 2), o.get("b14d", 3), o.get("n14d", 3))
    k("s_waitcnt vmcnt(0)")
    k("s_branch FINISH")
    k.vm = sv
    a.label("WORKER_A")
    k.open("setup")
    k.L = o.get("LA", 12)
    k.pump(o.get("nxA", 0))
    red_addrs(k, 0)
    p3_setup(k)
    k.wait("xrst")
    k.flag(f"s{FL1}"); k.open("f1"); k.open("f1done")
    k.stamp("h_flag")
    k.pump()
    def pfw():
        for st in pford:
            need(k, f"pf{st}"); k.pump()
    for n in range(NS):
        if n == pfat: pfw()
        v_fetch(k, n)
        if n == 6: k.stamp("q_half")
    k.stamp("v1_done")
    if pfat == NS: pfw()
    p3_main(k, o)
    k(f"s_or_b32 s{T0}, s{S_XCD}, s{S_I2}")
    k(f"s_or_b32 s{T0}, s{T0}, s{S_WAVE}")
    k(f"s_cmp_lg_u32 s{T0}, 0")
    k("s_cbranch_scc1 FINISH")
    k(f"s_add_u32 s{T0}, s{S_EP}, 1")
    k(f"v_mov_b32 v{V_T}, s{T0}")
    k(f"s_lshl_b32 s{T0}, s{S_HALF}, 7")
    k(f"s_add_u32 s{T0}, s{T0}, {hex(EP_OFF)}")
    k("s_mov_b64 exec, 1")
    k(f"buffer_store_dword v{V_T}, v0, {srdr(SRD_WS)}, s{T0} offen sc1")
    k("s_mov_b64 exec, -1")
    k("s_branch FINISH")

def role_b(a, o):
    k = K(a, o); k.role = "B"; k.NS = 28 - o.get("NA", 16); k.HRN = 32
    k.L = o.get("LB0", 12)
    a.label("ROLE_B")
    k(f"s_cmp_lt_u32 s{S_I2}, 14")
    k("s_cbranch_scc1 WORKER_B")
    k("s_waitcnt lgkmcnt(0)")
    srd(a, SRD_V, 18, V_BYTES)
    srd(a, SRD_QW, 10, QW_BYTES)
    if o.get("hq", 52): help_q(k, o.get("hq", 52))
    if o.get("cw", 0) & 2: cw_go(k)
    if o.get("n15", 3): help_v(k, o.get("b15", 0), o.get("n15", 3), "HV15", o.get("b15o", 3), o.get("n15o", 4), o.get("b15d", 0), o.get("n15d", 3))
    k("s_waitcnt vmcnt(0)")
    k("s_branch FINISH")
    a.label("WORKER_B")
    role_ids(k)
    q_setup(k, False)
    k("s_waitcnt lgkmcnt(0)")
    srd(a, SRD_QW, 10, QW_BYTES); srd(a, SRD_SC, 12, SC_BYTES); srd(a, SRD_Z, 14, SC_BYTES)
    nv1, vat = o.get("nv1B", 0), o.get("vatB", 32)
    k.nv1 = nv1
    sz_items(k)
    q_stream(k, 0, vat, o, "B")
    for n in range(nv1):
        for q in range(4): v_item(k, n, q, "setup")
    q_stream(k, vat, 64, o, "B")
    tail_stream(k, nv1, o, "B")
    k.pump()
    epoch_load(k)
    srd(a, SRD_V, 18, V_BYTES); srd(a, SRD_OUT, 20, OUT_BYTES); srd(a, SRD_WS, 24, WS_BYTES)
    k("s_setreg_imm32_b32 hwreg(HW_REG_MODE, 4, 2), 3")
    tr_addrs(k)
    v_setup(k)
    p2_setup(k)
    red_addrs(k, 0)
    k.open("setup")
    k.L = o.get("LB1", 16)
    k.pump()
    k.wait("sz")
    tag_calc(k)
    mid_main(k, nv1, vat)
    p2_main(k, nv1, o)
    p3_main(k, o)

def build(opt):
    global PKA
    PKA = opt.get("pk", 0)
    a = Asm(); K.uid = 0
    a.raw(HEADER.rstrip())
    a.raw(f"; @launch grid=(256,1,1) block=(256,1,1) lds={LDS_BYTES}")
    a.raw('.amdgcn_target "amdgcn-amd-amdhsa--gfx950"')
    kernel_begin(a, KNAME)
    a("s_cmp_ge_u32 s2, 256")
    a("s_cbranch_scc1 DONE")
    if opt.get("stamp"): a(f"{TIMER(opt)} s[92:93]")
    a("s_load_dwordx16 s[8:23], s[0:1], 0")
    a("s_load_dwordx2 s[24:25], s[0:1], 64")
    cw = opt.get("cw", 0)
    if cw:
        a(f"s_cmp_lt_u32 s2, {240 if cw & 8 == 0 else 224}")
        a("s_cbranch_scc1 NOCW")
        cw_setup(a); cw_go(a)
        a.label("NOCW")
    a("v_lshrrev_b32 v4, 6, v0")
    a("v_and_b32 v1, 63, v0")
    a(f"v_readfirstlane_b32 s{S_WAVE}, v4")
    a("v_lshrrev_b32 v2, 4, v1")
    a("v_and_b32 v3, 15, v1")
    a(f"v_lshlrev_b32 v{V_L16}, 4, v1")
    a("v_mov_b32 v0, 0")
    a(f"s_and_b32 s{S_XCD}, s2, 7")
    a(f"s_lshr_b32 s{T0}, s2, 3")
    a(f"s_and_b32 s{S_HALF}, s{T0}, 1")
    a(f"s_lshr_b32 s{S_I2}, s{T0}, 1")
    a(f"s_mul_i32 s{S_AREA}, s{S_WAVE}, {AREA_SZ}")
    a(f"s_bitcmp1_b32 s{S_I2}, 0")
    a("s_cbranch_scc1 ROLE_B")
    role_a(a, opt)
    role_b(a, opt)
    a.label("FINISH")
    if opt.get("stamp"):
        a("s_waitcnt vmcnt(0)")
        a(f"{TIMER(opt)} s[72:73]")
        a("s_load_dwordx2 s[70:71], s[0:1], 64")
        a("s_waitcnt lgkmcnt(0)")
        srd(a, 76, 70, 1 << 20, STAMP_OFF)
        a("s_lshl_b32 s70, s2, 2")
        a(f"s_add_u32 s70, s70, s{S_WAVE}")
        a("s_lshl_b32 s70, s70, 7")
        regs = [92] + STAMP_REGS[:len(STAMP_NAMES)] + [72]
        a("s_mov_b64 exec, 1")
        for i, r in enumerate(regs):
            a(f"v_mov_b32 v16, s{r}")
            a(f"v_mov_b32 v17, s{r+1}")
            a(f"buffer_store_dwordx2 v[16:17], v0, s[76:79], s70 offen offset:{i*8}")
            a("s_nop 1")
    a.label("DONE")
    a("s_endpgm")
    kernel_desc(a, KNAME, 512, 102, 256)
    return a.text(), ["start"] + stamp_names(opt) + ["end"]

if __name__ == "__main__":
    opt = eval(sys.argv[2]) if len(sys.argv) > 2 else {}
    txt, names = build(opt)
    open(sys.argv[1], "w").write(txt)
    print(len(txt))
```

```python
import sys
from asmlib import *

KNAME = "standalone__weight_only_int_quip__sampling_kernel"
XR_OFF   = 0
H_OFF    = 1 << 20
F1_OFF   = 3 << 20
F2_OFF   = F1_OFF + 16384
EP_OFF   = F1_OFF + 32768
F2A_D    = 32768
PFB = 78
PART_OFF = 4 << 20
WS_BYTES = 8 << 20
STAMP_OFF = 128 << 20
OOB = 0x7f000000
AREA_SZ = 40960
P2R = 20480
P1R = 32768
LDS_BYTES = 163840
RING = 5

S_WAVE, S_EP = 4, 5
SRD_X, SRD_QW, SRD_SC, SRD_Z, SRD_U, SRD_V, SRD_OUT, SRD_WS = 28, 32, 36, 40, 44, 48, 52, 56
S_XCD, S_HALF, S_I2, S_M32, S_N64, S_M64, S_T2, S_KS, S_T, S_TAG = 60, 61, 62, 63, 64, 65, 66, 67, 68, 69
T0, T1, T2, T3 = 70, 71, 72, 73
S_AREA, S_CNT = 74, 75
L0, L1 = 76, 77
QB, GI = 78, 82
FL1, XST_, XRB, RHO = 86, 87, 88, 89
VB = 90
HB = 36
MOTH, MOWN, L2, TAGB, WT = 40, 41, 42, 43, 3
PF1, PF2, FL2, HST = 6, 7, 26, 27
PA, PB, YB, XSO = 94, 95, 96, 97
XO = 98

V_L16, V_X0, V_X1, V_T2, V_Q, V_T, V_VD0, V_VD1, V_TR = 4, 5, 6, 7, 8, 9, 10, 11, 12
WQ, STG, SZ, RAW, OWN = 16, 144, 240, 252, 240
QR = 20
V_U0, V_U1, V_XR0, V_XR1 = 224, 225, 226, 227
TGV = 224
XRN = 16
V_RW, V_RR = 232, 233
V_P1, V_P2, V_PR = 236, 237, 238
RT, PK, PLD = 144, 192, 208
STAMP_REGS = list(range(8, 26, 2)) + [28, 30, 44]
STAMP_NAMES = ["p1_loaded", "p1_done", "q_half", "v1_done", "h1_seen", "q_all", "p2_mfma", "h_flag", "h2_seen", "v_done", "part_st", "p3_mfma"]

def stamp_names(o):
    f = o.get("fine")
    if f == "p3": return ["h_flag", "h2_seen", "v_done"] + [f"pos{p}" for p in range(8)] + ["p3_mfma"]
    if f == "v": return ["p2_mfma", "h_flag"] + [f"vf{n}" for n in (0, 2, 4, 6, 7, 8, 10, 12)] + ["h2_seen", "v_done"]
    if f == "p1": return ["issue0"] + [f"p1s{j}" for j in range(8)] + ["p1_bar", "p1_done", "q_half"]
    if f == "p2": return ["h1_seen", "q_all"] + [f"p2_{p}{h}" for p in range(4) for h in "ab"] + ["p2_mfma", "h_flag"]
    if f == "q": return ["p1_done"] + [f"qp{n}" for n in (0, 3, 7, 11, 15, 19, 23, 27)] + ["v1_done", "h1_seen", "q_all"]
    return STAMP_NAMES
def TIMER(o): return "s_memtime" if o.get("cyc") else "s_memrealtime"
def srdr(b): return f"s[{b}:{b+3}]"
def vreg(k, j, off, n):
    if j < 10: return ar(64 + 16*j + off, n)
    if j < 14: return ar(16*(j-10) + off, n)
    return vr(WQ + 4*k.HRN + 16*(j-14) + off, n)
def step_base(k, d, ns):
    k(f"s_mul_i32 s{d}, s{S_KS}, {112-4*ns}")
    k(f"s_mul_i32 s{T1}, s{S_WAVE}, {ns}")
    k(f"s_add_u32 s{d}, s{d}, s{T1}")

class K:
    uid = 0
    def __init__(self, a, opt):
        self.a = a; self.o = opt
        self.vm = []; self.done = 0
        self.stream = []; self.sp = 0; self.gates = set()
        self.L = opt.get("L", 12)
    def __call__(self, s): self.a(s)
    def vmem(self, s, tag):
        self.a(s); self.vm.append(tag)
    def isdone(self, tag):
        return tag in self.vm and tag not in [t for t, _, _ in self.stream[self.sp:]] and self.done > max(i for i, t in enumerate(self.vm) if t == tag)
    def wait(self, tag):
        while tag in [t for t, _, _ in self.stream[self.sp:]]:
            assert self.issue_one(force=True), f"gate closed while waiting for {tag}: {self.stream[self.sp]}"
        idx = max(i for i, t in enumerate(self.vm) if t == tag)
        if idx < self.done: return
        n = len(self.vm) - 1 - idx
        self.a(f"s_waitcnt vmcnt({min(n, 63)})")
        self.done = idx + 1
    def add(self, tag, fn, *gates): self.stream.append((tag, fn, [g for g in gates if g]))
    def issue_one(self, force=False):
        if self.sp >= len(self.stream): return False
        tag, fn, gates = self.stream[self.sp]
        if any(g not in self.gates for g in gates): return False
        if not force and len(self.vm) - self.done >= self.L: return False
        self.sp += 1
        fn(tag)
        return True
    def pump(self, n=99):
        while n > 0 and self.issue_one(): n -= 1
    def open(self, g): self.gates.add(g)
    def fill(self, items): self.fq = getattr(self, "fq", []) + list(items)
    def drain(self, n=999):
        q = getattr(self, "fq", [])
        while q and n > 0:
            self.a(q.pop(0)); n -= 1
    def stamp(self, name):
        if not self.o.get("stamp"): return
        names = stamp_names(self.o)
        if name not in names: return
        r = STAMP_REGS[names.index(name)]
        self.a(f"{TIMER(self.o)} s[{r}:{r+1}]")
        self.a("s_waitcnt lgkmcnt(0)")
    def lab(self, p):
        K.uid += 1
        return f"{p}_{K.uid}"
    def poll_item(self, voff, soff):
        return lambda tag: self.vmem(f"buffer_load_dword v{V_PR}, {voff}, {srdr(SRD_WS)}, {soff} offen sc1", tag)
    def poll_check(self, tag, voff, soff):
        self.wait(tag)
        L = self.lab("POLL"); E = self.lab("POLLX")
        self(f"v_cmp_ne_u32 vcc, s{S_TAG}, v{V_PR}")
        self(f"s_mov_b32 s{S_CNT}, 0")
        self(f"s_cbranch_vccz {E}")
        self.a.label(L)
        self(f"s_sleep {self.o.get('nap', 8)}")
        self(f"buffer_load_dword v{V_PR}, {voff}, {srdr(SRD_WS)}, {soff} offen sc1")
        self(f"s_add_u32 s{S_CNT}, s{S_CNT}, 1")
        self("s_waitcnt vmcnt(0)")
        self(f"v_cmp_ne_u32 vcc, s{S_TAG}, v{V_PR}")
        self(f"s_cmp_gt_u32 s{S_CNT}, 0x40000")
        self(f"s_cbranch_scc1 {E}")
        self(f"s_cbranch_vccnz {L}")
        self.a.label(E)
    def flag(self, soff, who=0):
        self(f"s_cmp_eq_u32 s{S_WAVE}, {who}")
        self(f"s_cselect_b32 s{T0}, 0, {hex(OOB)}")
        self(f"v_mov_b32 v{V_T2}, s{S_TAG}")
        self(f"v_mov_b32 v{V_PR+1}, s{T0}")
        self("s_barrier")
        self("s_mov_b64 exec, 1")
        self.vmem(f"buffer_store_dword v{V_T2}, v{V_PR+1}, {srdr(SRD_WS)}, {soff} offen sc1", "flag")
        self("s_mov_b64 exec, -1")

def dma_voff(k, d0, d1, rowbytes, s_add):
    k(f"v_lshrrev_b32 v{d0}, 3, v1")
    k(f"v_and_b32 v{d1}, 2, v{d0}")
    k(f"v_mul_u32_u24 v{d0}, {rowbytes}, v{d0}")
    k(f"v_and_b32 v{V_T2}, 7, v1")
    k(f"v_xor_b32 v{d1}, v{d1}, v{V_T2}")
    k(f"v_lshl_add_u32 v{d0}, v{d1}, 4, v{d0}")
    k(f"v_add_u32 v{d0}, s{s_add}, v{d0}")
    k(f"v_xor_b32 v{d1}, 64, v{d0}")

def tr_addrs(k):
    k("v_lshrrev_b32 v12, 2, v3")
    k("v_lshrrev_b32 v13, 1, v12")
    k("v_and_b32 v14, 1, v2")
    k("v_lshl_add_u32 v13, v14, 1, v13")
    k("v_lshl_add_u32 v12, v2, 3, v12")
    k("v_lshlrev_b32 v12, 7, v12")
    k("v_lshl_add_u32 v12, v13, 5, v12")
    k("v_and_b32 v13, 3, v1")
    k("v_lshl_add_u32 v12, v13, 3, v12")
    k(f"v_add_u32 v12, s{S_AREA}, v12")
    k("v_xor_b32 v13, 32, v12")
    k("v_xor_b32 v14, 64, v12")
    k("v_xor_b32 v15, 96, v12")

def role_ids(k):
    k(f"s_lshl_b32 s{S_M64}, s{S_HALF}, 1")
    k(f"s_lshr_b32 s{T0}, s{S_I2}, 1")
    k(f"s_mul_i32 s{S_T2}, s{S_XCD}, 7")
    k(f"s_add_u32 s{S_T2}, s{S_T2}, s{T0}")

def q_setup(k, oob, order=(0, 1, 2, 3)):
    if oob:
        k(f"s_cmp_lt_u32 s{S_I2}, 14")
        k(f"s_cselect_b32 s{T2}, 0, {hex(OOB)}")
    k(f"v_mul_u32_u24 v{V_Q}, {4*14336}, v2")
    k(f"v_lshl_add_u32 v{V_Q}, v3, 4, v{V_Q}")
    k(f"s_lshl_b32 s{T0}, s{S_T2}, 8")
    if oob: k(f"s_add_u32 s{T0}, s{T0}, s{T2}")
    k(f"v_add_u32 v{V_Q}, s{T0}, v{V_Q}")
    k(f"v_mul_u32_u24 v{V_T}, 7168, v2")
    k(f"v_lshl_add_u32 v{V_T}, v3, 3, v{V_T}")
    k(f"s_mul_i32 s{T0}, s{S_WAVE}, {4*7168}")
    k(f"s_lshl_b32 s{T1}, s{S_T2}, 7")
    k(f"s_add_u32 s{T0}, s{T0}, s{T1}")
    if oob: k(f"s_add_u32 s{T0}, s{T0}, s{T2}")
    k(f"v_add_u32 v{V_T}, s{T0}, v{V_T}")
    k(f"s_lshl_b32 s{T1}, s{S_HALF}, 1")
    for j in range(4):
        k(f"s_xor_b32 s{GI+j}, s{T1}, {order[j]}")
        k(f"s_lshl_b32 s{T0}, s{S_WAVE}, 2")
        k(f"s_add_u32 s{T0}, s{T0}, s{GI+j}")
        k(f"s_mul_i32 s{QB+j}, s{T0}, {64*14336}")

def epoch_load(k):
    k(f"s_lshl_b32 s{T0}, s{S_HALF}, 7")
    k(f"s_add_u32 s{T0}, s{T0}, {hex(EP_OFF)}")
    k(f"s_load_dword s{S_EP}, s[24:25], s{T0}")

def tag_calc(k):
    k("s_waitcnt lgkmcnt(0)")
    k(f"s_mul_i32 s{S_TAG}, s{S_EP}, 0x9e3779b1")
    k(f"s_add_u32 s{S_TAG}, s{S_TAG}, 0x7f4a7c15")
    k(f"s_lshr_b32 s{T0}, s{S_TAG}, 15")
    k(f"s_xor_b32 s{S_TAG}, s{S_TAG}, s{T0}")
    k(f"s_mul_i32 s{S_TAG}, s{S_TAG}, 0x85ebca6b")

def red_addrs(k, add):
    k(f"s_add_u32 s{T0}, s{S_AREA}, {add}")
    k(f"v_add_u32 v{V_RW}, s{T0}, v{V_L16}")
    for p in range(3):
        k(f"s_sub_u32 s{T1}, s{S_WAVE}, {p+1}")
        k(f"s_and_b32 s{T1}, s{T1}, 3")
        k(f"s_mul_i32 s{T1}, s{T1}, {AREA_SZ}")
        k(f"s_add_u32 s{T1}, s{T1}, {add+p*4096}")
        k(f"v_add_u32 v{V_RR+p}, s{T1}, v{V_L16}")

def v_setup(k):
    k(f"s_and_b32 s{S_KS}, s{S_XCD}, 1")
    k(f"s_lshr_b32 s{T0}, s{S_XCD}, 1")
    k(f"s_mul_i32 s{S_T}, s{T0}, 14")
    k(f"s_xor_b32 s{T0}, s{S_I2}, s{S_KS}")
    k(f"s_add_u32 s{S_T}, s{S_T}, s{T0}")
    k(f"s_lshl_b32 s{T0}, s{S_T}, 7")
    dma_voff(k, V_VD0, V_VD1, 7168, T0)
    step_base(k, T0, k.NS)
    k(f"s_mul_i32 s{VB}, s{T0}, {32*7168}")
    k(f"v_min_u32 v{V_P2}, {k.NS//2-1}, v1")
    k(f"v_lshlrev_b32 v{V_P2}, 7, v{V_P2}")
    k(f"s_lshr_b32 s{T0}, s{T0}, 1")
    k(f"s_mul_i32 s{T1}, s{S_HALF}, 56")
    k(f"s_add_u32 s{T1}, s{T0}, s{T1}")
    k(f"s_lshl_b32 s{T1}, s{T1}, 7")
    k(f"s_add_u32 s{PF2}, s{T1}, {hex(F2_OFF)}")
    if k.role == "A":
        k(f"s_add_u32 s{PF1}, s{PF2}, {F2A_D}")
        step_base(k, T0, 28-k.NS)
        k(f"s_mul_i32 s{PFB}, s{T0}, {32*7168}")
        k(f"s_lshl_b32 s{T0}, s{S_KS}, 8")
        k(f"s_add_u32 s{PFB}, s{PFB}, 128")
        k(f"s_sub_u32 s{PFB}, s{PFB}, s{T0}")
        k(f"s_and_b32 s{T0}, s{S_T}, 7")
        k(f"s_cmp_eq_u32 s{T0}, {3 if k.o.get('deleg', 1) else 9}")
        k(f"s_cselect_b32 s{T0}, {hex(OOB)}, 0")
        k(f"v_add_u32 v{V_P1}, s{T0}, v{V_VD0}")

def poll1_setup(k):
    k(f"v_min_u32 v{V_P1}, 15, v1")
    k(f"v_lshlrev_b32 v{V_P1}, 7, v{V_P1}")
    k(f"s_lshl_b32 s{T0}, s{S_HALF}, 13")
    k(f"s_lshl_b32 s{T1}, s{S_WAVE}, 11")
    k(f"s_add_u32 s{T0}, s{T0}, s{T1}")
    k(f"s_add_u32 s{PF1}, s{T0}, {hex(F1_OFF)}")

def xpf_item(k, i):
    def f(tag):
        if i == 0:
            k(f"s_lshr_b32 s{L1}, s{S_I2}, 1")
            k(f"s_lshl_b32 s{L0}, s{S_HALF}, 3")
            k(f"s_add_u32 s{L0}, s{L0}, s{L1}")
            k(f"s_lshl_b32 s{L0}, s{L0}, 2")
            k(f"s_add_u32 s{L0}, s{L0}, s{S_WAVE}")
            k(f"s_lshl_b32 s{L0}, s{L0}, 13")
        if i == 4: k(f"s_add_u32 s{L0}, s{L0}, 4096")
        if i == 8:
            k(f"s_lshl_b32 s{L0}, s{S_HALF}, 5")
            k(f"s_add_u32 s{L0}, s{L0}, s{S_WAVE}")
            k(f"s_add_u32 s{L0}, s{L0}, 28")
            k(f"s_lshl_b32 s{L0}, s{L0}, 3")
            k(f"s_add_u32 s{L0}, s{L0}, s{L1}")
            k(f"s_lshl_b32 s{L0}, s{L0}, 10")
        k.vmem(f"buffer_load_dwordx4 {vr(STG+4*(i % 4),4)}, v{V_L16}, {srdr(SRD_WS)}, s{L0} offen offset:{(i % 4)*1024} sc1", tag)
    k.add("xpf", f, "h1")

def p2_setup(k):
    k(f"s_add_u32 s{XRB}, s{S_WAVE}, s{S_T2}")
    k(f"s_lshl_b32 s{T0}, s{S_M64}, 4")
    k(f"s_add_u32 s{T0}, s{T0}, s{S_WAVE}")
    k(f"s_lshl_b32 s{T0}, s{T0}, 13")
    for j in range(4):
        k(f"s_lshl_b32 s{T1}, s{GI+j}, 11")
        k(f"s_add_u32 s{XO+j}, s{T0}, s{T1}")
    poll1_setup(k)
    k(f"s_and_b32 s{T1}, s{XRB}, 3")
    k(f"s_lshl_b32 s{T2}, s{S_M64}, 2")
    k(f"s_add_u32 s{T2}, s{T2}, s{T1}")
    k(f"s_mul_i32 s{T2}, s{T2}, 112")
    k(f"s_lshl_b32 s{T3}, s{S_T2}, 1")
    k(f"s_add_u32 s{T2}, s{T2}, s{T3}")
    k(f"s_lshl_b32 s{T2}, s{T2}, 10")
    k(f"s_add_u32 s{HST}, s{T2}, {hex(H_OFF)}")
    k(f"s_mul_i32 s{T0}, s{S_HALF}, 56")
    k(f"s_add_u32 s{FL2}, s{T0}, s{S_T2}")
    k(f"s_lshl_b32 s{FL2}, s{FL2}, 7")
    k(f"s_add_u32 s{FL2}, s{FL2}, {hex(F2_OFF)}")
    k(f"s_add_u32 s{FL1}, s{FL2}, {F2A_D}")

def p3_setup(k):
    step_base(k, T0, k.NS)
    k(f"s_lshl_b32 s{T0}, s{T0}, 10")
    k(f"s_add_u32 s{T0}, s{T0}, {hex(H_OFF)}")
    for r, (lo, hi, d) in enumerate(vruns(k)):
        k(f"s_mul_i32 s{T1}, s{S_HALF}, {d*1024}")
        k(f"s_add_u32 s{T1}, s{T1}, {lo*1024}")
        k(f"s_add_u32 s{HB+r}, s{T0}, s{T1}")
    k(f"s_lshl_b32 s{T0}, s{S_HALF}, 1")
    k(f"s_add_u32 s{MOWN}, s{T0}, {1 if k.role == 'A' else 0}")
    k(f"s_xor_b32 s{MOTH}, s{MOWN}, 1")
    k(f"s_lshl_b32 s{MOWN}, s{MOWN}, 2")
    k(f"s_lshl_b32 s{MOTH}, s{MOTH}, 2")
    k(f"s_add_u32 s{WT}, s{S_WAVE}, s{S_T}")
    k(f"s_mul_i32 s{T0}, s{S_HALF}, 56")
    k(f"s_add_u32 s{T0}, s{T0}, s{S_T}")
    k(f"s_lshl_b32 s{T0}, s{T0}, 1")
    k(f"s_add_u32 s{T0}, s{T0}, s{S_KS}")
    k(f"s_lshl_b32 s{T0}, s{T0}, 2")
    k(f"s_add_u32 s{T0}, s{T0}, s{S_WAVE}")
    k(f"s_xor_b32 s{T1}, s{T0}, 4")
    k(f"s_lshl_b32 s{PA}, s{T0}, 12")
    k(f"s_add_u32 s{PA}, s{PA}, {hex(PART_OFF)}")
    k(f"s_lshl_b32 s{PB}, s{T1}, 12")
    k(f"s_add_u32 s{PB}, s{PB}, {hex(PART_OFF)}")
    k(f"s_mul_i32 s{T0}, s{S_EP}, 37")
    k(f"s_add_u32 s{T0}, s{T0}, 11")
    for i in range(4):
        k(f"s_add_u32 s{T1}, s{T0}, {64*i}")
        k(f"s_and_b32 s{T1}, s{T1}, 0xff")
        k(f"v_mov_b32 v{TGV+i}, s{T1}")
        if i == 0: k(f"s_mov_b32 s{TAGB}, s{T1}")
        else:
            k(f"s_lshl_b32 s{T1}, s{T1}, {8*i}")
            k(f"s_or_b32 s{TAGB}, s{TAGB}, s{T1}")
    k(f"v_mov_b32 v{TGV+4}, 0xff")
    k(f"v_mov_b32 v{TGV+5}, 0x0c0c0400")
    k(f"v_mov_b32 v{TGV+6}, 0x04000c0c")
    k(f"s_and_b32 s{T1}, s{WT}, 3")
    k(f"s_add_u32 s{T1}, s{T1}, s{MOWN}")
    k(f"s_mul_i32 s{T1}, s{T1}, {16*7168}")
    k(f"s_lshl_b32 s{T0}, s{S_T}, 7")
    k(f"s_add_u32 s{YB}, s{T1}, s{T0}")
    k("v_mul_u32_u24 v5, 7168, v3")
    k("v_and_b32 v6, 1, v2")
    k("v_lshl_add_u32 v5, v6, 5, v5")
    k("v_lshrrev_b32 v6, 1, v2")
    k("v_lshl_add_u32 v5, v6, 4, v5")

def pkadd(k, d, s, n=8):
    for q in range(n):
        k(f"v_pk_add_f32 v[{d+2*q}:{d+2*q+1}], v[{d+2*q}:{d+2*q+1}], v[{s+2*q}:{s+2*q+1}]")

def sz_items(k, *g):
    k.add("sz", lambda t: k.vmem(f"buffer_load_dwordx2 v[{RAW}:{RAW+1}], v{V_T}, {srdr(SRD_SC)}, 0 offen", t), *g)
    k.add("sz", lambda t: k.vmem(f"buffer_load_dwordx2 v[{RAW+2}:{RAW+3}], v{V_T}, {srdr(SRD_Z)}, 0 offen", t))
def qreg(n): return 80 + 4*n if n < 16 else STG + 4*((n-16) % QR)
def q_item(k, n, fl, *g):
    st, i = n//8, n % 8
    j, u = st//2, st % 2
    ro = 32*u + (i if i < 4 else 12+i)
    def f(tag):
        so = f"s{QB+j}"
        if ro:
            k(f"s_add_u32 s{L0}, s{QB+j}, {hex(ro*14336)}")
            so = f"s{L0}"
        k.vmem(f"buffer_load_dwordx4 {vr(qreg(n),4)}, v{V_Q}, {srdr(SRD_QW)}, {so} offen {fl}", tag)
    k.add(f"q{n//2}", f, f"qfree{n-QR}" if n >= QR+16 else None, *g)
def xr_item(k, p, st):
    j, u = st//2, st % 2
    def f(tag):
        if st == 0:
            k(f"s_add_u32 s{L1}, s{XRB}, {(p % 4)+1}")
            k(f"s_and_b32 s{L1}, s{L1}, 3")
            if p >= 4: k(f"s_add_u32 s{L1}, s{L1}, 4")
            k(f"s_lshl_b32 s{L1}, s{L1}, 15")
        if u == 0:
            k(f"s_add_u32 s{L0}, s{XO+j}, s{L1}")
        k.vmem(f"buffer_load_dwordx4 {ar(((p*8+st) % XRN)*4,4)}, v{V_L16}, {srdr(SRD_WS)}, s{L0} offen offset:{u*1024} sc1", tag)
    k.add(f"x{p}_{st}", f, "h1", f"xfree{p*8+st-XRN}" if p*8+st >= XRN else None)
def vruns(k):
    out = []
    for lo, hi in ((0, k.nv1), (k.nv1, k.NS)):
        if hi == lo: continue
        assert (hi - lo) % 2 == 0
        m = (hi - lo)//2
        out += [(lo, lo+m, m), (lo+m, hi, -m)]
    return out
def rowoff(st): return 64*(st >> 1) + 8*(st & 1)
def v_item(k, n, q, *g):
    d = [d for lo, hi, d in vruns(k) if lo <= n < hi][0]
    def f(tag):
        if q == 0:
            k(f"s_mul_i32 s{VB+1}, s{S_HALF}, {(rowoff(n+d) - rowoff(n))*7168}")
            k(f"s_add_u32 s{VB+1}, s{VB+1}, s{VB}")
        k(f"s_add_u32 m0, s{S_AREA}, {(n % RING)*4096 + q*1024}")
        k(f"s_add_u32 s{L0}, s{VB+1}, {hex((rowoff(n) + 16*q)*7168)}")
        k.vmem(f"buffer_load_dwordx4 v{V_VD0+(q&1)}, {srdr(SRD_V)}, s{L0} offen {k.o.get('vfl'+k.role,'') if n >= k.NS//2 else ''} lds", tag)
    k.add(f"v{n}", f, f"vfree{n-RING}" if (n >= RING and q == 0) else None, *g)
def h_item(k, p, j):
    n = p*k.NS+j
    r, lo = [(r, lo) for r, (lo, hi, d) in enumerate(vruns(k)) if lo <= j < hi][0]
    def f(tag):
        if j == 0:
            k(f"s_add_u32 s{L2}, s{WT}, {(p % 4)+1}")
            k(f"s_and_b32 s{L2}, s{L2}, 3")
            k(f"s_add_u32 s{L2}, s{L2}, s{MOTH if p < 4 else MOWN}")
            k(f"s_mul_i32 s{L2}, s{L2}, {112*1024}")
        if j == lo: k(f"s_add_u32 s{L0}, s{L2}, s{HB+r}")
        elif (j - lo) % 4 == 0: k(f"s_add_u32 s{L0}, s{L0}, 4096")
        k.vmem(f"buffer_load_dwordx4 {vr(WQ+4*(n % k.HRN),4)}, v{V_L16}, {srdr(SRD_WS)}, s{L0} offen offset:{((j-lo) % 4)*1024} {k.o.get('hfl', 'sc1')}", tag)
    k.add(f"h{p}_{j}", f, "h2a" if (k.role == "A" and p < 4) else "h2")
def pld_ins(jj):
    return f"buffer_load_dwordx4 {vr(PLD+jj*4,4)}, v{V_L16}, {srdr(SRD_WS)}, s{PB} offen offset:{jj*1024} sc1"

def sz_prep(k, j):
    k(f"s_lshl_b32 s{T0}, s{GI+j}, 6")
    k(f"v_lshl_add_u32 v{V_PR+1}, v3, 2, s{T0}")
    for q in range(4):
        k(f"ds_bpermute_b32 v{248+q}, v{V_PR+1}, v{RAW+q}")
    k(f"s_mov_b32 s{T2}, 0x71800000")
    k(f"s_mov_b32 s{T3}, 0xa7000000")
    k("s_waitcnt lgkmcnt(0)")
    for jj in range(4):
        if jj % 2 == 0:
            k(f"v_lshlrev_b32 v{SZ+jj}, 16, v{248+jj//2}")
            k(f"v_lshlrev_b32 v{SZ+4+jj}, 16, v{250+jj//2}")
        else:
            k(f"v_and_b32 v{SZ+jj}, 0xffff0000, v{248+jj//2}")
            k(f"v_and_b32 v{SZ+4+jj}, 0xffff0000, v{250+jj//2}")
    for jj in range(4):
        k(f"v_mul_f32 v{SZ+4+jj}, v{SZ+4+jj}, v{SZ+jj}")
    for jj in range(4):
        k(f"v_mul_f32 v{SZ+jj}, s{T2}, v{SZ+jj}")
        k(f"v_mul_f32 v{SZ+4+jj}, s{T3}, v{SZ+4+jj}")

def events(k):
    if "xrst" in k.vm and "f1" not in k.gates and k.isdone("xrst"):
        k.flag(f"s{FL1}"); k.open("f1"); k.L = k.o.get("Lf1", 24)
    if "f1" in k.gates and "f1done" not in k.gates and k.isdone("flag"):
        k.open("f1done"); k.L = k.o.get("L", 12)
    if "hflag" in k.gates and "f2done" not in k.gates and k.isdone("flag"):
        k.open("f2done"); k.L = k.o.get("LV", 12)
    if "h1" not in k.gates and k.isdone("poll1"):
        k.poll_check("poll1", f"v{V_P1}", f"s{PF1}"); k.open("h1"); k.stamp("h1_seen")
    if "h2a" not in k.gates and k.isdone("poll2a"):
        k.poll_check("poll2a", f"v{V_P2}", f"s{PF1}"); k.open("h2a"); k.stamp("h2_seen")
    if "h2" not in k.gates and k.isdone("poll2"):
        k.poll_check("poll2", f"v{V_P2}", f"s{PF2}"); k.open("h2"); k.stamp("h2_seen" if k.role == "B" else "q_all")

def need(k, tag):
    while tag in [t for t, _, _ in k.stream[k.sp:]]:
        if k.issue_one(force=True): continue
        g = [g for g in k.stream[k.sp][2] if g not in k.gates][0]
        k.wait({"h1": "poll1", "h2": "poll2", "h2a": "poll2a"}[g])
        events(k)
        if k.o.get("gpump", 1): k.pump()
    k.wait(tag)
    events(k)

def dequant_pair(k, pr):
    st, p = pr//4, pr % 4
    if pr % 8 == 0 and f"sz{pr//8}" not in k.gates: sz_prep(k, pr//8)
    need(k, f"q{pr}")
    k.stamp(f"qp{pr}")
    k.pump()
    r0, r1 = qreg(2*pr), qreg(2*pr+1)
    for r in (r0, r1):
        for hh in range(2):
            q = r+2*hh
            k(f"v_pk_fma_f32 v[{q}:{q+1}], v[{q}:{q+1}], v[{SZ+2*hh}:{SZ+2*hh+1}], v[{SZ+4+2*hh}:{SZ+4+2*hh+1}]")
    for jj in range(4):
        k(f"v_cvt_pk_bf16_f32 v{WQ+(st*4+jj)*4+p}, v{r0+jj}, v{r1+jj}")
    k.open(f"qfree{2*pr}"); k.open(f"qfree{2*pr+1}")

def v_fetch(k, n):
    need(k, f"v{n}")
    k.stamp(f"vf{n}")
    if n >= 1 and f"vfree{n-1}" not in k.gates:
        k("s_waitcnt lgkmcnt(0)")
        k.open(f"vfree{n-1}")
    for jj in range(4):
        for h in range(2):
            k(f"ds_read_b64_tr_b16 {vreg(k, n, jj*4+2*h, 2)}, v{V_TR+jj} offset:{(n % RING)*4096 + h*512}")
    k.pump()

def accname(p, jj, own):
    return vr(OWN+jj*4, 4) if own else ar(224+(p % 2)*16+jj*4, 4)
def red_read(k, off):
    for p in range(3):
        for jj in range(4):
            k(f"ds_read_b128 {vr(RT+(p*4+jj)*4,4)}, v{V_RR+p} offset:{off+jj*1024}")

def vpf_item(k, st, q):
    def f(tag):
        if q == 0:
            k(f"s_mul_i32 s{VB+1}, s{S_HALF}, {(rowoff(st+14-k.NS//2) - rowoff(st))*7168}")
            k(f"s_add_u32 s{VB+1}, s{VB+1}, s{PFB}")
        k(f"s_add_u32 s{L0}, s{VB+1}, {hex((rowoff(st) + 16*q)*7168)}")
        k.vmem(f"buffer_load_dwordx4 {vr(STG+4*q,4)}, v{V_P1}, {srdr(SRD_V)}, s{L0} offen", tag)
    k.add(f"pf{st}", f)

def h_stream(k, o):
    for p in range(8):
        for j in range(k.NS):
            if k.role == "A" and p == 3 and j == o.get("p2atA", 1):
                k.add("poll2", k.poll_item(f"v{V_P2}", f"s{PF2}"))
            if p == 7 and j == o.get("tcat", 4):
                for jj in range(4):
                    k.add("pld", (lambda jj: lambda t: k.vmem(pld_ins(jj), t))(jj))
            h_item(k, p, j)

def tail_stream(k, nv1, o, role):
    for p in range(8):
        for st in range(8): xr_item(k, p, st)
    vpre, vmid = o.get("vpre"+role, 4), o.get("vmid"+role, 10)
    p2back = o.get("p2back"+role, 8)
    rest = [(n, q) for n in range(nv1, k.NS) for q in range(4)]
    for i, (n, q) in enumerate(rest):
        if i == len(rest) - p2back:
            k.add("poll2", k.poll_item(f"v{V_P2}", f"s{PF2}"), "hflag")
        v_item(k, n, q, "f2bar" if (i == 0 and o.get("nb", 1)) else None, "hstored" if i == vpre else None, "hflag" if i == vmid else None)
    if p2back == 0: k.add("poll2", k.poll_item(f"v{V_P2}", f"s{PF2}"), "hflag")
    h_stream(k, o)

def q_stream(k, lo, hi, o, role):
    p1pos = o.get("p1pos"+role, 63)
    for n in range(lo, hi):
        if n == p1pos: k.add("poll1", k.poll_item(f"v{V_P1}", f"s{PF1}"), "setup")
        fl = o.get("qfl", "") if (role == "A" or n >= 32) else ""
        q_item(k, n, fl, "xstored" if (role == "A" and n == o.get("qpreA", 99)) else None)

PKA = 0
def adds(d, s_, n=16):
    if PKA: return [f"v_pk_add_f32 v[{d+q}:{d+q+1}], v[{d+q}:{d+q+1}], v[{s_+q}:{s_+q+1}]" for q in range(0, n, 2)]
    return [f"v_add_f32 v{d+q}, v{d+q}, v{s_+q}" for q in range(n)]
def rreads(off): return [f"ds_read_b128 {vr(RT+(p*4+jj)*4,4)}, v{V_RR+p} offset:{off+jj*1024}" for p in range(3) for jj in range(4)]
def hpack(dst, src):
    return [f"v_cvt_pk_bf16_f32 v{dst+f*4+rr*2+hh}, v{src+(2*hh)*4+2*f+rr}, v{src+(2*hh+1)*4+2*f+rr}" for f in range(2) for rr in range(2) for hh in range(2)]

def p2_main(k, nv1, o):
    k.stamp("q_all")
    nb = o.get("nb", 1)
    assert nv1 == 0
    for p in range(8):
        own = (p % 4 == 3)
        for st in range(8):
            need(k, f"x{p}_{st|1 if o.get('w2x', 0) else st}")
            if st == 0: k.stamp(f"p2_{p//2}{'ab'[p % 2]}")
            if p % 4 != 0 and st == 2:
                k.fill(f"ds_write_b128 v{V_RW}, {accname(p-1, jj, False)} offset:{(0 if (nb and p < 4) else P2R)+((p-1) % 4)*4096+jj*1024}" for jj in range(4))
            if p == 7 and st == 3:
                k.fill(["s_waitcnt lgkmcnt(0)", "s_barrier"] + rreads(P2R) + ["s_waitcnt lgkmcnt(4)"] + adds(RT, RT+16) + ["s_waitcnt lgkmcnt(0)"] + adds(RT, RT+32))
            if (p, st) == tuple(o.get("r0at", (3, 6))):
                k.fill(["s_waitcnt lgkmcnt(0)", "s_barrier"] + rreads(0 if nb else P2R) + ["s_waitcnt lgkmcnt(4)"] + adds(RT, RT+16) + ["s_waitcnt lgkmcnt(0)"] + ([] if nb else ["s_barrier"]) + adds(RT, RT+32))
            if (p, st) == tuple(o.get("hpat", (4, 2))):
                k.fill(adds(RT, OWN) + hpack(PK+8, RT))
            if p == 5 and st == 1 and not nb: k.drain()
            if (p, st) == tuple(o.get("hs0at", (5, 1))):
                k.drain()
                k.vmem(f"buffer_store_dwordx4 v[{PK+8}:{PK+11}], v{V_L16}, {srdr(SRD_WS)}, s{HST} offen sc1", "hst0")
                k.vmem(f"buffer_store_dwordx4 v[{PK+12}:{PK+15}], v{V_L16}, {srdr(SRD_WS)}, s{HST} offen offset:1024 sc1", "hst0")
                k(f"s_add_u32 s{HST}, s{HST}, {4*112*1024}")
                k.L += 2
            if (p, st) == tuple(o.get("f2at", (6, 6))):
                k.wait("hst0")
                k.flag(f"s{FL1}")
                k.open("f2bar")
                k.stamp("v1_done")
                k.L -= 1
            for jj in range(4):
                acc = accname(p, jj, own)
                k(f"v_mfma_f32_16x16x32_bf16 {acc}, {vr(WQ+(st*4+jj)*4,4)}, {ar(((p*8+st) % XRN)*4,4)}, {'0' if st == 0 else acc}")
                if jj == 0: k.pump()
                if p == 7: k.drain(1 if st == 2 else 3)
                elif jj: k.drain(o.get('fn2', 3) if p in (3, 4) else 2)
            k.open(f"xfree{p*8+st}")
        if p == 6: k.drain()
    k.drain()
    k.stamp("p2_mfma")
    k("s_nop 4")
    pkadd(k, OWN, RT)
    for x in hpack(PK, OWN): k(x)
    k.vmem(f"buffer_store_dwordx4 v[{PK}:{PK+3}], v{V_L16}, {srdr(SRD_WS)}, s{HST} offen sc1", "hst")
    k.vmem(f"buffer_store_dwordx4 v[{PK+4}:{PK+7}], v{V_L16}, {srdr(SRD_WS)}, s{HST} offen offset:1024 sc1", "hst")
    k.open("hstored")
    k.L = o.get("L", 12) + 4
    k.pump()
    p3_setup(k)
    k.wait("hst")
    k.flag(f"s{FL2}")
    k.stamp("h_flag")
    k.open("hflag")
    k.L = o.get("Lf2", 20)
    k.pump()
    for n in range(nv1, k.NS): v_fetch(k, n)

def p3_main(k, o):
    FN = o.get("fn", 2)
    L3, LH = o.get("L3", 12), min(o.get("L3hi"+k.role, 12), k.HRN-5)
    hiat = o.get("hiat", 2)
    def tagcheck():
        out = []
        for jj in range(4):
            r = PLD+jj*4
            out += [f"v_perm_b32 v{PK}, v{r+1}, v{r}, v{TGV+5}", f"v_perm_b32 v{PK+1}, v{r+3}, v{r+2}, v{TGV+6}",
                    f"v_or_b32 v{PK}, v{PK}, v{PK+1}", f"v_xor_b32 v{PK+2+jj}, s{TAGB}, v{PK}"]
        return out + [f"v_or3_b32 v{PK}, v{PK+2}, v{PK+3}, v{PK+4}", f"v_or_b32 v{PK}, v{PK}, v{PK+5}", f"v_cmp_ne_u32 vcc, 0, v{PK}"]
    k.L = o.get("L3", 12)
    k("s_waitcnt lgkmcnt(0)")
    k.stamp("v_done")
    for p in range(8):
        own = (p % 4 == 3)
        off = 0 if p < 4 else P2R
        for j in range(k.NS):
            n = p*k.NS+j
            need(k, f"h{p}_{j|1 if o.get('w2', 0) else j}")
            if j == 2 and p % 4 != 0:
                for jj in range(4):
                    k.fill([f"ds_write_b128 v{V_RW}, {accname(p-1, jj, False)} offset:{off+((p-1) % 4)*4096+jj*1024}"] + [""]*(FN-1))
            if own and j == o.get('barat'+k.role, 4 if k.NS >= 14 else 3):
                k.fill(["s_waitcnt lgkmcnt(0)", "s_barrier"] + rreads(off) + ["s_waitcnt lgkmcnt(4)"] + adds(RT, RT+16) + ["s_waitcnt lgkmcnt(0)"] + adds(RT, RT+32))
            if p == 7 and j == o.get("tcat", 4):
                assert k.isdone("pld")
                k.fill(tagcheck())
            if p == 7 and j == max(o.get("tcat", 4), o.get('barat'+k.role, 4 if k.NS >= 14 else 3)): k.fill(adds(PLD, RT))
            if p == hiat and j == 0: k.L = LH
            if p == 4 and j == 2:
                k.drain()
                k.fill(adds(RT, OWN) + [f"v_bfi_b32 v{RT+r}, v{TGV+4}, v{TGV+(r % 4)}, v{RT+r}" for r in range(16)])
            for jj in range(4):
                acc = accname(p, jj, own)
                k(f"v_mfma_f32_16x16x32_bf16 {acc}, {vreg(k, j, jj*4, 4)}, {vr(WQ+4*(n % k.HRN),4)}, {'0' if j == 0 else acc}")
                for _ in range(o.get("pad", 0)): k(f"s_mov_b32 s{T2}, 0x12345678")
                if jj == 0: k.pump(o.get("pumpn", 2) if k.L > L3 else 99)
                else: k.drain(o.get("fn7", 3) if p == 7 else FN)
            if p == 4 and j == 7:
                k.drain()
                for jj in range(4):
                    k.vmem(f"buffer_store_dwordx4 {vr(RT+jj*4,4)}, v{V_L16}, {srdr(SRD_WS)}, s{PA} offen offset:{jj*1024} sc1", "pst")
                k.L = LH + 4
                k.stamp("part_st")
            if "pst" in k.vm and k.isdone("pst"): k.L = o.get("L3", 12)
            if j == 0: k.stamp(f"pos{p}")
    k.drain()
    L = k.lab("RETRY"); E = k.lab("RETRYX")
    k(f"s_mov_b32 s{S_CNT}, 0")
    k("s_nop 2")
    k(f"s_cbranch_vccz {E}")
    k.a.label(L)
    for jj in range(4): k(pld_ins(jj))
    k(f"s_add_u32 s{S_CNT}, s{S_CNT}, 1")
    k("s_waitcnt vmcnt(0)")
    for x in tagcheck(): k(x)
    pkadd(k, PLD, RT)
    k(f"s_cmp_gt_u32 s{S_CNT}, 0x40000")
    k(f"s_cbranch_scc1 {E}")
    k(f"s_cbranch_vccnz {L}")
    k.a.label(E)
    k.stamp("p3_mfma")
    k("s_nop 1")
    pkadd(k, OWN, PLD)
    for q in range(8):
        k(f"v_cvt_pk_bf16_f32 v{PK+q}, v{OWN+2*q}, v{OWN+2*q+1}")
    k("s_nop 1")
    for pr in range(2):
        k(f"v_permlane16_swap_b32 v{PK+4*pr}, v{PK+4*pr+2}")
        k(f"v_permlane16_swap_b32 v{PK+4*pr+1}, v{PK+4*pr+3}")
    yfl = o.get("yfl", "")
    for pr in range(2):
        k(f"buffer_store_dwordx4 v[{PK+4*pr}:{PK+4*pr+3}], v5, {srdr(SRD_OUT)}, s{YB} offen offset:{64*pr} {yfl}")
    assert k.sp == len(k.stream)

def cw_setup(a):
    a("s_getpc_b64 s[72:73]")
    a.label("PCREF")
    a(f"s_sub_u32 s72, s72, PCREF-{KNAME}")
    a("s_subb_u32 s73, s73, 0")
    a("v_lshlrev_b32 v240, 7, v0")
    a("v_add_u32 v242, 0x8000, v240")
    a(f"v_min_u32 v242, DONE-{KNAME}, v242")
    a(f"v_min_u32 v240, DONE-{KNAME}, v240")
    a("v_mov_b32 v241, s73")
    a("v_mov_b32 v243, s73")
    a("v_add_co_u32 v240, vcc, s72, v240")
    a("v_addc_co_u32 v241, vcc, 0, v241, vcc")
    a("v_add_co_u32 v242, vcc, s72, v242")
    a("v_addc_co_u32 v243, vcc, 0, v243, vcc")
def cw_go(a):
    a("global_load_dword v244, v[240:241], off")
    a("global_load_dword v245, v[242:243], off")

def line_loop(k, srd_, rowbytes, s_off, count, label, lpr=8, n=8):
    sh = {8: 3, 16: 4}[lpr]
    k(f"v_lshrrev_b32 v5, {sh}, v1")
    k(f"v_mul_u32_u24 v5, {rowbytes}, v5")
    k(f"v_and_b32 v6, {lpr-1}, v1")
    k("v_lshl_add_u32 v5, v6, 4, v5")
    k(f"s_mov_b32 s{S_CNT}, {count}")
    k.a.label(label)
    for t in range(n):
        k(f"buffer_load_dwordx4 {vr(16+t*4,4)}, v5, {srdr(srd_)}, s{s_off} offen")
        k(f"s_add_u32 s{s_off}, s{s_off}, {(64//lpr)*rowbytes}")
    k(f"s_add_u32 s{s_off}, s{s_off}, s{T3}")
    k(f"s_sub_u32 s{S_CNT}, s{S_CNT}, 1")
    k(f"s_cmp_lg_u32 s{S_CNT}, 0")
    k(f"s_cbranch_scc1 {label}")

def help_q(k, rows):
    k(f"s_mul_i32 s{T0}, s{S_XCD}, 7")
    k(f"s_sub_u32 s{T1}, 1, s{T0}")
    k(f"s_and_b32 s{T1}, s{T1}, 3")
    k(f"s_lshl_b32 s{T2}, s{S_HALF}, 2")
    k(f"s_add_u32 s{T2}, s{T2}, s{T1}")
    k(f"s_cmp_lt_u32 s{T2}, 7")
    k(f"s_cselect_b32 s{T1}, s{T2}, s{T1}")
    k(f"s_add_u32 s{T0}, s{T0}, s{T1}")
    k(f"s_lshl_b32 s{T0}, s{T0}, 8")
    k(f"s_add_u32 s{T0}, s{T0}, {(128-rows)*14336}")
    k(f"s_mul_i32 s{T1}, s{S_WAVE}, {256*14336}")
    k(f"s_add_u32 s{T0}, s{T0}, s{T1}")
    k(f"s_mov_b32 s{T3}, {(128-rows)*14336}")
    m = k.o.get("hqm", 0)
    if m == 0:
        line_loop(k, SRD_QW, 14336, T0, 2, "HQ", 16, rows//4)
        return
    k("v_lshrrev_b32 v5, 4, v1")
    k("v_mul_u32_u24 v5, 14336, v5")
    k("v_lshl_add_u32 v5, v3, 4, v5")
    for t in range(rows//4):
        for g in range(2):
            ch = t if m == 1 else rows//4-1-t
            k(f"s_add_u32 s{T1}, s{T0}, {(128*g + 4*ch)*14336}")
            k(f"buffer_load_dwordx4 {vr(16+(2*t+g)*4,4)}, v5, {srdr(SRD_QW)}, s{T1} offen")

def help_v(k, blk0, nblk, label, blk0o, nblko, blk2, nblk2):
    k(f"s_lshr_b32 s{T0}, s{S_XCD}, 1")
    k(f"s_mul_i32 s{T0}, s{T0}, 14")
    k(f"s_sub_u32 s{T1}, 3, s{T0}")
    k(f"s_and_b32 s{T1}, s{T1}, 7")
    k(f"s_lshl_b32 s{T2}, s{S_HALF}, 3")
    k(f"s_add_u32 s{T2}, s{T2}, s{T1}")
    k(f"s_cmp_lt_u32 s{T2}, 14")
    k(f"s_cselect_b32 s{T1}, s{T2}, s{T1}")
    k(f"s_add_u32 s{T0}, s{T0}, s{T1}")
    k(f"s_lshl_b32 s{T0}, s{T0}, 7")
    NA = k.o.get("NA", 16)
    k(f"s_xor_b32 s{L0}, s{T0}, 128")
    k(f"s_mul_i32 s{T1}, s{S_WAVE}, {28-NA}")
    k(f"s_mul_i32 s{T2}, s{S_WAVE}, {NA}")
    k(f"s_add_u32 s{T2}, s{T2}, {112-4*NA}")
    k(f"s_bitcmp1_b32 s{S_XCD}, 0")
    k(f"s_cselect_b32 s{T1}, s{T2}, s{T1}")
    k(f"s_mul_i32 s{T1}, s{T1}, {32*7168}")
    k(f"s_add_u32 s{T0}, s{T0}, s{T1}")
    k(f"s_bitcmp1_b32 s{S_XCD}, 0")
    k(f"s_cselect_b32 s{T1}, {blk0o}, {blk0}")
    k(f"s_cselect_b32 s{T2}, {nblko}, {nblk}")
    k(f"s_cselect_b32 s{T3}, {hex((-2*64*7168 if k.o.get('hback', 1) else 0) & 0xffffffff)}, 0")
    k(f"s_mul_i32 s{T1}, s{T1}, {64*7168}")
    k(f"s_add_u32 s{T0}, s{T0}, s{T1}")
    line_loop(k, SRD_V, 7168, T0, f"s{T2}", label)
    if k.o.get("cw", 0) & 4 and label == "HV15": cw_go(k)
    if k.o.get('deleg', 1) and nblk2:
        k(f"s_bitcmp1_b32 s{S_XCD}, 0")
        k(f"s_cbranch_scc0 {label}X")
        k(f"s_mul_i32 s{T1}, s{S_WAVE}, {(28-NA)*32*7168}")
        k(f"s_add_u32 s{L0}, s{L0}, s{T1}")
        k(f"s_add_u32 s{L0}, s{L0}, {(4*NA*32 + blk2*64)*7168}")
        k(f"s_mov_b32 s{T3}, 0")
        line_loop(k, SRD_V, 7168, L0, nblk2, label+"B")
        k.a.label(label+"X")

def mid_main(k, nv1, vat):
    def vpart():
        for n in range(nv1):
            if n == nv1//2: k.L = k.o.get("L", 12)
            v_fetch(k, n)
        if nv1:
            k("s_waitcnt lgkmcnt(0)")
            k.open(f"vfree{nv1-1}")
    for pr in range(32):
        if pr == vat//2: vpart()
        if pr == 16 and k.role == "B": k.L = k.o.get("L", 12)
        dequant_pair(k, pr)
        if pr == 15: k.stamp("q_half")
    if vat == 64: vpart()

def role_a(a, o):
    k = K(a, o); k.role = "A"; k.NS = o.get("NA", 16); k.HRN = 32 - 4*max(0, k.NS-14); NS = k.NS
    a.label("ROLE_A")
    k(f"s_lshr_b32 s{T0}, s{S_I2}, 1")
    k(f"s_and_b32 s{T1}, s{T0}, 1")
    k(f"s_lshl_b32 s{S_N64}, s{S_XCD}, 1")
    k(f"s_add_u32 s{S_N64}, s{S_N64}, s{T1}")
    k(f"s_lshr_b32 s{T0}, s{T0}, 1")
    k(f"s_lshl_b32 s{S_M32}, s{S_HALF}, 2")
    k(f"s_add_u32 s{S_M32}, s{S_M32}, s{T0}")
    k(f"s_lshl_b32 s{T1}, s{T1}, 1")
    k(f"s_add_u32 s{RHO}, s{S_M32}, s{T1}")
    k(f"s_lshl_b32 s{T0}, s{S_N64}, 7")
    k(f"s_lshl_b32 s{T1}, s{S_WAVE}, 19")
    k(f"s_add_u32 s{T0}, s{T0}, s{T1}")
    dma_voff(k, V_U0, V_U1, 2048, T0)
    k(f"v_lshrrev_b32 v{V_X0}, 3, v1")
    k(f"v_lshlrev_b32 v{V_X0}, 11, v{V_X0}")
    k(f"v_xor_b32 v{V_T2}, v{V_T2}, v2")
    k(f"v_lshl_add_u32 v{V_X0}, v{V_T2}, 4, v{V_X0}")
    k(f"s_lshl_b32 s{T0}, s{S_M32}, 16")
    k(f"s_lshl_b32 s{T1}, s{S_WAVE}, 9")
    k(f"s_add_u32 s{T0}, s{T0}, s{T1}")
    k(f"v_add_u32 v{V_X0}, s{T0}, v{V_X0}")
    k(f"v_xor_b32 v{V_X1}, 64, v{V_X0}")
    k("s_waitcnt lgkmcnt(0)")
    srd(a, SRD_U, 16, U_BYTES)
    srd(a, SRD_X, 8, X_BYTES)
    k(f"s_lshl_b32 s{XST_}, s{S_HALF}, 16")
    def p1_item(jp, i):
        def f(tag):
            if i in (0, 4, 8):
                k(f"s_add_u32 s{L1}, s{RHO}, {jp}")
                k(f"s_and_b32 s{L1}, s{L1}, 3")
            if i == 0: k(f"s_lshl_b32 s{L0}, s{L1}, 7")
            if i in (4, 8):
                k(f"s_lshl_b32 s{L0}, s{L1}, 17")
                if i == 8: k(f"s_add_u32 s{L0}, s{L0}, 0x10000")
                k(f"s_xor_b32 s{L0}, s{L0}, s{XST_}")
            k(f"s_add_u32 m0, s{S_AREA}, {P1R + (jp % 2)*4096 + i*1024 if i < 4 else jp*8192 + (i-4)*1024}")
            if i not in (0, 4, 8): k(f"s_add_u32 s{L0}, s{L0}, 0x4000")
            else: k("s_nop 0")
            if i < 4: k.vmem(f"buffer_load_dwordx4 v{V_X0+(i&1)}, {srdr(SRD_X)}, s{L0} offen lds", tag)
            else: k.vmem(f"buffer_load_dwordx4 v{V_U0+(i&1)}, {srdr(SRD_U)}, s{L0} offen lds", tag)
        k.add(f"p1x{jp//2}" if i < 4 else f"p1u{jp}_{0 if i < 8 else 1}", f, "p1free" if (jp == 2 and i == 0) else None)
    X = lambda jp: [(jp, i) for i in range(4)]
    U = lambda jp, u: [(jp, i) for i in range(4+4*u, 8+4*u)]
    for jp, i in X(0) + X(1) + U(0, 0): p1_item(jp, i)
    for jp, i in U(0, 1) + X(2) + X(3) + U(1, 0) + U(1, 1) + U(2, 0) + U(2, 1) + U(3, 0) + U(3, 1): p1_item(jp, i)
    k.nv1 = 0
    npf = o.get("npfA", 14-NS//2)
    pfat = NS - o.get("pfbackA", 0)
    pford = list(range(npf)) if o.get("pffwd", 0) else list(range(13-NS//2, 13-NS//2-npf, -1))
    def pfs():
        for st in pford:
            for q in range(4): vpf_item(k, st, q)
    for n in range(NS):
        if n == pfat: pfs()
        for q in range(4): v_item(k, n, q, "setup")
    if pfat == NS: pfs()
    k.add("poll2a", k.poll_item(f"v{V_P2}", f"s{PF1}"))
    h_stream(k, o)
    k.pump()
    epoch_load(k)
    srd(a, SRD_V, 18, V_BYTES); srd(a, SRD_OUT, 20, OUT_BYTES); srd(a, SRD_WS, 24, WS_BYTES)
    tr_addrs(k)
    k(f"v_lshrrev_b32 v{V_XR0}, 1, v3")
    k(f"v_xor_b32 v{V_XR0}, v{V_XR0}, v2")
    k(f"v_lshlrev_b32 v{V_XR0}, 4, v{V_XR0}")
    k(f"v_lshl_add_u32 v{V_XR0}, v3, 7, v{V_XR0}")
    k(f"v_add_u32 v{V_XR0}, s{S_AREA}, v{V_XR0}")
    k(f"s_lshl_b32 s{T0}, s{S_HALF}, 6")
    k(f"v_xor_b32 v{V_XR0}, s{T0}, v{V_XR0}")
    k(f"v_xor_b32 v{V_XR1}, 64, v{V_XR0}")
    k(f"v_add_u32 v{V_RW}, s{S_AREA}, v{V_L16}")
    k(f"s_lshl_b32 s{T0}, s{S_WAVE}, 11")
    k(f"s_add_u32 s{T0}, s{T0}, {P1R}")
    k(f"v_add_u32 v{V_RR}, s{T0}, v{V_L16}")
    k(f"v_add_u32 v{V_RR+1}, {hex(2*AREA_SZ)}, v{V_RR}")
    k(f"s_and_b32 s{T1}, s{S_WAVE}, 1")
    k(f"s_lshl_b32 s{T0}, s{S_M32}, 1")
    k(f"s_add_u32 s{T0}, s{T0}, s{T1}")
    k(f"s_lshr_b32 s{T1}, s{S_WAVE}, 1")
    k(f"s_lshl_b32 s{T2}, s{S_N64}, 1")
    k(f"s_add_u32 s{T2}, s{T2}, s{T1}")
    k(f"s_lshl_b32 s{XSO}, s{T0}, 5")
    k(f"s_add_u32 s{XSO}, s{XSO}, s{T2}")
    k(f"s_lshl_b32 s{XSO}, s{XSO}, 10")
    k(f"s_lshl_b32 s{T1}, s{S_HALF}, 4")
    k(f"s_add_u32 s{T1}, s{T1}, s{S_N64}")
    k(f"s_lshl_b32 s{T1}, s{T1}, 2")
    k(f"s_and_b32 s{T0}, s{S_M32}, 3")
    k(f"s_add_u32 s{T1}, s{T1}, s{T0}")
    k(f"s_lshl_b32 s{T1}, s{T1}, 7")
    k(f"s_add_u32 s{FL1}, s{T1}, {hex(F1_OFF)}")
    v_setup(k)
    k.stamp("issue0")
    k.L = o.get("Lp1", 18)
    k.pump()
    A1 = 224
    def acc1(jj, mi): return ar(A1 + (((jj >> 1)*2 + mi)*2 + (jj & 1))*4, 4)
    def xreads(jp0):
        for jp in (jp0, jp0+1):
            for u in range(2):
                for mi in range(2):
                    k(f"ds_read_b128 {ar(((2*jp+u)*2+mi)*4,4)}, v{V_XR0+u} offset:{P1R+(jp % 2)*4096+mi*2048}")
    def ureads(j):
        for jj in range(4):
            for h in range(2):
                k(f"ds_read_b64_tr_b16 {ar(64+(j % 2)*16+jj*4+2*h,2)}, v{V_TR+jj} offset:{j*4096+h*512}")
    k.wait("p1x0")
    xreads(0)
    tag_calc(k)
    k.open("p1free")
    k.pump()
    k.wait("p1u0_0")
    k.stamp("p1s0")
    ureads(0)
    for j in range(8):
        if j == 2: xreads(2)
        if j < 7:
            k.wait(f"p1u{(j+1)//2}_{(j+1) % 2}")
            if j == 6:
                k.stamp("p1_loaded"); k.L = o.get("L", 12)
            k.stamp(f"p1s{j+1}")
            k("s_waitcnt lgkmcnt(0)")
            ureads(j+1)
        else:
            k("s_waitcnt lgkmcnt(0)")
        for jj in range(4):
            for mi in range(2):
                k(f"v_mfma_f32_16x16x32_bf16 {acc1(jj, mi)}, {ar(64+(j % 2)*16+jj*4,4)}, {ar((j*2+mi)*4,4)}, {'0' if j == 0 else acc1(jj, mi)}")
            k.pump(2)
    k(f"s_mov_b32 s{T0}, 0x58000000")
    k(f"v_mov_b32 v{V_X1}, s{T0}")
    k("s_nop 3")
    for q in (0, 2, 1, 3, 4, 6, 5, 7):
        k(f"ds_write_b128 v{V_RW}, {ar(A1+q*4,4)} offset:{P1R+q*1024}")
    k("s_waitcnt lgkmcnt(0)")
    k("s_barrier")
    k.stamp("p1_bar")
    R = 16
    for w in range(4):
        for c in range(2):
            k(f"ds_read_b128 {vr(R+(w*2+c)*4,4)}, v{V_RR+w//2} offset:{(w % 2)*AREA_SZ+c*1024}")
    k("s_waitcnt lgkmcnt(4)")
    pkadd(k, R, R+8, 4)
    k("s_waitcnt lgkmcnt(0)")
    pkadd(k, R+16, R+24, 4)
    pkadd(k, R, R+16, 4)
    for q in range(4):
        d = R+2*q
        k(f"v_pk_mul_f32 v[{d}:{d+1}], v[{d}:{d+1}], v[{V_X1}:{V_X1+1}] op_sel_hi:[1,0]")
    for q in range(4):
        k(f"v_cvt_pk_bf16_f32 v{R+32+q}, v{R+2*q}, v{R+2*q+1}")
    k.vmem(f"buffer_store_dwordx4 v[{R+32}:{R+35}], v{V_L16}, {srdr(SRD_WS)}, s{XSO} offen sc1", "xrst")
    k.stamp("p1_done")
    k(f"s_cmp_lt_u32 s{S_I2}, 14")
    k("s_cbranch_scc1 WORKER_A")
    k("s_waitcnt vmcnt(0)")
    sv = list(k.vm)
    k.flag(f"s{FL1}")
    if o.get("n14", 4): help_v(k, o.get("b14", 3), o.get("n14", 3), "HV14", o.get("b14o", 7), o.get("n14o", 2), o.get("b14d", 3), o.get("n14d", 3))
    k("s_waitcnt vmcnt(0)")
    k("s_branch FINISH")
    k.vm = sv
    a.label("WORKER_A")
    k.open("setup")
    k.L = o.get("LA", 12)
    k.pump(o.get("nxA", 0))
    red_addrs(k, 0)
    p3_setup(k)
    k.wait("xrst")
    k.flag(f"s{FL1}"); k.open("f1"); k.open("f1done")
    k.stamp("h_flag")
    k.pump()
    def pfw():
        for st in pford:
            need(k, f"pf{st}"); k.pump()
    for n in range(NS):
        if n == pfat: pfw()
        v_fetch(k, n)
        if n == 6: k.stamp("q_half")
    k.stamp("v1_done")
    if pfat == NS: pfw()
    p3_main(k, o)
    k(f"s_or_b32 s{T0}, s{S_XCD}, s{S_I2}")
    k(f"s_or_b32 s{T0}, s{T0}, s{S_WAVE}")
    k(f"s_cmp_lg_u32 s{T0}, 0")
    k("s_cbranch_scc1 FINISH")
    k(f"s_add_u32 s{T0}, s{S_EP}, 1")
    k(f"v_mov_b32 v{V_T}, s{T0}")
    k(f"s_lshl_b32 s{T0}, s{S_HALF}, 7")
    k(f"s_add_u32 s{T0}, s{T0}, {hex(EP_OFF)}")
    k("s_mov_b64 exec, 1")
    k(f"buffer_store_dword v{V_T}, v0, {srdr(SRD_WS)}, s{T0} offen sc1")
    k("s_mov_b64 exec, -1")
    k("s_branch FINISH")

def spare_b(k, a, o):
    k("s_waitcnt lgkmcnt(0)")
    srd(a, SRD_V, 18, V_BYTES)
    srd(a, SRD_QW, 10, QW_BYTES)
    if o.get("hq", 52): help_q(k, o.get("hq", 52))
    if o.get("cw", 0) & 2: cw_go(k)
    if o.get("n15", 3): help_v(k, o.get("b15", 0), o.get("n15", 3), "HV15", o.get("b15o", 3), o.get("n15o", 4), o.get("b15d", 0), o.get("n15d", 3))
    k("s_waitcnt vmcnt(0)")
    k("s_branch FINISH")

def role_b(a, o):
    k = K(a, o); k.role = "B"; k.NS = 28 - o.get("NA", 16); k.HRN = 32
    k.L = o.get("LB0", 12)
    a.label("ROLE_B")
    k(f"s_cmp_lt_u32 s{S_I2}, 14")
    if o.get("sb", 0): k("s_cbranch_scc0 SPARE_B")
    else:
        k("s_cbranch_scc1 WORKER_B")
        spare_b(k, a, o)
    a.label("WORKER_B")
    role_ids(k)
    q_setup(k, False)
    k("s_waitcnt lgkmcnt(0)")
    srd(a, SRD_QW, 10, QW_BYTES); srd(a, SRD_SC, 12, SC_BYTES); srd(a, SRD_Z, 14, SC_BYTES)
    nv1, vat = o.get("nv1B", 0), o.get("vatB", 32)
    k.nv1 = nv1
    sz_items(k)
    q_stream(k, 0, vat, o, "B")
    for n in range(nv1):
        for q in range(4): v_item(k, n, q, "setup")
    q_stream(k, vat, 64, o, "B")
    tail_stream(k, nv1, o, "B")
    k.pump()
    epoch_load(k)
    srd(a, SRD_V, 18, V_BYTES); srd(a, SRD_OUT, 20, OUT_BYTES); srd(a, SRD_WS, 24, WS_BYTES)
    k("s_setreg_imm32_b32 hwreg(HW_REG_MODE, 4, 2), 3")
    tr_addrs(k)
    v_setup(k)
    p2_setup(k)
    red_addrs(k, 0)
    k.open("setup")
    k.L = o.get("LB1", 16)
    k.pump()
    k.wait("sz")
    tag_calc(k)
    mid_main(k, nv1, vat)
    p2_main(k, nv1, o)
    p3_main(k, o)
    if o.get("sb", 0):
        k("s_branch FINISH" if o.get("stamp") else "s_endpgm")
        a.label("SPARE_B")
        spare_b(k, a, o)

def build(opt):
    global PKA
    PKA = opt.get("pk", 0)
    a = Asm(); K.uid = 0
    a.raw(HEADER.rstrip())
    a.raw(f"; @launch grid=(256,1,1) block=(256,1,1) lds={LDS_BYTES}")
    a.raw('.amdgcn_target "amdgcn-amd-amdhsa--gfx950"')
    kernel_begin(a, KNAME)
    a("s_cmp_ge_u32 s2, 256")
    a("s_cbranch_scc1 DONE")
    if opt.get("stamp"): a(f"{TIMER(opt)} s[92:93]")
    a("s_load_dwordx16 s[8:23], s[0:1], 0")
    a("s_load_dwordx2 s[24:25], s[0:1], 64")
    cw = opt.get("cw", 0)
    if cw:
        lo, hi = opt.get("cwlo", 0), opt.get("cwhi", 240)
        a(f"s_sub_u32 s3, s2, {lo}")
        a(f"s_cmp_lt_u32 s3, {hi-lo}")
        a("s_cbranch_scc1 NOCW")
        cw_setup(a); cw_go(a)
        a.label("NOCW")
    a("v_lshrrev_b32 v4, 6, v0")
    a("v_and_b32 v1, 63, v0")
    a(f"v_readfirstlane_b32 s{S_WAVE}, v4")
    a("v_lshrrev_b32 v2, 4, v1")
    a("v_and_b32 v3, 15, v1")
    a(f"v_lshlrev_b32 v{V_L16}, 4, v1")
    a("v_mov_b32 v0, 0")
    a(f"s_and_b32 s{S_XCD}, s2, 7")
    a(f"s_lshr_b32 s{T0}, s2, 3")
    a(f"s_and_b32 s{S_HALF}, s{T0}, 1")
    a(f"s_lshr_b32 s{S_I2}, s{T0}, 1")
    a(f"s_mul_i32 s{S_AREA}, s{S_WAVE}, {AREA_SZ}")
    a(f"s_bitcmp1_b32 s{S_I2}, 0")
    if opt.get("bfirst", 0):
        a("s_cbranch_scc0 ROLE_A")
        role_b(a, opt)
        role_a(a, opt)
    else:
        a("s_cbranch_scc1 ROLE_B")
        role_a(a, opt)
        role_b(a, opt)
    a.label("FINISH")
    if opt.get("stamp"):
        a("s_waitcnt vmcnt(0)")
        a(f"{TIMER(opt)} s[72:73]")
        a("s_load_dwordx2 s[70:71], s[0:1], 64")
        a("s_waitcnt lgkmcnt(0)")
        srd(a, 76, 70, 1 << 20, STAMP_OFF)
        a("s_lshl_b32 s70, s2, 2")
        a(f"s_add_u32 s70, s70, s{S_WAVE}")
        a("s_lshl_b32 s70, s70, 7")
        regs = [92] + STAMP_REGS[:len(STAMP_NAMES)] + [72]
        a("s_mov_b64 exec, 1")
        for i, r in enumerate(regs):
            a(f"v_mov_b32 v16, s{r}")
            a(f"v_mov_b32 v17, s{r+1}")
            a(f"buffer_store_dwordx2 v[16:17], v0, s[76:79], s70 offen offset:{i*8}")
            a("s_nop 1")
    a.label("DONE")
    a("s_endpgm")
    kernel_desc(a, KNAME, 512, 102, 256)
    return a.text(), ["start"] + stamp_names(opt) + ["end"]

if __name__ == "__main__":
    opt = eval(sys.argv[2]) if len(sys.argv) > 2 else {}
    txt, names = build(opt)
    open(sys.argv[1], "w").write(txt)
    print(len(txt))
```

```python
import sys
from asmlib import *

KNAME = "standalone__weight_only_int_quip__sampling_kernel"
XR_OFF   = 0
H_OFF    = 1 << 20
F1_OFF   = 3 << 20
F2_OFF   = F1_OFF + 16384
EP_OFF   = F1_OFF + 32768
F2A_D    = 32768
PFB = 78
PART_OFF = (4 << 20) + 65536
WS_BYTES = 8 << 20
STAMP_OFF = 128 << 20
OOB = 0x7f000000
AREA_SZ = 40960
P2R = 20480
P1R = 32768
LDS_BYTES = 163840
RING = 5

S_WAVE, S_EP = 4, 5
SRD_X, SRD_QW, SRD_SC, SRD_Z, SRD_U, SRD_V, SRD_OUT, SRD_WS = 28, 32, 36, 40, 44, 48, 52, 56
S_XCD, S_HALF, S_I2, S_M32, S_N64, S_M64, S_T2, S_KS, S_T, S_TAG = 60, 61, 62, 63, 64, 65, 66, 67, 68, 69
T0, T1, T2, T3 = 70, 71, 72, 73
S_AREA, S_CNT = 74, 75
L0, L1 = 76, 77
QB, GI = 78, 82
FL1, XST_, XRB, RHO = 86, 87, 88, 89
VB = 90
HB = 36
MOTH, MOWN, L2, TAGB, WT = 40, 41, 42, 43, 3
PF1, PF2, FL2, HST = 6, 7, 26, 27
PA, PB, YB, XSO = 94, 95, 96, 97
XO = 98

V_L16, V_X0, V_X1, V_T2, V_Q, V_T, V_VD0, V_VD1, V_TR = 4, 5, 6, 7, 8, 9, 10, 11, 12
WQ, STG, SZ, RAW, OWN = 16, 144, 240, 252, 240
QR = 20
V_U0, V_U1, V_XR0, V_XR1 = 224, 225, 226, 227
TGV = 224
XRN = 16
V_RW, V_RR = 232, 233
V_P1, V_P2, V_PR = 236, 237, 238
RT, PK, PLD = 144, 192, 208
STAMP_REGS = list(range(8, 26, 2)) + [28, 30, 44]
STAMP_NAMES = ["p1_loaded", "p1_done", "q_half", "v1_done", "h1_seen", "q_all", "p2_mfma", "h_flag", "h2_seen", "v_done", "part_st", "p3_mfma"]

def stamp_names(o):
    f = o.get("fine")
    if f == "p3": return ["h_flag", "h2_seen", "v_done"] + [f"pos{p}" for p in range(8)] + ["p3_mfma"]
    if f == "v": return ["p2_mfma", "h_flag"] + [f"vf{n}" for n in (0, 2, 4, 6, 7, 8, 10, 12)] + ["h2_seen", "v_done"]
    if f == "p1": return ["issue0"] + [f"p1s{j}" for j in range(8)] + ["p1_bar", "p1_done", "q_half"]
    if f == "p2": return ["h1_seen", "q_all"] + [f"p2_{p}{h}" for p in range(4) for h in "ab"] + ["p2_mfma", "h_flag"]
    if f == "q": return ["p1_done"] + [f"qp{n}" for n in (0, 3, 7, 11, 15, 19, 23, 27)] + ["v1_done", "h1_seen", "q_all"]
    return STAMP_NAMES
def TIMER(o): return "s_memtime" if o.get("cyc") else "s_memrealtime"
def srdr(b): return f"s[{b}:{b+3}]"
def vreg(k, j, off, n):
    if j < 10: return ar(64 + 16*j + off, n)
    if j < 14: return ar(16*(j-10) + off, n)
    return vr(WQ + 4*k.HRN + 16*(j-14) + off, n)
def step_base(k, d, ns):
    k(f"s_mul_i32 s{d}, s{S_KS}, {112-4*ns}")
    k(f"s_mul_i32 s{T1}, s{S_WAVE}, {ns}")
    k(f"s_add_u32 s{d}, s{d}, s{T1}")

class K:
    uid = 0
    def __init__(self, a, opt):
        self.a = a; self.o = opt
        self.vm = []; self.done = 0
        self.stream = []; self.sp = 0; self.gates = set()
        self.L = opt.get("L", 12)
    def __call__(self, s): self.a(s)
    def vmem(self, s, tag):
        self.a(s); self.vm.append(tag)
    def isdone(self, tag):
        return tag in self.vm and tag not in [t for t, _, _ in self.stream[self.sp:]] and self.done > max(i for i, t in enumerate(self.vm) if t == tag)
    def wait(self, tag):
        while tag in [t for t, _, _ in self.stream[self.sp:]]:
            assert self.issue_one(force=True), f"gate closed while waiting for {tag}: {self.stream[self.sp]}"
        idx = max(i for i, t in enumerate(self.vm) if t == tag)
        if idx < self.done: return
        n = len(self.vm) - 1 - idx
        self.a(f"s_waitcnt vmcnt({min(n, 63)})")
        self.done = idx + 1
    def add(self, tag, fn, *gates): self.stream.append((tag, fn, [g for g in gates if g]))
    def issue_one(self, force=False):
        if self.sp >= len(self.stream): return False
        tag, fn, gates = self.stream[self.sp]
        if any(g not in self.gates for g in gates): return False
        if not force and len(self.vm) - self.done >= self.L: return False
        self.sp += 1
        fn(tag)
        return True
    def pump(self, n=99):
        while n > 0 and self.issue_one(): n -= 1
    def open(self, g): self.gates.add(g)
    def fill(self, items): self.fq = getattr(self, "fq", []) + list(items)
    def drain(self, n=999):
        q = getattr(self, "fq", [])
        while q and n > 0:
            self.a(q.pop(0)); n -= 1
    def stamp(self, name):
        if not self.o.get("stamp"): return
        names = stamp_names(self.o)
        if name not in names: return
        r = STAMP_REGS[names.index(name)]
        self.a(f"{TIMER(self.o)} s[{r}:{r+1}]")
        self.a("s_waitcnt lgkmcnt(0)")
    def lab(self, p):
        K.uid += 1
        return f"{p}_{K.uid}"
    def poll_item(self, voff, soff):
        return lambda tag: self.vmem(f"buffer_load_dword v{V_PR}, {voff}, {srdr(SRD_WS)}, {soff} offen sc1", tag)
    def poll_check(self, tag, voff, soff):
        self.wait(tag)
        L = self.lab("POLL"); E = self.lab("POLLX")
        self(f"v_cmp_ne_u32 vcc, s{S_TAG}, v{V_PR}")
        self(f"s_mov_b32 s{S_CNT}, 0")
        self(f"s_cbranch_vccz {E}")
        self.a.label(L)
        self(f"s_sleep {self.o.get('nap', 8)}")
        self(f"buffer_load_dword v{V_PR}, {voff}, {srdr(SRD_WS)}, {soff} offen sc1")
        self(f"s_add_u32 s{S_CNT}, s{S_CNT}, 1")
        self("s_waitcnt vmcnt(0)")
        self(f"v_cmp_ne_u32 vcc, s{S_TAG}, v{V_PR}")
        self(f"s_cmp_gt_u32 s{S_CNT}, 0x40000")
        self(f"s_cbranch_scc1 {E}")
        self(f"s_cbranch_vccnz {L}")
        self.a.label(E)
    def flag(self, soff, who=0):
        self(f"s_cmp_eq_u32 s{S_WAVE}, {who}")
        self(f"s_cselect_b32 s{T0}, 0, {hex(OOB)}")
        self(f"v_mov_b32 v{V_T2}, s{S_TAG}")
        self(f"v_mov_b32 v{V_PR+1}, s{T0}")
        self("s_barrier")
        self("s_mov_b64 exec, 1")
        self.vmem(f"buffer_store_dword v{V_T2}, v{V_PR+1}, {srdr(SRD_WS)}, {soff} offen sc1", "flag")
        self("s_mov_b64 exec, -1")

def dma_voff(k, d0, d1, rowbytes, s_add):
    k(f"v_lshrrev_b32 v{d0}, 3, v1")
    k(f"v_and_b32 v{d1}, 2, v{d0}")
    k(f"v_mul_u32_u24 v{d0}, {rowbytes}, v{d0}")
    k(f"v_and_b32 v{V_T2}, 7, v1")
    k(f"v_xor_b32 v{d1}, v{d1}, v{V_T2}")
    k(f"v_lshl_add_u32 v{d0}, v{d1}, 4, v{d0}")
    k(f"v_add_u32 v{d0}, s{s_add}, v{d0}")
    k(f"v_xor_b32 v{d1}, 64, v{d0}")

def tr_addrs(k):
    k("v_lshrrev_b32 v12, 2, v3")
    k("v_lshrrev_b32 v13, 1, v12")
    k("v_and_b32 v14, 1, v2")
    k("v_lshl_add_u32 v13, v14, 1, v13")
    k("v_lshl_add_u32 v12, v2, 3, v12")
    k("v_lshlrev_b32 v12, 7, v12")
    k("v_lshl_add_u32 v12, v13, 5, v12")
    k("v_and_b32 v13, 3, v1")
    k("v_lshl_add_u32 v12, v13, 3, v12")
    k(f"v_add_u32 v12, s{S_AREA}, v12")
    k("v_xor_b32 v13, 32, v12")
    k("v_xor_b32 v14, 64, v12")
    k("v_xor_b32 v15, 96, v12")

def role_ids(k):
    k(f"s_lshl_b32 s{S_M64}, s{S_HALF}, 1")
    k(f"s_lshr_b32 s{T0}, s{S_I2}, 1")
    k(f"s_mul_i32 s{S_T2}, s{S_XCD}, 7")
    k(f"s_add_u32 s{S_T2}, s{S_T2}, s{T0}")

def q_setup(k, oob, order=(0, 1, 2, 3)):
    if oob:
        k(f"s_cmp_lt_u32 s{S_I2}, 14")
        k(f"s_cselect_b32 s{T2}, 0, {hex(OOB)}")
    k(f"v_mul_u32_u24 v{V_Q}, {4*14336}, v2")
    k(f"v_lshl_add_u32 v{V_Q}, v3, 4, v{V_Q}")
    k(f"s_lshl_b32 s{T0}, s{S_T2}, 8")
    if oob: k(f"s_add_u32 s{T0}, s{T0}, s{T2}")
    k(f"v_add_u32 v{V_Q}, s{T0}, v{V_Q}")
    k(f"v_mul_u32_u24 v{V_T}, 7168, v2")
    k(f"v_lshl_add_u32 v{V_T}, v3, 3, v{V_T}")
    k(f"s_mul_i32 s{T0}, s{S_WAVE}, {4*7168}")
    k(f"s_lshl_b32 s{T1}, s{S_T2}, 7")
    k(f"s_add_u32 s{T0}, s{T0}, s{T1}")
    if oob: k(f"s_add_u32 s{T0}, s{T0}, s{T2}")
    k(f"v_add_u32 v{V_T}, s{T0}, v{V_T}")
    k(f"s_lshl_b32 s{T1}, s{S_HALF}, 1")
    for j in range(4):
        k(f"s_xor_b32 s{GI+j}, s{T1}, {order[j]}")
        k(f"s_lshl_b32 s{T0}, s{S_WAVE}, 2")
        k(f"s_add_u32 s{T0}, s{T0}, s{GI+j}")
        k(f"s_mul_i32 s{QB+j}, s{T0}, {64*14336}")

def epoch_load(k):
    k(f"s_lshl_b32 s{T0}, s{S_HALF}, 7")
    k(f"s_add_u32 s{T0}, s{T0}, {hex(EP_OFF)}")
    k(f"s_load_dword s{S_EP}, s[24:25], s{T0}")

def tag_calc(k):
    k("s_waitcnt lgkmcnt(0)")
    k(f"s_mul_i32 s{S_TAG}, s{S_EP}, 0x9e3779b1")
    k(f"s_add_u32 s{S_TAG}, s{S_TAG}, 0x7f4a7c15")
    k(f"s_lshr_b32 s{T0}, s{S_TAG}, 15")
    k(f"s_xor_b32 s{S_TAG}, s{S_TAG}, s{T0}")
    k(f"s_mul_i32 s{S_TAG}, s{S_TAG}, 0x85ebca6b")

def red_addrs(k, add):
    k(f"s_add_u32 s{T0}, s{S_AREA}, {add}")
    k(f"v_add_u32 v{V_RW}, s{T0}, v{V_L16}")
    for p in range(3):
        k(f"s_sub_u32 s{T1}, s{S_WAVE}, {p+1}")
        k(f"s_and_b32 s{T1}, s{T1}, 3")
        k(f"s_mul_i32 s{T1}, s{T1}, {AREA_SZ}")
        k(f"s_add_u32 s{T1}, s{T1}, {add+p*4096}")
        k(f"v_add_u32 v{V_RR+p}, s{T1}, v{V_L16}")

def v_setup(k):
    k(f"s_and_b32 s{S_KS}, s{S_XCD}, 1")
    k(f"s_lshr_b32 s{T0}, s{S_XCD}, 1")
    k(f"s_mul_i32 s{S_T}, s{T0}, 14")
    k(f"s_xor_b32 s{T0}, s{S_I2}, s{S_KS}")
    k(f"s_add_u32 s{S_T}, s{S_T}, s{T0}")
    k(f"s_lshl_b32 s{T0}, s{S_T}, 7")
    dma_voff(k, V_VD0, V_VD1, 7168, T0)
    step_base(k, T0, k.NS)
    k(f"s_mul_i32 s{VB}, s{T0}, {32*7168}")
    k(f"v_min_u32 v{V_P2}, {k.NS//2-1}, v1")
    k(f"v_lshlrev_b32 v{V_P2}, 7, v{V_P2}")
    k(f"s_lshr_b32 s{T0}, s{T0}, 1")
    k(f"s_mul_i32 s{T1}, s{S_HALF}, 56")
    k(f"s_add_u32 s{T1}, s{T0}, s{T1}")
    k(f"s_lshl_b32 s{T1}, s{T1}, 7")
    k(f"s_add_u32 s{PF2}, s{T1}, {hex(F2_OFF)}")
    if k.role == "A":
        k(f"s_add_u32 s{PF1}, s{PF2}, {F2A_D}")
        step_base(k, T0, 28-k.NS)
        k(f"s_mul_i32 s{PFB}, s{T0}, {32*7168}")
        k(f"s_lshl_b32 s{T0}, s{S_KS}, 8")
        k(f"s_add_u32 s{PFB}, s{PFB}, 128")
        k(f"s_sub_u32 s{PFB}, s{PFB}, s{T0}")
        k(f"s_and_b32 s{T0}, s{S_T}, 7")
        k(f"s_cmp_eq_u32 s{T0}, {3 if k.o.get('deleg', 1) else 9}")
        k(f"s_cselect_b32 s{T0}, {hex(OOB)}, 0")
        k(f"v_add_u32 v{V_P1}, s{T0}, v{V_VD0}")

def poll1_setup(k):
    k(f"v_min_u32 v{V_P1}, 15, v1")
    k(f"v_lshlrev_b32 v{V_P1}, 7, v{V_P1}")
    k(f"s_lshl_b32 s{T0}, s{S_HALF}, 13")
    k(f"s_lshl_b32 s{T1}, s{S_WAVE}, 11")
    k(f"s_add_u32 s{T0}, s{T0}, s{T1}")
    k(f"s_add_u32 s{PF1}, s{T0}, {hex(F1_OFF)}")

def xpf_item(k, i):
    def f(tag):
        if i == 0:
            k(f"s_lshr_b32 s{L1}, s{S_I2}, 1")
            k(f"s_lshl_b32 s{L0}, s{S_HALF}, 3")
            k(f"s_add_u32 s{L0}, s{L0}, s{L1}")
            k(f"s_lshl_b32 s{L0}, s{L0}, 2")
            k(f"s_add_u32 s{L0}, s{L0}, s{S_WAVE}")
            k(f"s_lshl_b32 s{L0}, s{L0}, 13")
        if i == 4: k(f"s_add_u32 s{L0}, s{L0}, 4096")
        if i == 8:
            k(f"s_lshl_b32 s{L0}, s{S_HALF}, 5")
            k(f"s_add_u32 s{L0}, s{L0}, s{S_WAVE}")
            k(f"s_add_u32 s{L0}, s{L0}, 28")
            k(f"s_lshl_b32 s{L0}, s{L0}, 3")
            k(f"s_add_u32 s{L0}, s{L0}, s{L1}")
            k(f"s_lshl_b32 s{L0}, s{L0}, 10")
        k.vmem(f"buffer_load_dwordx4 {vr(STG+4*(i % 4),4)}, v{V_L16}, {srdr(SRD_WS)}, s{L0} offen offset:{(i % 4)*1024} sc1", tag)
    k.add("xpf", f, "h1")

def p2_setup(k):
    k(f"s_add_u32 s{XRB}, s{S_WAVE}, s{S_T2}")
    k(f"s_lshl_b32 s{T0}, s{S_M64}, 4")
    k(f"s_add_u32 s{T0}, s{T0}, s{S_WAVE}")
    k(f"s_lshl_b32 s{T0}, s{T0}, 13")
    for j in range(4):
        k(f"s_lshl_b32 s{T1}, s{GI+j}, 11")
        k(f"s_add_u32 s{XO+j}, s{T0}, s{T1}")
    poll1_setup(k)
    k(f"s_and_b32 s{T1}, s{XRB}, 3")
    k(f"s_lshl_b32 s{T2}, s{S_M64}, 2")
    k(f"s_add_u32 s{T2}, s{T2}, s{T1}")
    k(f"s_mul_i32 s{T2}, s{T2}, 112")
    k(f"s_lshl_b32 s{T3}, s{S_T2}, 1")
    k(f"s_add_u32 s{T2}, s{T2}, s{T3}")
    k(f"s_lshl_b32 s{T2}, s{T2}, 10")
    k(f"s_add_u32 s{HST}, s{T2}, {hex(H_OFF)}")
    k(f"s_mul_i32 s{T0}, s{S_HALF}, 56")
    k(f"s_add_u32 s{FL2}, s{T0}, s{S_T2}")
    k(f"s_lshl_b32 s{FL2}, s{FL2}, 7")
    k(f"s_add_u32 s{FL2}, s{FL2}, {hex(F2_OFF)}")
    k(f"s_add_u32 s{FL1}, s{FL2}, {F2A_D}")

def p3_setup(k):
    step_base(k, T0, k.NS)
    k(f"s_lshl_b32 s{T0}, s{T0}, 10")
    k(f"s_add_u32 s{T0}, s{T0}, {hex(H_OFF)}")
    for r, (lo, hi, d) in enumerate(vruns(k)):
        k(f"s_mul_i32 s{T1}, s{S_HALF}, {d*1024}")
        k(f"s_add_u32 s{T1}, s{T1}, {lo*1024}")
        k(f"s_add_u32 s{HB+r}, s{T0}, s{T1}")
    k(f"s_lshl_b32 s{T0}, s{S_HALF}, 1")
    k(f"s_add_u32 s{MOWN}, s{T0}, {1 if k.role == 'A' else 0}")
    k(f"s_xor_b32 s{MOTH}, s{MOWN}, 1")
    k(f"s_lshl_b32 s{MOWN}, s{MOWN}, 2")
    k(f"s_lshl_b32 s{MOTH}, s{MOTH}, 2")
    k(f"s_add_u32 s{WT}, s{S_WAVE}, s{S_T}")
    k(f"s_mul_i32 s{T0}, s{S_HALF}, 56")
    k(f"s_add_u32 s{T0}, s{T0}, s{S_T}")
    k(f"s_lshl_b32 s{T0}, s{T0}, 1")
    k(f"s_add_u32 s{T0}, s{T0}, s{S_KS}")
    k(f"s_lshl_b32 s{T0}, s{T0}, 2")
    k(f"s_add_u32 s{T0}, s{T0}, s{S_WAVE}")
    k(f"s_xor_b32 s{T1}, s{T0}, 4")
    k(f"s_lshl_b32 s{PA}, s{T0}, 12")
    k(f"s_add_u32 s{PA}, s{PA}, {hex(PART_OFF)}")
    k(f"s_lshl_b32 s{PB}, s{T1}, 12")
    k(f"s_add_u32 s{PB}, s{PB}, {hex(PART_OFF)}")
    k(f"s_mul_i32 s{T0}, s{S_EP}, 37")
    k(f"s_add_u32 s{T0}, s{T0}, 11")
    for i in range(4):
        k(f"s_add_u32 s{T1}, s{T0}, {64*i}")
        k(f"s_and_b32 s{T1}, s{T1}, 0xff")
        k(f"v_mov_b32 v{TGV+i}, s{T1}")
        if i == 0: k(f"s_mov_b32 s{TAGB}, s{T1}")
        else:
            k(f"s_lshl_b32 s{T1}, s{T1}, {8*i}")
            k(f"s_or_b32 s{TAGB}, s{TAGB}, s{T1}")
    k(f"v_mov_b32 v{TGV+4}, 0xff")
    k(f"v_mov_b32 v{TGV+5}, 0x0c0c0400")
    k(f"v_mov_b32 v{TGV+6}, 0x04000c0c")
    k(f"s_and_b32 s{T1}, s{WT}, 3")
    k(f"s_add_u32 s{T1}, s{T1}, s{MOWN}")
    k(f"s_mul_i32 s{T1}, s{T1}, {16*7168}")
    k(f"s_lshl_b32 s{T0}, s{S_T}, 7")
    k(f"s_add_u32 s{YB}, s{T1}, s{T0}")
    k("v_mul_u32_u24 v5, 7168, v3")
    k("v_and_b32 v6, 1, v2")
    k("v_lshl_add_u32 v5, v6, 5, v5")
    k("v_lshrrev_b32 v6, 1, v2")
    k("v_lshl_add_u32 v5, v6, 4, v5")

def pkadd(k, d, s, n=8):
    for q in range(n):
        k(f"v_pk_add_f32 v[{d+2*q}:{d+2*q+1}], v[{d+2*q}:{d+2*q+1}], v[{s+2*q}:{s+2*q+1}]")

def sz_items(k, *g):
    k.add("sz", lambda t: k.vmem(f"buffer_load_dwordx2 v[{RAW}:{RAW+1}], v{V_T}, {srdr(SRD_SC)}, 0 offen", t), *g)
    k.add("sz", lambda t: k.vmem(f"buffer_load_dwordx2 v[{RAW+2}:{RAW+3}], v{V_T}, {srdr(SRD_Z)}, 0 offen", t))
def qreg(n): return 80 + 4*n if n < 16 else STG + 4*((n-16) % QR)
def q_item(k, n, fl, *g):
    st, i = n//8, n % 8
    j, u = st//2, st % 2
    ro = 32*u + (i if i < 4 else 12+i)
    def f(tag):
        so = f"s{QB+j}"
        if ro:
            k(f"s_add_u32 s{L0}, s{QB+j}, {hex(ro*14336)}")
            so = f"s{L0}"
        k.vmem(f"buffer_load_dwordx4 {vr(qreg(n),4)}, v{V_Q}, {srdr(SRD_QW)}, {so} offen {fl}", tag)
    k.add(f"q{n//2}", f, f"qfree{n-QR}" if n >= QR+16 else None, *g)
def xr_item(k, p, st):
    j, u = st//2, st % 2
    def f(tag):
        if st == 0:
            k(f"s_add_u32 s{L1}, s{XRB}, {(p % 4)+1}")
            k(f"s_and_b32 s{L1}, s{L1}, 3")
            if p >= 4: k(f"s_add_u32 s{L1}, s{L1}, 4")
            k(f"s_lshl_b32 s{L1}, s{L1}, 15")
        if u == 0:
            k(f"s_add_u32 s{L0}, s{XO+j}, s{L1}")
        k.vmem(f"buffer_load_dwordx4 {ar(((p*8+st) % XRN)*4,4)}, v{V_L16}, {srdr(SRD_WS)}, s{L0} offen offset:{u*1024} sc1", tag)
    k.add(f"x{p}_{st}", f, "h1", f"xfree{p*8+st-XRN}" if p*8+st >= XRN else None)
def vruns(k):
    out = []
    for lo, hi in ((0, k.nv1), (k.nv1, k.NS)):
        if hi == lo: continue
        assert (hi - lo) % 2 == 0
        m = (hi - lo)//2
        out += [(lo, lo+m, m), (lo+m, hi, -m)]
    return out
def rowoff(st): return 64*(st >> 1) + 8*(st & 1)
def v_item(k, n, q, *g):
    d = [d for lo, hi, d in vruns(k) if lo <= n < hi][0]
    def f(tag):
        if q == 0:
            k(f"s_mul_i32 s{VB+1}, s{S_HALF}, {(rowoff(n+d) - rowoff(n))*7168}")
            k(f"s_add_u32 s{VB+1}, s{VB+1}, s{VB}")
        k(f"s_add_u32 m0, s{S_AREA}, {(n % RING)*4096 + q*1024}")
        k(f"s_add_u32 s{L0}, s{VB+1}, {hex((rowoff(n) + 16*q)*7168)}")
        k.vmem(f"buffer_load_dwordx4 v{V_VD0+(q&1)}, {srdr(SRD_V)}, s{L0} offen {k.o.get('vfl'+k.role,'') if n >= k.NS//2 else ''} lds", tag)
    k.add(f"v{n}", f, f"vfree{n-RING}" if (n >= RING and q == 0) else None, *g)
def h_item(k, p, j):
    n = p*k.NS+j
    r, lo = [(r, lo) for r, (lo, hi, d) in enumerate(vruns(k)) if lo <= j < hi][0]
    def f(tag):
        if j == 0:
            k(f"s_add_u32 s{L2}, s{WT}, {(p % 4)+1}")
            k(f"s_and_b32 s{L2}, s{L2}, 3")
            k(f"s_add_u32 s{L2}, s{L2}, s{MOTH if p < 4 else MOWN}")
            k(f"s_mul_i32 s{L2}, s{L2}, {112*1024}")
        if j == lo: k(f"s_add_u32 s{L0}, s{L2}, s{HB+r}")
        elif (j - lo) % 4 == 0: k(f"s_add_u32 s{L0}, s{L0}, 4096")
        k.vmem(f"buffer_load_dwordx4 {vr(WQ+4*(n % k.HRN),4)}, v{V_L16}, {srdr(SRD_WS)}, s{L0} offen offset:{((j-lo) % 4)*1024} {k.o.get('hfl', 'sc1')}", tag)
    k.add(f"h{p}_{j}", f, "h2a" if (k.role == "A" and p < 4) else "h2")
def pld_ins(jj):
    return f"buffer_load_dwordx4 {vr(PLD+jj*4,4)}, v{V_L16}, {srdr(SRD_WS)}, s{PB} offen offset:{jj*1024} sc1"

def sz_prep(k, j):
    k(f"s_lshl_b32 s{T0}, s{GI+j}, 6")
    k(f"v_lshl_add_u32 v{V_PR+1}, v3, 2, s{T0}")
    for q in range(4):
        k(f"ds_bpermute_b32 v{248+q}, v{V_PR+1}, v{RAW+q}")
    k(f"s_mov_b32 s{T2}, 0x71800000")
    k(f"s_mov_b32 s{T3}, 0xa7000000")
    k("s_waitcnt lgkmcnt(0)")
    for jj in range(4):
        if jj % 2 == 0:
            k(f"v_lshlrev_b32 v{SZ+jj}, 16, v{248+jj//2}")
            k(f"v_lshlrev_b32 v{SZ+4+jj}, 16, v{250+jj//2}")
        else:
            k(f"v_and_b32 v{SZ+jj}, 0xffff0000, v{248+jj//2}")
            k(f"v_and_b32 v{SZ+4+jj}, 0xffff0000, v{250+jj//2}")
    for jj in range(4):
        k(f"v_mul_f32 v{SZ+4+jj}, v{SZ+4+jj}, v{SZ+jj}")
    for jj in range(4):
        k(f"v_mul_f32 v{SZ+jj}, s{T2}, v{SZ+jj}")
        k(f"v_mul_f32 v{SZ+4+jj}, s{T3}, v{SZ+4+jj}")

def events(k):
    if "xrst" in k.vm and "f1" not in k.gates and k.isdone("xrst"):
        k.flag(f"s{FL1}"); k.open("f1"); k.L = k.o.get("Lf1", 24)
    if "f1" in k.gates and "f1done" not in k.gates and k.isdone("flag"):
        k.open("f1done"); k.L = k.o.get("L", 12)
    if "hflag" in k.gates and "f2done" not in k.gates and k.isdone("flag"):
        k.open("f2done"); k.L = k.o.get("LV", 12)
    if "h1" not in k.gates and k.isdone("poll1"):
        k.poll_check("poll1", f"v{V_P1}", f"s{PF1}"); k.open("h1"); k.stamp("h1_seen")
    if "h2a" not in k.gates and k.isdone("poll2a"):
        k.poll_check("poll2a", f"v{V_P2}", f"s{PF1}"); k.open("h2a"); k.stamp("h2_seen")
    if "h2" not in k.gates and k.isdone("poll2"):
        k.poll_check("poll2", f"v{V_P2}", f"s{PF2}"); k.open("h2"); k.stamp("h2_seen" if k.role == "B" else "q_all")

def need(k, tag):
    while tag in [t for t, _, _ in k.stream[k.sp:]]:
        if k.issue_one(force=True): continue
        g = [g for g in k.stream[k.sp][2] if g not in k.gates][0]
        k.wait({"h1": "poll1", "h2": "poll2", "h2a": "poll2a"}[g])
        events(k)
        if k.o.get("gpump", 1): k.pump()
    k.wait(tag)
    events(k)

def dequant_pair(k, pr):
    st, p = pr//4, pr % 4
    if pr % 8 == 0 and f"sz{pr//8}" not in k.gates: sz_prep(k, pr//8)
    need(k, f"q{pr}")
    k.stamp(f"qp{pr}")
    k.pump()
    r0, r1 = qreg(2*pr), qreg(2*pr+1)
    for r in (r0, r1):
        for hh in range(2):
            q = r+2*hh
            k(f"v_pk_fma_f32 v[{q}:{q+1}], v[{q}:{q+1}], v[{SZ+2*hh}:{SZ+2*hh+1}], v[{SZ+4+2*hh}:{SZ+4+2*hh+1}]")
    for jj in range(4):
        k(f"v_cvt_pk_bf16_f32 v{WQ+(st*4+jj)*4+p}, v{r0+jj}, v{r1+jj}")
    k.open(f"qfree{2*pr}"); k.open(f"qfree{2*pr+1}")

def v_fetch(k, n):
    need(k, f"v{n}")
    k.stamp(f"vf{n}")
    if n >= 1 and f"vfree{n-1}" not in k.gates:
        k("s_waitcnt lgkmcnt(0)")
        k.open(f"vfree{n-1}")
    for jj in range(4):
        for h in range(2):
            k(f"ds_read_b64_tr_b16 {vreg(k, n, jj*4+2*h, 2)}, v{V_TR+jj} offset:{(n % RING)*4096 + h*512}")
    k.pump()

def accname(p, jj, own):
    return vr(OWN+jj*4, 4) if own else ar(224+(p % 2)*16+jj*4, 4)
def red_read(k, off):
    for p in range(3):
        for jj in range(4):
            k(f"ds_read_b128 {vr(RT+(p*4+jj)*4,4)}, v{V_RR+p} offset:{off+jj*1024}")

def vpf_item(k, st, q):
    def f(tag):
        if q == 0:
            k(f"s_mul_i32 s{VB+1}, s{S_HALF}, {(rowoff(st+14-k.NS//2) - rowoff(st))*7168}")
            k(f"s_add_u32 s{VB+1}, s{VB+1}, s{PFB}")
        k(f"s_add_u32 s{L0}, s{VB+1}, {hex((rowoff(st) + 16*q)*7168)}")
        k.vmem(f"buffer_load_dwordx4 {vr(STG+4*q,4)}, v{V_P1}, {srdr(SRD_V)}, s{L0} offen", tag)
    k.add(f"pf{st}", f)

def h_stream(k, o):
    for p in range(8):
        for j in range(k.NS):
            if k.role == "A" and p == 3 and j == o.get("p2atA", 1):
                k.add("poll2", k.poll_item(f"v{V_P2}", f"s{PF2}"))
            if p == 7 and j == o.get("tcat", 4):
                for jj in range(4):
                    k.add("pld", (lambda jj: lambda t: k.vmem(pld_ins(jj), t))(jj))
            h_item(k, p, j)

def tail_stream(k, nv1, o, role):
    for p in range(8):
        for st in range(8): xr_item(k, p, st)
    vpre, vmid = o.get("vpre"+role, 4), o.get("vmid"+role, 10)
    p2back = o.get("p2back"+role, 8)
    rest = [(n, q) for n in range(nv1, k.NS) for q in range(4)]
    for i, (n, q) in enumerate(rest):
        if i == len(rest) - p2back:
            k.add("poll2", k.poll_item(f"v{V_P2}", f"s{PF2}"), "hflag")
        v_item(k, n, q, "f2bar" if (i == 0 and o.get("nb", 1)) else None, "hstored" if i == vpre else None, "hflag" if i == vmid else None)
    if p2back == 0: k.add("poll2", k.poll_item(f"v{V_P2}", f"s{PF2}"), "hflag")
    h_stream(k, o)

def q_stream(k, lo, hi, o, role):
    p1pos = o.get("p1pos"+role, 63)
    for n in range(lo, hi):
        if n == p1pos: k.add("poll1", k.poll_item(f"v{V_P1}", f"s{PF1}"), "setup")
        fl = o.get("qfl", "") if (role == "A" or n >= 32) else ""
        q_item(k, n, fl, "xstored" if (role == "A" and n == o.get("qpreA", 99)) else None)

PKA = 0
def adds(d, s_, n=16):
    if PKA: return [f"v_pk_add_f32 v[{d+q}:{d+q+1}], v[{d+q}:{d+q+1}], v[{s_+q}:{s_+q+1}]" for q in range(0, n, 2)]
    return [f"v_add_f32 v{d+q}, v{d+q}, v{s_+q}" for q in range(n)]
def rreads(off): return [f"ds_read_b128 {vr(RT+(p*4+jj)*4,4)}, v{V_RR+p} offset:{off+jj*1024}" for p in range(3) for jj in range(4)]
def hpack(dst, src):
    return [f"v_cvt_pk_bf16_f32 v{dst+f*4+rr*2+hh}, v{src+(2*hh)*4+2*f+rr}, v{src+(2*hh+1)*4+2*f+rr}" for f in range(2) for rr in range(2) for hh in range(2)]

def p2_main(k, nv1, o):
    k.stamp("q_all")
    nb = o.get("nb", 1)
    assert nv1 == 0
    for p in range(8):
        own = (p % 4 == 3)
        for st in range(8):
            need(k, f"x{p}_{st|1 if o.get('w2x', 0) else st}")
            if st == 0: k.stamp(f"p2_{p//2}{'ab'[p % 2]}")
            if p % 4 != 0 and st == 2:
                k.fill(f"ds_write_b128 v{V_RW}, {accname(p-1, jj, False)} offset:{(0 if (nb and p < 4) else P2R)+((p-1) % 4)*4096+jj*1024}" for jj in range(4))
            if p == 7 and st == 3:
                k.fill(["s_waitcnt lgkmcnt(0)", "s_barrier"] + rreads(P2R) + ["s_waitcnt lgkmcnt(4)"] + adds(RT, RT+16) + ["s_waitcnt lgkmcnt(0)"] + adds(RT, RT+32))
            if (p, st) == tuple(o.get("r0at", (3, 6))):
                k.fill(["s_waitcnt lgkmcnt(0)", "s_barrier"] + rreads(0 if nb else P2R) + ["s_waitcnt lgkmcnt(4)"] + adds(RT, RT+16) + ["s_waitcnt lgkmcnt(0)"] + ([] if nb else ["s_barrier"]) + adds(RT, RT+32))
            if (p, st) == tuple(o.get("hpat", (4, 2))):
                k.fill(adds(RT, OWN) + hpack(PK+8, RT))
            if p == 5 and st == 1 and not nb: k.drain()
            if (p, st) == tuple(o.get("hs0at", (5, 1))):
                k.drain()
                k.vmem(f"buffer_store_dwordx4 v[{PK+8}:{PK+11}], v{V_L16}, {srdr(SRD_WS)}, s{HST} offen sc1", "hst0")
                k.vmem(f"buffer_store_dwordx4 v[{PK+12}:{PK+15}], v{V_L16}, {srdr(SRD_WS)}, s{HST} offen offset:1024 sc1", "hst0")
                k(f"s_add_u32 s{HST}, s{HST}, {4*112*1024}")
                k.L += 2
            if (p, st) == tuple(o.get("f2at", (6, 6))):
                k.wait("hst0")
                k.flag(f"s{FL1}")
                k.open("f2bar")
                k.stamp("v1_done")
                k.L -= 1
            for jj in range(4):
                acc = accname(p, jj, own)
                k(f"v_mfma_f32_16x16x32_bf16 {acc}, {vr(WQ+(st*4+jj)*4,4)}, {ar(((p*8+st) % XRN)*4,4)}, {'0' if st == 0 else acc}")
                if jj == 0: k.pump()
                if p == 7: k.drain(1 if st == 2 else 3)
                elif jj: k.drain(o.get('fn2', 3) if p in (3, 4) else 2)
            k.open(f"xfree{p*8+st}")
        if p == 6: k.drain()
    k.drain()
    k.stamp("p2_mfma")
    k("s_nop 4")
    pkadd(k, OWN, RT)
    for x in hpack(PK, OWN): k(x)
    k.vmem(f"buffer_store_dwordx4 v[{PK}:{PK+3}], v{V_L16}, {srdr(SRD_WS)}, s{HST} offen sc1", "hst")
    k.vmem(f"buffer_store_dwordx4 v[{PK+4}:{PK+7}], v{V_L16}, {srdr(SRD_WS)}, s{HST} offen offset:1024 sc1", "hst")
    k.open("hstored")
    k.L = o.get("L", 12) + 4
    k.pump()
    p3_setup(k)
    k.wait("hst")
    k.flag(f"s{FL2}")
    k.stamp("h_flag")
    k.open("hflag")
    k.L = o.get("Lf2", 20)
    k.pump()
    for n in range(nv1, k.NS): v_fetch(k, n)

def p3_main(k, o):
    FN = o.get("fn", 2)
    L3, LH = o.get("L3", 12), min(o.get("L3hi"+k.role, 12), k.HRN-5)
    hiat = o.get("hiat", 2)
    def tagcheck():
        out = []
        for jj in range(4):
            r = PLD+jj*4
            out += [f"v_perm_b32 v{PK}, v{r+1}, v{r}, v{TGV+5}", f"v_perm_b32 v{PK+1}, v{r+3}, v{r+2}, v{TGV+6}",
                    f"v_or_b32 v{PK}, v{PK}, v{PK+1}", f"v_xor_b32 v{PK+2+jj}, s{TAGB}, v{PK}"]
        return out + [f"v_or3_b32 v{PK}, v{PK+2}, v{PK+3}, v{PK+4}", f"v_or_b32 v{PK}, v{PK}, v{PK+5}", f"v_cmp_ne_u32 vcc, 0, v{PK}"]
    k.L = o.get("L3", 12)
    k("s_waitcnt lgkmcnt(0)")
    k.stamp("v_done")
    for p in range(8):
        own = (p % 4 == 3)
        off = 0 if p < 4 else P2R
        for j in range(k.NS):
            n = p*k.NS+j
            need(k, f"h{p}_{j|1 if o.get('w2', 0) else j}")
            if j == 2 and p % 4 != 0:
                for jj in range(4):
                    k.fill([f"ds_write_b128 v{V_RW}, {accname(p-1, jj, False)} offset:{off+((p-1) % 4)*4096+jj*1024}"] + [""]*(FN-1))
            if own and j == o.get('barat'+k.role, 4 if k.NS >= 14 else 3):
                k.fill(["s_waitcnt lgkmcnt(0)", "s_barrier"] + rreads(off) + ["s_waitcnt lgkmcnt(4)"] + adds(RT, RT+16) + ["s_waitcnt lgkmcnt(0)"] + adds(RT, RT+32))
            if p == 7 and j == o.get("tcat", 4):
                assert k.isdone("pld")
                k.fill(tagcheck())
            if p == 7 and j == max(o.get("tcat", 4), o.get('barat'+k.role, 4 if k.NS >= 14 else 3)): k.fill(adds(PLD, RT))
            if p == hiat and j == 0: k.L = LH
            if p == 4 and j == 2:
                k.drain()
                k.fill(adds(RT, OWN) + [f"v_bfi_b32 v{RT+r}, v{TGV+4}, v{TGV+(r % 4)}, v{RT+r}" for r in range(16)])
            for jj in range(4):
                acc = accname(p, jj, own)
                k(f"v_mfma_f32_16x16x32_bf16 {acc}, {vreg(k, j, jj*4, 4)}, {vr(WQ+4*(n % k.HRN),4)}, {'0' if j == 0 else acc}")
                for _ in range(o.get("pad", 0)): k(f"s_mov_b32 s{T2}, 0x12345678")
                if jj == 0: k.pump(o.get("pumpn", 2) if k.L > L3 else 99)
                else: k.drain(o.get("fn7", 3) if p == 7 else FN)
            if p == 4 and j == 7:
                k.drain()
                for jj in range(4):
                    k.vmem(f"buffer_store_dwordx4 {vr(RT+jj*4,4)}, v{V_L16}, {srdr(SRD_WS)}, s{PA} offen offset:{jj*1024} sc1", "pst")
                k.L = LH + 4
                k.stamp("part_st")
            if "pst" in k.vm and k.isdone("pst"): k.L = o.get("L3", 12)
            if j == 0: k.stamp(f"pos{p}")
    k.drain()
    L = k.lab("RETRY"); E = k.lab("RETRYX")
    k(f"s_mov_b32 s{S_CNT}, 0")
    k("s_nop 2")
    k(f"s_cbranch_vccz {E}")
    k.a.label(L)
    for jj in range(4): k(pld_ins(jj))
    k(f"s_add_u32 s{S_CNT}, s{S_CNT}, 1")
    k("s_waitcnt vmcnt(0)")
    for x in tagcheck(): k(x)
    pkadd(k, PLD, RT)
    k(f"s_cmp_gt_u32 s{S_CNT}, 0x40000")
    k(f"s_cbranch_scc1 {E}")
    k(f"s_cbranch_vccnz {L}")
    k.a.label(E)
    k.stamp("p3_mfma")
    k("s_nop 1")
    pkadd(k, OWN, PLD)
    for q in range(8):
        k(f"v_cvt_pk_bf16_f32 v{PK+q}, v{OWN+2*q}, v{OWN+2*q+1}")
    k("s_nop 1")
    for pr in range(2):
        k(f"v_permlane16_swap_b32 v{PK+4*pr}, v{PK+4*pr+2}")
        k(f"v_permlane16_swap_b32 v{PK+4*pr+1}, v{PK+4*pr+3}")
    yfl = o.get("yfl", "")
    for pr in range(2):
        k(f"buffer_store_dwordx4 v[{PK+4*pr}:{PK+4*pr+3}], v5, {srdr(SRD_OUT)}, s{YB} offen offset:{64*pr} {yfl}")
    assert k.sp == len(k.stream)

def cw_setup(a):
    a("s_getpc_b64 s[72:73]")
    a.label("PCREF")
    a(f"s_sub_u32 s72, s72, PCREF-{KNAME}")
    a("s_subb_u32 s73, s73, 0")
    a("v_lshlrev_b32 v240, 7, v0")
    a("v_add_u32 v242, 0x8000, v240")
    a(f"v_min_u32 v242, DONE-{KNAME}, v242")
    a(f"v_min_u32 v240, DONE-{KNAME}, v240")
    a("v_mov_b32 v241, s73")
    a("v_mov_b32 v243, s73")
    a("v_add_co_u32 v240, vcc, s72, v240")
    a("v_addc_co_u32 v241, vcc, 0, v241, vcc")
    a("v_add_co_u32 v242, vcc, s72, v242")
    a("v_addc_co_u32 v243, vcc, 0, v243, vcc")
def cw_go(a):
    a("global_load_dword v244, v[240:241], off")
    a("global_load_dword v245, v[242:243], off")

def line_loop(k, srd_, rowbytes, s_off, count, label, lpr=8, n=8):
    sh = {8: 3, 16: 4}[lpr]
    k(f"v_lshrrev_b32 v5, {sh}, v1")
    k(f"v_mul_u32_u24 v5, {rowbytes}, v5")
    k(f"v_and_b32 v6, {lpr-1}, v1")
    k("v_lshl_add_u32 v5, v6, 4, v5")
    k(f"s_mov_b32 s{S_CNT}, {count}")
    k.a.label(label)
    for t in range(n):
        k(f"buffer_load_dwordx4 {vr(16+t*4,4)}, v5, {srdr(srd_)}, s{s_off} offen")
        k(f"s_add_u32 s{s_off}, s{s_off}, {(64//lpr)*rowbytes}")
    k(f"s_add_u32 s{s_off}, s{s_off}, s{T3}")
    k(f"s_sub_u32 s{S_CNT}, s{S_CNT}, 1")
    k(f"s_cmp_lg_u32 s{S_CNT}, 0")
    k(f"s_cbranch_scc1 {label}")

def help_q(k, rows):
    k(f"s_mul_i32 s{T0}, s{S_XCD}, 7")
    k(f"s_sub_u32 s{T1}, 1, s{T0}")
    k(f"s_and_b32 s{T1}, s{T1}, 3")
    k(f"s_lshl_b32 s{T2}, s{S_HALF}, 2")
    k(f"s_add_u32 s{T2}, s{T2}, s{T1}")
    k(f"s_cmp_lt_u32 s{T2}, 7")
    k(f"s_cselect_b32 s{T1}, s{T2}, s{T1}")
    k(f"s_add_u32 s{T0}, s{T0}, s{T1}")
    k(f"s_lshl_b32 s{T0}, s{T0}, 8")
    k(f"s_add_u32 s{T0}, s{T0}, {(128-rows)*14336}")
    k(f"s_mul_i32 s{T1}, s{S_WAVE}, {256*14336}")
    k(f"s_add_u32 s{T0}, s{T0}, s{T1}")
    k(f"s_mov_b32 s{T3}, {(128-rows)*14336}")
    m = k.o.get("hqm", 0)
    if m == 0:
        line_loop(k, SRD_QW, 14336, T0, 2, "HQ", 16, rows//4)
        return
    k("v_lshrrev_b32 v5, 4, v1")
    k("v_mul_u32_u24 v5, 14336, v5")
    k("v_lshl_add_u32 v5, v3, 4, v5")
    for t in range(rows//4):
        for g in range(2):
            ch = t if m == 1 else rows//4-1-t
            k(f"s_add_u32 s{T1}, s{T0}, {(128*g + 4*ch)*14336}")
            k(f"buffer_load_dwordx4 {vr(16+(2*t+g)*4,4)}, v5, {srdr(SRD_QW)}, s{T1} offen")

def help_v(k, blk0, nblk, label, blk0o, nblko, blk2, nblk2):
    k(f"s_lshr_b32 s{T0}, s{S_XCD}, 1")
    k(f"s_mul_i32 s{T0}, s{T0}, 14")
    k(f"s_sub_u32 s{T1}, 3, s{T0}")
    k(f"s_and_b32 s{T1}, s{T1}, 7")
    k(f"s_lshl_b32 s{T2}, s{S_HALF}, 3")
    k(f"s_add_u32 s{T2}, s{T2}, s{T1}")
    k(f"s_cmp_lt_u32 s{T2}, 14")
    k(f"s_cselect_b32 s{T1}, s{T2}, s{T1}")
    k(f"s_add_u32 s{T0}, s{T0}, s{T1}")
    k(f"s_lshl_b32 s{T0}, s{T0}, 7")
    NA = k.o.get("NA", 16)
    k(f"s_xor_b32 s{L0}, s{T0}, 128")
    k(f"s_mul_i32 s{T1}, s{S_WAVE}, {28-NA}")
    k(f"s_mul_i32 s{T2}, s{S_WAVE}, {NA}")
    k(f"s_add_u32 s{T2}, s{T2}, {112-4*NA}")
    k(f"s_bitcmp1_b32 s{S_XCD}, 0")
    k(f"s_cselect_b32 s{T1}, s{T2}, s{T1}")
    k(f"s_mul_i32 s{T1}, s{T1}, {32*7168}")
    k(f"s_add_u32 s{T0}, s{T0}, s{T1}")
    k(f"s_bitcmp1_b32 s{S_XCD}, 0")
    k(f"s_cselect_b32 s{T1}, {blk0o}, {blk0}")
    k(f"s_cselect_b32 s{T2}, {nblko}, {nblk}")
    k(f"s_cselect_b32 s{T3}, {hex((-2*64*7168 if k.o.get('hback', 1) else 0) & 0xffffffff)}, 0")
    k(f"s_mul_i32 s{T1}, s{T1}, {64*7168}")
    k(f"s_add_u32 s{T0}, s{T0}, s{T1}")
    line_loop(k, SRD_V, 7168, T0, f"s{T2}", label)
    if k.o.get("cw", 0) & 4 and label == "HV15": cw_go(k)
    if k.o.get('deleg', 1) and nblk2:
        k(f"s_bitcmp1_b32 s{S_XCD}, 0")
        k(f"s_cbranch_scc0 {label}X")
        k(f"s_mul_i32 s{T1}, s{S_WAVE}, {(28-NA)*32*7168}")
        k(f"s_add_u32 s{L0}, s{L0}, s{T1}")
        k(f"s_add_u32 s{L0}, s{L0}, {(4*NA*32 + blk2*64)*7168}")
        k(f"s_mov_b32 s{T3}, 0")
        line_loop(k, SRD_V, 7168, L0, nblk2, label+"B")
        k.a.label(label+"X")

def mid_main(k, nv1, vat):
    def vpart():
        for n in range(nv1):
            if n == nv1//2: k.L = k.o.get("L", 12)
            v_fetch(k, n)
        if nv1:
            k("s_waitcnt lgkmcnt(0)")
            k.open(f"vfree{nv1-1}")
    for pr in range(32):
        if pr == vat//2: vpart()
        if pr == 16 and k.role == "B": k.L = k.o.get("L", 12)
        dequant_pair(k, pr)
        if pr == 15: k.stamp("q_half")
    if vat == 64: vpart()

def role_a(a, o):
    k = K(a, o); k.role = "A"; k.NS = o.get("NA", 16); k.HRN = 32 - 4*max(0, k.NS-14); NS = k.NS
    a.label("ROLE_A")
    k(f"s_lshr_b32 s{T0}, s{S_I2}, 1")
    k(f"s_and_b32 s{T1}, s{T0}, 1")
    k(f"s_lshl_b32 s{S_N64}, s{S_XCD}, 1")
    k(f"s_add_u32 s{S_N64}, s{S_N64}, s{T1}")
    k(f"s_lshr_b32 s{T0}, s{T0}, 1")
    k(f"s_lshl_b32 s{S_M32}, s{S_HALF}, 2")
    k(f"s_add_u32 s{S_M32}, s{S_M32}, s{T0}")
    k(f"s_lshl_b32 s{T1}, s{T1}, 1")
    k(f"s_add_u32 s{RHO}, s{S_M32}, s{T1}")
    k(f"s_lshl_b32 s{T0}, s{S_N64}, 7")
    k(f"s_lshl_b32 s{T1}, s{S_WAVE}, 19")
    k(f"s_add_u32 s{T0}, s{T0}, s{T1}")
    dma_voff(k, V_U0, V_U1, 2048, T0)
    k(f"v_lshrrev_b32 v{V_X0}, 3, v1")
    k(f"v_lshlrev_b32 v{V_X0}, 11, v{V_X0}")
    k(f"v_xor_b32 v{V_T2}, v{V_T2}, v2")
    k(f"v_lshl_add_u32 v{V_X0}, v{V_T2}, 4, v{V_X0}")
    k(f"s_lshl_b32 s{T0}, s{S_M32}, 16")
    k(f"s_lshl_b32 s{T1}, s{S_WAVE}, 9")
    k(f"s_add_u32 s{T0}, s{T0}, s{T1}")
    k(f"v_add_u32 v{V_X0}, s{T0}, v{V_X0}")
    k(f"v_xor_b32 v{V_X1}, 64, v{V_X0}")
    k("s_waitcnt lgkmcnt(0)")
    srd(a, SRD_U, 16, U_BYTES)
    srd(a, SRD_X, 8, X_BYTES)
    k(f"s_lshl_b32 s{XST_}, s{S_HALF}, 16")
    def p1_item(jp, i):
        def f(tag):
            if i in (0, 4, 8):
                k(f"s_add_u32 s{L1}, s{RHO}, {jp}")
                k(f"s_and_b32 s{L1}, s{L1}, 3")
            if i == 0: k(f"s_lshl_b32 s{L0}, s{L1}, 7")
            if i in (4, 8):
                k(f"s_lshl_b32 s{L0}, s{L1}, 17")
                if i == 8: k(f"s_add_u32 s{L0}, s{L0}, 0x10000")
                k(f"s_xor_b32 s{L0}, s{L0}, s{XST_}")
            k(f"s_add_u32 m0, s{S_AREA}, {P1R + (jp % 2)*4096 + i*1024 if i < 4 else jp*8192 + (i-4)*1024}")
            if i not in (0, 4, 8): k(f"s_add_u32 s{L0}, s{L0}, 0x4000")
            else: k("s_nop 0")
            if i < 4: k.vmem(f"buffer_load_dwordx4 v{V_X0+(i&1)}, {srdr(SRD_X)}, s{L0} offen lds", tag)
            else: k.vmem(f"buffer_load_dwordx4 v{V_U0+(i&1)}, {srdr(SRD_U)}, s{L0} offen lds", tag)
        k.add(f"p1x{jp//2}" if i < 4 else f"p1u{jp}_{0 if i < 8 else 1}", f, "p1free" if (jp == 2 and i == 0) else None)
    X = lambda jp: [(jp, i) for i in range(4)]
    U = lambda jp, u: [(jp, i) for i in range(4+4*u, 8+4*u)]
    for jp, i in X(0) + X(1) + U(0, 0): p1_item(jp, i)
    for jp, i in U(0, 1) + X(2) + X(3) + U(1, 0) + U(1, 1) + U(2, 0) + U(2, 1) + U(3, 0) + U(3, 1): p1_item(jp, i)
    k.nv1 = 0
    npf = o.get("npfA", 14-NS//2)
    pfat = NS - o.get("pfbackA", 0)
    pford = list(range(npf)) if o.get("pffwd", 0) else list(range(13-NS//2, 13-NS//2-npf, -1))
    def pfs():
        for st in pford:
            for q in range(4): vpf_item(k, st, q)
    for n in range(NS):
        if n == pfat: pfs()
        for q in range(4): v_item(k, n, q, "setup")
    if pfat == NS: pfs()
    k.add("poll2a", k.poll_item(f"v{V_P2}", f"s{PF1}"))
    h_stream(k, o)
    k.pump()
    epoch_load(k)
    srd(a, SRD_V, 18, V_BYTES); srd(a, SRD_OUT, 20, OUT_BYTES); srd(a, SRD_WS, 24, WS_BYTES)
    tr_addrs(k)
    k(f"v_lshrrev_b32 v{V_XR0}, 1, v3")
    k(f"v_xor_b32 v{V_XR0}, v{V_XR0}, v2")
    k(f"v_lshlrev_b32 v{V_XR0}, 4, v{V_XR0}")
    k(f"v_lshl_add_u32 v{V_XR0}, v3, 7, v{V_XR0}")
    k(f"v_add_u32 v{V_XR0}, s{S_AREA}, v{V_XR0}")
    k(f"s_lshl_b32 s{T0}, s{S_HALF}, 6")
    k(f"v_xor_b32 v{V_XR0}, s{T0}, v{V_XR0}")
    k(f"v_xor_b32 v{V_XR1}, 64, v{V_XR0}")
    k(f"v_add_u32 v{V_RW}, s{S_AREA}, v{V_L16}")
    k(f"s_lshl_b32 s{T0}, s{S_WAVE}, 11")
    k(f"s_add_u32 s{T0}, s{T0}, {P1R}")
    k(f"v_add_u32 v{V_RR}, s{T0}, v{V_L16}")
    k(f"v_add_u32 v{V_RR+1}, {hex(2*AREA_SZ)}, v{V_RR}")
    k(f"s_and_b32 s{T1}, s{S_WAVE}, 1")
    k(f"s_lshl_b32 s{T0}, s{S_M32}, 1")
    k(f"s_add_u32 s{T0}, s{T0}, s{T1}")
    k(f"s_lshr_b32 s{T1}, s{S_WAVE}, 1")
    k(f"s_lshl_b32 s{T2}, s{S_N64}, 1")
    k(f"s_add_u32 s{T2}, s{T2}, s{T1}")
    k(f"s_lshl_b32 s{XSO}, s{T0}, 5")
    k(f"s_add_u32 s{XSO}, s{XSO}, s{T2}")
    k(f"s_lshl_b32 s{XSO}, s{XSO}, 10")
    k(f"s_lshl_b32 s{T1}, s{S_HALF}, 4")
    k(f"s_add_u32 s{T1}, s{T1}, s{S_N64}")
    k(f"s_lshl_b32 s{T1}, s{T1}, 2")
    k(f"s_and_b32 s{T0}, s{S_M32}, 3")
    k(f"s_add_u32 s{T1}, s{T1}, s{T0}")
    k(f"s_lshl_b32 s{T1}, s{T1}, 7")
    k(f"s_add_u32 s{FL1}, s{T1}, {hex(F1_OFF)}")
    v_setup(k)
    k.stamp("issue0")
    k.L = o.get("Lp1", 18)
    k.pump()
    A1 = 224
    def acc1(jj, mi): return ar(A1 + (((jj >> 1)*2 + mi)*2 + (jj & 1))*4, 4)
    def xreads(jp0):
        for jp in (jp0, jp0+1):
            for u in range(2):
                for mi in range(2):
                    k(f"ds_read_b128 {ar(((2*jp+u)*2+mi)*4,4)}, v{V_XR0+u} offset:{P1R+(jp % 2)*4096+mi*2048}")
    def ureads(j):
        for jj in range(4):
            for h in range(2):
                k(f"ds_read_b64_tr_b16 {ar(64+(j % 2)*16+jj*4+2*h,2)}, v{V_TR+jj} offset:{j*4096+h*512}")
    k.wait("p1x0")
    xreads(0)
    tag_calc(k)
    k.open("p1free")
    k.pump()
    k.wait("p1u0_0")
    k.stamp("p1s0")
    ureads(0)
    for j in range(8):
        if j == 2: xreads(2)
        if j < 7:
            k.wait(f"p1u{(j+1)//2}_{(j+1) % 2}")
            if j == 6:
                k.stamp("p1_loaded"); k.L = o.get("L", 12)
            k.stamp(f"p1s{j+1}")
            k("s_waitcnt lgkmcnt(0)")
            ureads(j+1)
        else:
            k("s_waitcnt lgkmcnt(0)")
        for jj in range(4):
            for mi in range(2):
                k(f"v_mfma_f32_16x16x32_bf16 {acc1(jj, mi)}, {ar(64+(j % 2)*16+jj*4,4)}, {ar((j*2+mi)*4,4)}, {'0' if j == 0 else acc1(jj, mi)}")
            k.pump(2)
    k(f"s_mov_b32 s{T0}, 0x58000000")
    k(f"v_mov_b32 v{V_X1}, s{T0}")
    k("s_nop 3")
    for q in (0, 2, 1, 3, 4, 6, 5, 7):
        k(f"ds_write_b128 v{V_RW}, {ar(A1+q*4,4)} offset:{P1R+q*1024}")
    k("s_waitcnt lgkmcnt(0)")
    k("s_barrier")
    k.stamp("p1_bar")
    R = 16
    for w in range(4):
        for c in range(2):
            k(f"ds_read_b128 {vr(R+(w*2+c)*4,4)}, v{V_RR+w//2} offset:{(w % 2)*AREA_SZ+c*1024}")
    k("s_waitcnt lgkmcnt(4)")
    pkadd(k, R, R+8, 4)
    k("s_waitcnt lgkmcnt(0)")
    pkadd(k, R+16, R+24, 4)
    pkadd(k, R, R+16, 4)
    for q in range(4):
        d = R+2*q
        k(f"v_pk_mul_f32 v[{d}:{d+1}], v[{d}:{d+1}], v[{V_X1}:{V_X1+1}] op_sel_hi:[1,0]")
    for q in range(4):
        k(f"v_cvt_pk_bf16_f32 v{R+32+q}, v{R+2*q}, v{R+2*q+1}")
    k.vmem(f"buffer_store_dwordx4 v[{R+32}:{R+35}], v{V_L16}, {srdr(SRD_WS)}, s{XSO} offen sc1", "xrst")
    k.stamp("p1_done")
    k(f"s_cmp_lt_u32 s{S_I2}, 14")
    k("s_cbranch_scc1 WORKER_A")
    k("s_waitcnt vmcnt(0)")
    sv = list(k.vm)
    k.flag(f"s{FL1}")
    if o.get("n14", 4): help_v(k, o.get("b14", 3), o.get("n14", 3), "HV14", o.get("b14o", 7), o.get("n14o", 2), o.get("b14d", 3), o.get("n14d", 3))
    k("s_waitcnt vmcnt(0)")
    k("s_branch FINISH")
    k.vm = sv
    a.label("WORKER_A")
    k.open("setup")
    k.L = o.get("LA", 12)
    k.pump(o.get("nxA", 0))
    red_addrs(k, 0)
    p3_setup(k)
    k.wait("xrst")
    k.flag(f"s{FL1}"); k.open("f1"); k.open("f1done")
    k.stamp("h_flag")
    k.pump()
    def pfw():
        for st in pford:
            need(k, f"pf{st}"); k.pump()
    for n in range(NS):
        if n == pfat: pfw()
        v_fetch(k, n)
        if n == 6: k.stamp("q_half")
    k.stamp("v1_done")
    if pfat == NS: pfw()
    p3_main(k, o)
    k(f"s_or_b32 s{T0}, s{S_XCD}, s{S_I2}")
    k(f"s_or_b32 s{T0}, s{T0}, s{S_WAVE}")
    k(f"s_cmp_lg_u32 s{T0}, 0")
    k("s_cbranch_scc1 FINISH")
    k(f"s_add_u32 s{T0}, s{S_EP}, 1")
    k(f"v_mov_b32 v{V_T}, s{T0}")
    k(f"s_lshl_b32 s{T0}, s{S_HALF}, 7")
    k(f"s_add_u32 s{T0}, s{T0}, {hex(EP_OFF)}")
    k("s_mov_b64 exec, 1")
    k(f"buffer_store_dword v{V_T}, v0, {srdr(SRD_WS)}, s{T0} offen sc1")
    k("s_mov_b64 exec, -1")
    k("s_branch FINISH")

def spare_b(k, a, o):
    k("s_waitcnt lgkmcnt(0)")
    srd(a, SRD_V, 18, V_BYTES)
    srd(a, SRD_QW, 10, QW_BYTES)
    if o.get("tw", 0):
        srd(a, SRD_OUT, 20, OUT_BYTES); srd(a, SRD_WS, 24, WS_BYTES)
        for i, off in enumerate((0xC0000, 0x2E0000, 0x3F0000, 0x400000, 0x7C0000)):
            k(f"s_mov_b32 s{T0}, {hex(off)}")
            k(f"buffer_load_dword v{246+i}, v0, {srdr(SRD_WS)}, s{T0} offen")
        k("v_lshlrev_b32 v5, 16, v1")
        k(f"buffer_load_dword v251, v5, {srdr(SRD_OUT)}, 0 offen")
    if o.get("hq", 52): help_q(k, o.get("hq", 52))
    if o.get("cw", 0) & 2: cw_go(k)
    if o.get("n15", 3): help_v(k, o.get("b15", 0), o.get("n15", 3), "HV15", o.get("b15o", 3), o.get("n15o", 4), o.get("b15d", 0), o.get("n15d", 3))
    k("s_waitcnt vmcnt(0)")
    k("s_branch FINISH")

def role_b(a, o):
    k = K(a, o); k.role = "B"; k.NS = 28 - o.get("NA", 16); k.HRN = 32
    k.L = o.get("LB0", 12)
    a.label("ROLE_B")
    k(f"s_cmp_lt_u32 s{S_I2}, 14")
    if o.get("sb", 0): k("s_cbranch_scc0 SPARE_B")
    else:
        k("s_cbranch_scc1 WORKER_B")
        spare_b(k, a, o)
    a.label("WORKER_B")
    role_ids(k)
    q_setup(k, False)
    k("s_waitcnt lgkmcnt(0)")
    srd(a, SRD_QW, 10, QW_BYTES); srd(a, SRD_SC, 12, SC_BYTES); srd(a, SRD_Z, 14, SC_BYTES)
    nv1, vat = o.get("nv1B", 0), o.get("vatB", 32)
    k.nv1 = nv1
    sz_items(k)
    q_stream(k, 0, vat, o, "B")
    for n in range(nv1):
        for q in range(4): v_item(k, n, q, "setup")
    q_stream(k, vat, 64, o, "B")
    tail_stream(k, nv1, o, "B")
    k.pump()
    epoch_load(k)
    srd(a, SRD_V, 18, V_BYTES); srd(a, SRD_OUT, 20, OUT_BYTES); srd(a, SRD_WS, 24, WS_BYTES)
    k("s_setreg_imm32_b32 hwreg(HW_REG_MODE, 4, 2), 3")
    tr_addrs(k)
    v_setup(k)
    p2_setup(k)
    red_addrs(k, 0)
    k.open("setup")
    k.L = o.get("LB1", 16)
    k.pump()
    k.wait("sz")
    tag_calc(k)
    mid_main(k, nv1, vat)
    p2_main(k, nv1, o)
    p3_main(k, o)
    if o.get("sb", 0):
        k("s_branch FINISH" if o.get("stamp") else "s_endpgm")
        a.label("SPARE_B")
        spare_b(k, a, o)

def build(opt):
    global PKA
    PKA = opt.get("pk", 0)
    a = Asm(); K.uid = 0
    a.raw(HEADER.rstrip())
    a.raw(f"; @launch grid=(256,1,1) block=(256,1,1) lds={LDS_BYTES}")
    a.raw('.amdgcn_target "amdgcn-amd-amdhsa--gfx950"')
    kernel_begin(a, KNAME)
    a("s_cmp_ge_u32 s2, 256")
    a("s_cbranch_scc1 DONE")
    if opt.get("stamp"): a(f"{TIMER(opt)} s[92:93]")
    a("s_load_dwordx16 s[8:23], s[0:1], 0")
    a("s_load_dwordx2 s[24:25], s[0:1], 64")
    cw = opt.get("cw", 0)
    if cw:
        lo, hi = opt.get("cwlo", 0), opt.get("cwhi", 240)
        a(f"s_sub_u32 s3, s2, {lo}")
        a(f"s_cmp_lt_u32 s3, {hi-lo}")
        a("s_cbranch_scc1 NOCW")
        cw_setup(a); cw_go(a)
        a.label("NOCW")
    a("v_lshrrev_b32 v4, 6, v0")
    a("v_and_b32 v1, 63, v0")
    a(f"v_readfirstlane_b32 s{S_WAVE}, v4")
    a("v_lshrrev_b32 v2, 4, v1")
    a("v_and_b32 v3, 15, v1")
    a(f"v_lshlrev_b32 v{V_L16}, 4, v1")
    a("v_mov_b32 v0, 0")
    a(f"s_and_b32 s{S_XCD}, s2, 7")
    a(f"s_lshr_b32 s{T0}, s2, 3")
    a(f"s_and_b32 s{S_HALF}, s{T0}, 1")
    a(f"s_lshr_b32 s{S_I2}, s{T0}, 1")
    a(f"s_mul_i32 s{S_AREA}, s{S_WAVE}, {AREA_SZ}")
    a(f"s_bitcmp1_b32 s{S_I2}, 0")
    if opt.get("bfirst", 0):
        a("s_cbranch_scc0 ROLE_A")
        role_b(a, opt)
        role_a(a, opt)
    else:
        a("s_cbranch_scc1 ROLE_B")
        role_a(a, opt)
        role_b(a, opt)
    a.label("FINISH")
    if opt.get("stamp"):
        a("s_waitcnt vmcnt(0)")
        a(f"{TIMER(opt)} s[72:73]")
        a("s_load_dwordx2 s[70:71], s[0:1], 64")
        a("s_waitcnt lgkmcnt(0)")
        srd(a, 76, 70, 1 << 20, STAMP_OFF)
        a("s_lshl_b32 s70, s2, 2")
        a(f"s_add_u32 s70, s70, s{S_WAVE}")
        a("s_lshl_b32 s70, s70, 7")
        regs = [92] + STAMP_REGS[:len(STAMP_NAMES)] + [72]
        a("s_mov_b64 exec, 1")
        for i, r in enumerate(regs):
            a(f"v_mov_b32 v16, s{r}")
            a(f"v_mov_b32 v17, s{r+1}")
            a(f"buffer_store_dwordx2 v[16:17], v0, s[76:79], s70 offen offset:{i*8}")
            a("s_nop 1")
    a.label("DONE")
    a("s_endpgm")
    kernel_desc(a, KNAME, 512, 102, 256)
    return a.text(), ["start"] + stamp_names(opt) + ["end"]

if __name__ == "__main__":
    opt = eval(sys.argv[2]) if len(sys.argv) > 2 else {}
    txt, names = build(opt)
    open(sys.argv[1], "w").write(txt)
    print(len(txt))
```

```python
import sys
from asmlib import *

KNAME = "standalone__weight_only_int_quip__sampling_kernel"
XR_OFF   = 0
H_OFF    = 1 << 20
F1_OFF   = 3 << 20
F2_OFF   = F1_OFF + 16384
EP_OFF   = F1_OFF + 32768
F2A_D    = 32768
PFB = 78
PART_OFF = (4 << 20) + 65536
WS_BYTES = 8 << 20
STAMP_OFF = 128 << 20
OOB = 0x7f000000
AREA_SZ = 40960
P2R = 20480
P1R = 32768
LDS_BYTES = 163840
RING = 5

S_WAVE, S_EP = 4, 5
SRD_X, SRD_QW, SRD_SC, SRD_Z, SRD_U, SRD_V, SRD_OUT, SRD_WS = 28, 32, 36, 40, 44, 48, 52, 56
S_XCD, S_HALF, S_I2, S_M32, S_N64, S_M64, S_T2, S_KS, S_T, S_TAG = 60, 61, 62, 63, 64, 65, 66, 67, 68, 69
T0, T1, T2, T3 = 70, 71, 72, 73
S_AREA, S_CNT = 74, 75
L0, L1 = 76, 77
QB, GI = 78, 82
FL1, XST_, XRB, RHO = 86, 87, 88, 89
VB = 90
HB = 36
MOTH, MOWN, L2, TAGB, WT = 40, 41, 42, 43, 3
PF1, PF2, FL2, HST = 6, 7, 26, 27
PA, PB, YB, XSO = 94, 95, 96, 97
XO = 98

V_L16, V_X0, V_X1, V_T2, V_Q, V_T, V_VD0, V_VD1, V_TR = 4, 5, 6, 7, 8, 9, 10, 11, 12
WQ, STG, SZ, RAW, OWN = 16, 144, 240, 252, 240
QR = 20
V_U0, V_U1, V_XR0, V_XR1 = 224, 225, 226, 227
TGV = 224
XRN = 16
V_RW, V_RR = 232, 233
V_P1, V_P2, V_PR = 236, 237, 238
RT, PK, PLD = 144, 192, 208
STAMP_REGS = list(range(8, 26, 2)) + [28, 30, 44]
STAMP_NAMES = ["p1_loaded", "p1_done", "q_half", "v1_done", "h1_seen", "q_all", "p2_mfma", "h_flag", "h2_seen", "v_done", "part_st", "p3_mfma"]

def stamp_names(o):
    f = o.get("fine")
    if f == "p3": return ["h_flag", "h2_seen", "v_done"] + [f"pos{p}" for p in range(8)] + ["p3_mfma"]
    if f == "v": return ["p2_mfma", "h_flag"] + [f"vf{n}" for n in (0, 2, 4, 6, 7, 8, 10, 12)] + ["h2_seen", "v_done"]
    if f == "p1": return ["issue0"] + [f"p1s{j}" for j in range(8)] + ["p1_bar", "p1_done", "q_half"]
    if f == "p2": return ["h1_seen", "q_all"] + [f"p2_{p}{h}" for p in range(4) for h in "ab"] + ["p2_mfma", "h_flag"]
    if f == "q": return ["p1_done"] + [f"qp{n}" for n in (0, 3, 7, 11, 15, 19, 23, 27)] + ["v1_done", "h1_seen", "q_all"]
    return STAMP_NAMES
def TIMER(o): return "s_memtime" if o.get("cyc") else "s_memrealtime"
def srdr(b): return f"s[{b}:{b+3}]"
def vreg(k, j, off, n):
    if j < 10: return ar(64 + 16*j + off, n)
    if j < 14: return ar(16*(j-10) + off, n)
    return vr(WQ + 4*k.HRN + 16*(j-14) + off, n)
def step_base(k, d, ns):
    k(f"s_mul_i32 s{d}, s{S_KS}, {112-4*ns}")
    k(f"s_mul_i32 s{T1}, s{S_WAVE}, {ns}")
    k(f"s_add_u32 s{d}, s{d}, s{T1}")

class K:
    uid = 0
    def __init__(self, a, opt):
        self.a = a; self.o = opt
        self.vm = []; self.done = 0
        self.stream = []; self.sp = 0; self.gates = set()
        self.L = opt.get("L", 12)
    def __call__(self, s): self.a(s)
    def vmem(self, s, tag):
        self.a(s); self.vm.append(tag)
    def isdone(self, tag):
        return tag in self.vm and tag not in [t for t, _, _ in self.stream[self.sp:]] and self.done > max(i for i, t in enumerate(self.vm) if t == tag)
    def wait(self, tag):
        while tag in [t for t, _, _ in self.stream[self.sp:]]:
            assert self.issue_one(force=True), f"gate closed while waiting for {tag}: {self.stream[self.sp]}"
        idx = max(i for i, t in enumerate(self.vm) if t == tag)
        if idx < self.done: return
        n = len(self.vm) - 1 - idx
        self.a(f"s_waitcnt vmcnt({min(n, 63)})")
        self.done = idx + 1
    def add(self, tag, fn, *gates): self.stream.append((tag, fn, [g for g in gates if g]))
    def issue_one(self, force=False):
        if self.sp >= len(self.stream): return False
        tag, fn, gates = self.stream[self.sp]
        if any(g not in self.gates for g in gates): return False
        if not force and len(self.vm) - self.done >= self.L: return False
        self.sp += 1
        fn(tag)
        return True
    def pump(self, n=99):
        while n > 0 and self.issue_one(): n -= 1
    def open(self, g): self.gates.add(g)
    def fill(self, items): self.fq = getattr(self, "fq", []) + list(items)
    def drain(self, n=999):
        q = getattr(self, "fq", [])
        while q and n > 0:
            self.a(q.pop(0)); n -= 1
    def stamp(self, name):
        if not self.o.get("stamp"): return
        names = stamp_names(self.o)
        if name not in names: return
        r = STAMP_REGS[names.index(name)]
        self.a(f"{TIMER(self.o)} s[{r}:{r+1}]")
        self.a("s_waitcnt lgkmcnt(0)")
    def lab(self, p):
        K.uid += 1
        return f"{p}_{K.uid}"
    def poll_item(self, voff, soff):
        return lambda tag: self.vmem(f"buffer_load_dword v{V_PR}, {voff}, {srdr(SRD_WS)}, {soff} offen sc1", tag)
    def poll_check(self, tag, voff, soff):
        self.wait(tag)
        L = self.lab("POLL"); E = self.lab("POLLX")
        self(f"v_cmp_ne_u32 vcc, s{S_TAG}, v{V_PR}")
        self(f"s_mov_b32 s{S_CNT}, 0")
        self(f"s_cbranch_vccz {E}")
        self.a.label(L)
        self(f"s_sleep {self.o.get('nap', 8)}")
        self(f"buffer_load_dword v{V_PR}, {voff}, {srdr(SRD_WS)}, {soff} offen sc1")
        self(f"s_add_u32 s{S_CNT}, s{S_CNT}, 1")
        self("s_waitcnt vmcnt(0)")
        self(f"v_cmp_ne_u32 vcc, s{S_TAG}, v{V_PR}")
        self(f"s_cmp_gt_u32 s{S_CNT}, 0x40000")
        self(f"s_cbranch_scc1 {E}")
        self(f"s_cbranch_vccnz {L}")
        self.a.label(E)
    def flag(self, soff, who=0):
        self(f"s_cmp_eq_u32 s{S_WAVE}, {who}")
        self(f"s_cselect_b32 s{T0}, 0, {hex(OOB)}")
        self(f"v_mov_b32 v{V_T2}, s{S_TAG}")
        self(f"v_mov_b32 v{V_PR+1}, s{T0}")
        self("s_barrier")
        self("s_mov_b64 exec, 1")
        self.vmem(f"buffer_store_dword v{V_T2}, v{V_PR+1}, {srdr(SRD_WS)}, {soff} offen sc1", "flag")
        self("s_mov_b64 exec, -1")

def dma_voff(k, d0, d1, rowbytes, s_add):
    k(f"v_lshrrev_b32 v{d0}, 3, v1")
    k(f"v_and_b32 v{d1}, 2, v{d0}")
    k(f"v_mul_u32_u24 v{d0}, {rowbytes}, v{d0}")
    k(f"v_and_b32 v{V_T2}, 7, v1")
    k(f"v_xor_b32 v{d1}, v{d1}, v{V_T2}")
    k(f"v_lshl_add_u32 v{d0}, v{d1}, 4, v{d0}")
    k(f"v_add_u32 v{d0}, s{s_add}, v{d0}")
    k(f"v_xor_b32 v{d1}, 64, v{d0}")

def tr_addrs(k):
    k("v_lshrrev_b32 v12, 2, v3")
    k("v_lshrrev_b32 v13, 1, v12")
    k("v_and_b32 v14, 1, v2")
    k("v_lshl_add_u32 v13, v14, 1, v13")
    k("v_lshl_add_u32 v12, v2, 3, v12")
    k("v_lshlrev_b32 v12, 7, v12")
    k("v_lshl_add_u32 v12, v13, 5, v12")
    k("v_and_b32 v13, 3, v1")
    k("v_lshl_add_u32 v12, v13, 3, v12")
    k(f"v_add_u32 v12, s{S_AREA}, v12")
    k("v_xor_b32 v13, 32, v12")
    k("v_xor_b32 v14, 64, v12")
    k("v_xor_b32 v15, 96, v12")

def role_ids(k):
    k(f"s_lshl_b32 s{S_M64}, s{S_HALF}, 1")
    k(f"s_lshr_b32 s{T0}, s{S_I2}, 1")
    k(f"s_mul_i32 s{S_T2}, s{S_XCD}, 7")
    k(f"s_add_u32 s{S_T2}, s{S_T2}, s{T0}")

def q_setup(k, oob, order=(0, 1, 2, 3)):
    if oob:
        k(f"s_cmp_lt_u32 s{S_I2}, 14")
        k(f"s_cselect_b32 s{T2}, 0, {hex(OOB)}")
    k(f"v_mul_u32_u24 v{V_Q}, {4*14336}, v2")
    k(f"v_lshl_add_u32 v{V_Q}, v3, 4, v{V_Q}")
    k(f"s_lshl_b32 s{T0}, s{S_T2}, 8")
    if oob: k(f"s_add_u32 s{T0}, s{T0}, s{T2}")
    k(f"v_add_u32 v{V_Q}, s{T0}, v{V_Q}")
    k(f"v_mul_u32_u24 v{V_T}, 7168, v2")
    k(f"v_lshl_add_u32 v{V_T}, v3, 3, v{V_T}")
    k(f"s_mul_i32 s{T0}, s{S_WAVE}, {4*7168}")
    k(f"s_lshl_b32 s{T1}, s{S_T2}, 7")
    k(f"s_add_u32 s{T0}, s{T0}, s{T1}")
    if oob: k(f"s_add_u32 s{T0}, s{T0}, s{T2}")
    k(f"v_add_u32 v{V_T}, s{T0}, v{V_T}")
    k(f"s_lshl_b32 s{T1}, s{S_HALF}, 1")
    for j in range(4):
        k(f"s_xor_b32 s{GI+j}, s{T1}, {order[j]}")
        k(f"s_lshl_b32 s{T0}, s{S_WAVE}, 2")
        k(f"s_add_u32 s{T0}, s{T0}, s{GI+j}")
        k(f"s_mul_i32 s{QB+j}, s{T0}, {64*14336}")

def epoch_load(k):
    k(f"s_lshl_b32 s{T0}, s{S_HALF}, 7")
    k(f"s_add_u32 s{T0}, s{T0}, {hex(EP_OFF)}")
    k(f"s_load_dword s{S_EP}, s[24:25], s{T0}")

def tag_calc(k):
    k("s_waitcnt lgkmcnt(0)")
    k(f"s_mul_i32 s{S_TAG}, s{S_EP}, 0x9e3779b1")
    k(f"s_add_u32 s{S_TAG}, s{S_TAG}, 0x7f4a7c15")
    k(f"s_lshr_b32 s{T0}, s{S_TAG}, 15")
    k(f"s_xor_b32 s{S_TAG}, s{S_TAG}, s{T0}")
    k(f"s_mul_i32 s{S_TAG}, s{S_TAG}, 0x85ebca6b")

def red_addrs(k, add):
    k(f"s_add_u32 s{T0}, s{S_AREA}, {add}")
    k(f"v_add_u32 v{V_RW}, s{T0}, v{V_L16}")
    for p in range(3):
        k(f"s_sub_u32 s{T1}, s{S_WAVE}, {p+1}")
        k(f"s_and_b32 s{T1}, s{T1}, 3")
        k(f"s_mul_i32 s{T1}, s{T1}, {AREA_SZ}")
        k(f"s_add_u32 s{T1}, s{T1}, {add+p*4096}")
        k(f"v_add_u32 v{V_RR+p}, s{T1}, v{V_L16}")

def v_setup(k):
    k(f"s_and_b32 s{S_KS}, s{S_XCD}, 1")
    k(f"s_lshr_b32 s{T0}, s{S_XCD}, 1")
    k(f"s_mul_i32 s{S_T}, s{T0}, 14")
    k(f"s_xor_b32 s{T0}, s{S_I2}, s{S_KS}")
    k(f"s_add_u32 s{S_T}, s{S_T}, s{T0}")
    k(f"s_lshl_b32 s{T0}, s{S_T}, 7")
    dma_voff(k, V_VD0, V_VD1, 7168, T0)
    step_base(k, T0, k.NS)
    k(f"s_mul_i32 s{VB}, s{T0}, {32*7168}")
    k(f"v_min_u32 v{V_P2}, {k.NS//2-1}, v1")
    k(f"v_lshlrev_b32 v{V_P2}, 7, v{V_P2}")
    k(f"s_lshr_b32 s{T0}, s{T0}, 1")
    k(f"s_mul_i32 s{T1}, s{S_HALF}, 56")
    k(f"s_add_u32 s{T1}, s{T0}, s{T1}")
    k(f"s_lshl_b32 s{T1}, s{T1}, 7")
    k(f"s_add_u32 s{PF2}, s{T1}, {hex(F2_OFF)}")
    if k.role == "A":
        k(f"s_add_u32 s{PF1}, s{PF2}, {F2A_D}")
        step_base(k, T0, 28-k.NS)
        k(f"s_mul_i32 s{PFB}, s{T0}, {32*7168}")
        k(f"s_lshl_b32 s{T0}, s{S_KS}, 8")
        k(f"s_add_u32 s{PFB}, s{PFB}, 128")
        k(f"s_sub_u32 s{PFB}, s{PFB}, s{T0}")
        k(f"s_and_b32 s{T0}, s{S_T}, 7")
        k(f"s_cmp_eq_u32 s{T0}, {3 if k.o.get('deleg', 1) else 9}")
        k(f"s_cselect_b32 s{T0}, {hex(OOB)}, 0")
        k(f"v_add_u32 v{V_P1}, s{T0}, v{V_VD0}")

def poll1_setup(k):
    k(f"v_min_u32 v{V_P1}, 15, v1")
    k(f"v_lshlrev_b32 v{V_P1}, 7, v{V_P1}")
    k(f"s_lshl_b32 s{T0}, s{S_HALF}, 13")
    k(f"s_lshl_b32 s{T1}, s{S_WAVE}, 11")
    k(f"s_add_u32 s{T0}, s{T0}, s{T1}")
    k(f"s_add_u32 s{PF1}, s{T0}, {hex(F1_OFF)}")

def xpf_item(k, i):
    def f(tag):
        if i == 0:
            k(f"s_lshr_b32 s{L1}, s{S_I2}, 1")
            k(f"s_lshl_b32 s{L0}, s{S_HALF}, 3")
            k(f"s_add_u32 s{L0}, s{L0}, s{L1}")
            k(f"s_lshl_b32 s{L0}, s{L0}, 2")
            k(f"s_add_u32 s{L0}, s{L0}, s{S_WAVE}")
            k(f"s_lshl_b32 s{L0}, s{L0}, 13")
        if i == 4: k(f"s_add_u32 s{L0}, s{L0}, 4096")
        if i == 8:
            k(f"s_lshl_b32 s{L0}, s{S_HALF}, 5")
            k(f"s_add_u32 s{L0}, s{L0}, s{S_WAVE}")
            k(f"s_add_u32 s{L0}, s{L0}, 28")
            k(f"s_lshl_b32 s{L0}, s{L0}, 3")
            k(f"s_add_u32 s{L0}, s{L0}, s{L1}")
            k(f"s_lshl_b32 s{L0}, s{L0}, 10")
        k.vmem(f"buffer_load_dwordx4 {vr(STG+4*(i % 4),4)}, v{V_L16}, {srdr(SRD_WS)}, s{L0} offen offset:{(i % 4)*1024} sc1", tag)
    k.add("xpf", f, "h1")

def p2_setup(k):
    k(f"s_add_u32 s{XRB}, s{S_WAVE}, s{S_T2}")
    k(f"s_lshl_b32 s{T0}, s{S_M64}, 4")
    k(f"s_add_u32 s{T0}, s{T0}, s{S_WAVE}")
    k(f"s_lshl_b32 s{T0}, s{T0}, 13")
    for j in range(4):
        k(f"s_lshl_b32 s{T1}, s{GI+j}, 11")
        k(f"s_add_u32 s{XO+j}, s{T0}, s{T1}")
    poll1_setup(k)
    k(f"s_and_b32 s{T1}, s{XRB}, 3")
    k(f"s_lshl_b32 s{T2}, s{S_M64}, 2")
    k(f"s_add_u32 s{T2}, s{T2}, s{T1}")
    k(f"s_mul_i32 s{T2}, s{T2}, 112")
    k(f"s_lshl_b32 s{T3}, s{S_T2}, 1")
    k(f"s_add_u32 s{T2}, s{T2}, s{T3}")
    k(f"s_lshl_b32 s{T2}, s{T2}, 10")
    k(f"s_add_u32 s{HST}, s{T2}, {hex(H_OFF)}")
    k(f"s_mul_i32 s{T0}, s{S_HALF}, 56")
    k(f"s_add_u32 s{FL2}, s{T0}, s{S_T2}")
    k(f"s_lshl_b32 s{FL2}, s{FL2}, 7")
    k(f"s_add_u32 s{FL2}, s{FL2}, {hex(F2_OFF)}")
    k(f"s_add_u32 s{FL1}, s{FL2}, {F2A_D}")

def p3_setup(k):
    step_base(k, T0, k.NS)
    k(f"s_lshl_b32 s{T0}, s{T0}, 10")
    k(f"s_add_u32 s{T0}, s{T0}, {hex(H_OFF)}")
    for r, (lo, hi, d) in enumerate(vruns(k)):
        k(f"s_mul_i32 s{T1}, s{S_HALF}, {d*1024}")
        k(f"s_add_u32 s{T1}, s{T1}, {lo*1024}")
        k(f"s_add_u32 s{HB+r}, s{T0}, s{T1}")
    k(f"s_lshl_b32 s{T0}, s{S_HALF}, 1")
    k(f"s_add_u32 s{MOWN}, s{T0}, {1 if k.role == 'A' else 0}")
    k(f"s_xor_b32 s{MOTH}, s{MOWN}, 1")
    k(f"s_lshl_b32 s{MOWN}, s{MOWN}, 2")
    k(f"s_lshl_b32 s{MOTH}, s{MOTH}, 2")
    k(f"s_add_u32 s{WT}, s{S_WAVE}, s{S_T}")
    k(f"s_mul_i32 s{T0}, s{S_HALF}, 56")
    k(f"s_add_u32 s{T0}, s{T0}, s{S_T}")
    k(f"s_lshl_b32 s{T0}, s{T0}, 1")
    k(f"s_add_u32 s{T0}, s{T0}, s{S_KS}")
    k(f"s_lshl_b32 s{T0}, s{T0}, 2")
    k(f"s_add_u32 s{T0}, s{T0}, s{S_WAVE}")
    k(f"s_xor_b32 s{T1}, s{T0}, 4")
    k(f"s_lshl_b32 s{PA}, s{T0}, 12")
    k(f"s_add_u32 s{PA}, s{PA}, {hex(PART_OFF)}")
    k(f"s_lshl_b32 s{PB}, s{T1}, 12")
    k(f"s_add_u32 s{PB}, s{PB}, {hex(PART_OFF)}")
    k(f"s_mul_i32 s{T0}, s{S_EP}, 37")
    k(f"s_add_u32 s{T0}, s{T0}, 11")
    for i in range(4):
        k(f"s_add_u32 s{T1}, s{T0}, {64*i}")
        k(f"s_and_b32 s{T1}, s{T1}, 0xff")
        k(f"v_mov_b32 v{TGV+i}, s{T1}")
        if i == 0: k(f"s_mov_b32 s{TAGB}, s{T1}")
        else:
            k(f"s_lshl_b32 s{T1}, s{T1}, {8*i}")
            k(f"s_or_b32 s{TAGB}, s{TAGB}, s{T1}")
    k(f"v_mov_b32 v{TGV+4}, 0xff")
    k(f"v_mov_b32 v{TGV+5}, 0x0c0c0400")
    k(f"v_mov_b32 v{TGV+6}, 0x04000c0c")
    k(f"s_and_b32 s{T1}, s{WT}, 3")
    k(f"s_add_u32 s{T1}, s{T1}, s{MOWN}")
    k(f"s_mul_i32 s{T1}, s{T1}, {16*7168}")
    k(f"s_lshl_b32 s{T0}, s{S_T}, 7")
    k(f"s_add_u32 s{YB}, s{T1}, s{T0}")
    k("v_mul_u32_u24 v5, 7168, v3")
    k("v_and_b32 v6, 1, v2")
    k("v_lshl_add_u32 v5, v6, 5, v5")
    k("v_lshrrev_b32 v6, 1, v2")
    k("v_lshl_add_u32 v5, v6, 4, v5")

def pkadd(k, d, s, n=8):
    for q in range(n):
        k(f"v_pk_add_f32 v[{d+2*q}:{d+2*q+1}], v[{d+2*q}:{d+2*q+1}], v[{s+2*q}:{s+2*q+1}]")

def sz_items(k, *g):
    k.add("sz", lambda t: k.vmem(f"buffer_load_dwordx2 v[{RAW}:{RAW+1}], v{V_T}, {srdr(SRD_SC)}, 0 offen", t), *g)
    k.add("sz", lambda t: k.vmem(f"buffer_load_dwordx2 v[{RAW+2}:{RAW+3}], v{V_T}, {srdr(SRD_Z)}, 0 offen", t))
def qreg(n): return 80 + 4*n if n < 16 else STG + 4*((n-16) % QR)
def q_item(k, n, fl, *g):
    st, i = n//8, n % 8
    j, u = st//2, st % 2
    ro = 32*u + (i if i < 4 else 12+i)
    def f(tag):
        so = f"s{QB+j}"
        if ro:
            k(f"s_add_u32 s{L0}, s{QB+j}, {hex(ro*14336)}")
            so = f"s{L0}"
        k.vmem(f"buffer_load_dwordx4 {vr(qreg(n),4)}, v{V_Q}, {srdr(SRD_QW)}, {so} offen {fl}", tag)
    k.add(f"q{n//2}", f, f"qfree{n-QR}" if n >= QR+16 else None, *g)
def xr_item(k, p, st):
    j, u = st//2, st % 2
    def f(tag):
        if st == 0:
            k(f"s_add_u32 s{L1}, s{XRB}, {(p % 4)+1}")
            k(f"s_and_b32 s{L1}, s{L1}, 3")
            if p >= 4: k(f"s_add_u32 s{L1}, s{L1}, 4")
            k(f"s_lshl_b32 s{L1}, s{L1}, 15")
        if u == 0:
            k(f"s_add_u32 s{L0}, s{XO+j}, s{L1}")
        k.vmem(f"buffer_load_dwordx4 {ar(((p*8+st) % XRN)*4,4)}, v{V_L16}, {srdr(SRD_WS)}, s{L0} offen offset:{u*1024} sc1", tag)
    k.add(f"x{p}_{st}", f, "h1", f"xfree{p*8+st-XRN}" if p*8+st >= XRN else None)
def vruns(k):
    out = []
    for lo, hi in ((0, k.nv1), (k.nv1, k.NS)):
        if hi == lo: continue
        assert (hi - lo) % 2 == 0
        m = (hi - lo)//2
        out += [(lo, lo+m, m), (lo+m, hi, -m)]
    return out
def rowoff(st): return 64*(st >> 1) + 8*(st & 1)
def v_item(k, n, q, *g):
    d = [d for lo, hi, d in vruns(k) if lo <= n < hi][0]
    def f(tag):
        if q == 0:
            k(f"s_mul_i32 s{VB+1}, s{S_HALF}, {(rowoff(n+d) - rowoff(n))*7168}")
            k(f"s_add_u32 s{VB+1}, s{VB+1}, s{VB}")
        k(f"s_add_u32 m0, s{S_AREA}, {(n % RING)*4096 + q*1024}")
        k(f"s_add_u32 s{L0}, s{VB+1}, {hex((rowoff(n) + 16*q)*7168)}")
        k.vmem(f"buffer_load_dwordx4 v{V_VD0+(q&1)}, {srdr(SRD_V)}, s{L0} offen {k.o.get('vfl'+k.role,'') if n >= k.NS//2 else ''} lds", tag)
    k.add(f"v{n}", f, f"vfree{n-RING}" if (n >= RING and q == 0) else None, *g)
def h_item(k, p, j):
    n = p*k.NS+j
    r, lo = [(r, lo) for r, (lo, hi, d) in enumerate(vruns(k)) if lo <= j < hi][0]
    def f(tag):
        if j == 0:
            k(f"s_add_u32 s{L2}, s{WT}, {(p % 4)+1}")
            k(f"s_and_b32 s{L2}, s{L2}, 3")
            k(f"s_add_u32 s{L2}, s{L2}, s{MOTH if p < 4 else MOWN}")
            k(f"s_mul_i32 s{L2}, s{L2}, {112*1024}")
        if j == lo: k(f"s_add_u32 s{L0}, s{L2}, s{HB+r}")
        elif (j - lo) % 4 == 0: k(f"s_add_u32 s{L0}, s{L0}, 4096")
        k.vmem(f"buffer_load_dwordx4 {vr(WQ+4*(n % k.HRN),4)}, v{V_L16}, {srdr(SRD_WS)}, s{L0} offen offset:{((j-lo) % 4)*1024} {k.o.get('hfl', 'sc1')}", tag)
    k.add(f"h{p}_{j}", f, "h2a" if (k.role == "A" and p < 4) else "h2")
def pld_ins(jj):
    return f"buffer_load_dwordx4 {vr(PLD+jj*4,4)}, v{V_L16}, {srdr(SRD_WS)}, s{PB} offen offset:{jj*1024} sc1"

def sz_prep(k, j):
    k(f"s_lshl_b32 s{T0}, s{GI+j}, 6")
    k(f"v_lshl_add_u32 v{V_PR+1}, v3, 2, s{T0}")
    for q in range(4):
        k(f"ds_bpermute_b32 v{248+q}, v{V_PR+1}, v{RAW+q}")
    k(f"s_mov_b32 s{T2}, 0x71800000")
    k(f"s_mov_b32 s{T3}, 0xa7000000")
    k("s_waitcnt lgkmcnt(0)")
    for jj in range(4):
        if jj % 2 == 0:
            k(f"v_lshlrev_b32 v{SZ+jj}, 16, v{248+jj//2}")
            k(f"v_lshlrev_b32 v{SZ+4+jj}, 16, v{250+jj//2}")
        else:
            k(f"v_and_b32 v{SZ+jj}, 0xffff0000, v{248+jj//2}")
            k(f"v_and_b32 v{SZ+4+jj}, 0xffff0000, v{250+jj//2}")
    for jj in range(4):
        k(f"v_mul_f32 v{SZ+4+jj}, v{SZ+4+jj}, v{SZ+jj}")
    for jj in range(4):
        k(f"v_mul_f32 v{SZ+jj}, s{T2}, v{SZ+jj}")
        k(f"v_mul_f32 v{SZ+4+jj}, s{T3}, v{SZ+4+jj}")

def events(k):
    if "xrst" in k.vm and "f1" not in k.gates and k.isdone("xrst"):
        k.flag(f"s{FL1}"); k.open("f1"); k.L = k.o.get("Lf1", 24)
    if "f1" in k.gates and "f1done" not in k.gates and k.isdone("flag"):
        k.open("f1done"); k.L = k.o.get("L", 12)
    if "hflag" in k.gates and "f2done" not in k.gates and k.isdone("flag"):
        k.open("f2done"); k.L = k.o.get("LV", 12)
    if "h1" not in k.gates and k.isdone("poll1"):
        k.poll_check("poll1", f"v{V_P1}", f"s{PF1}"); k.open("h1"); k.stamp("h1_seen")
    if "h2a" not in k.gates and k.isdone("poll2a"):
        k.poll_check("poll2a", f"v{V_P2}", f"s{PF1}"); k.open("h2a"); k.stamp("h2_seen")
    if "h2" not in k.gates and k.isdone("poll2"):
        k.poll_check("poll2", f"v{V_P2}", f"s{PF2}"); k.open("h2"); k.stamp("h2_seen" if k.role == "B" else "q_all")

def need(k, tag):
    while tag in [t for t, _, _ in k.stream[k.sp:]]:
        if k.issue_one(force=True): continue
        g = [g for g in k.stream[k.sp][2] if g not in k.gates][0]
        k.wait({"h1": "poll1", "h2": "poll2", "h2a": "poll2a"}[g])
        events(k)
        if k.o.get("gpump", 1): k.pump()
    k.wait(tag)
    events(k)

def dequant_pair(k, pr):
    st, p = pr//4, pr % 4
    if pr % 8 == 0 and f"sz{pr//8}" not in k.gates: sz_prep(k, pr//8)
    need(k, f"q{pr}")
    k.stamp(f"qp{pr}")
    k.pump()
    r0, r1 = qreg(2*pr), qreg(2*pr+1)
    for r in (r0, r1):
        for hh in range(2):
            q = r+2*hh
            k(f"v_pk_fma_f32 v[{q}:{q+1}], v[{q}:{q+1}], v[{SZ+2*hh}:{SZ+2*hh+1}], v[{SZ+4+2*hh}:{SZ+4+2*hh+1}]")
    for jj in range(4):
        k(f"v_cvt_pk_bf16_f32 v{WQ+(st*4+jj)*4+p}, v{r0+jj}, v{r1+jj}")
    k.open(f"qfree{2*pr}"); k.open(f"qfree{2*pr+1}")

def v_fetch(k, n):
    need(k, f"v{n}")
    k.stamp(f"vf{n}")
    if n >= 1 and f"vfree{n-1}" not in k.gates:
        k("s_waitcnt lgkmcnt(0)")
        k.open(f"vfree{n-1}")
    for jj in range(4):
        for h in range(2):
            k(f"ds_read_b64_tr_b16 {vreg(k, n, jj*4+2*h, 2)}, v{V_TR+jj} offset:{(n % RING)*4096 + h*512}")
    k.pump()

def accname(p, jj, own):
    return vr(OWN+jj*4, 4) if own else ar(224+(p % 2)*16+jj*4, 4)
def red_read(k, off):
    for p in range(3):
        for jj in range(4):
            k(f"ds_read_b128 {vr(RT+(p*4+jj)*4,4)}, v{V_RR+p} offset:{off+jj*1024}")

def vpf_item(k, st, q):
    def f(tag):
        if q == 0:
            k(f"s_mul_i32 s{VB+1}, s{S_HALF}, {(rowoff(st+14-k.NS//2) - rowoff(st))*7168}")
            k(f"s_add_u32 s{VB+1}, s{VB+1}, s{PFB}")
        k(f"s_add_u32 s{L0}, s{VB+1}, {hex((rowoff(st) + 16*q)*7168)}")
        k.vmem(f"buffer_load_dwordx4 {vr(STG+4*q,4)}, v{V_P1}, {srdr(SRD_V)}, s{L0} offen", tag)
    k.add(f"pf{st}", f)

def h_stream(k, o):
    for p in range(8):
        for j in range(k.NS):
            if k.role == "A" and p == 3 and j == o.get("p2atA", 1):
                k.add("poll2", k.poll_item(f"v{V_P2}", f"s{PF2}"))
            if p == 7 and j == o.get("tcat", 4):
                for jj in range(4):
                    k.add("pld", (lambda jj: lambda t: k.vmem(pld_ins(jj), t))(jj))
            h_item(k, p, j)

def tail_stream(k, nv1, o, role):
    for p in range(8):
        for st in range(8): xr_item(k, p, st)
    vpre, vmid = o.get("vpre"+role, 4), o.get("vmid"+role, 10)
    p2back = o.get("p2back"+role, 8)
    rest = [(n, q) for n in range(nv1, k.NS) for q in range(4)]
    for i, (n, q) in enumerate(rest):
        if i == len(rest) - p2back:
            k.add("poll2", k.poll_item(f"v{V_P2}", f"s{PF2}"), "hflag")
        v_item(k, n, q, "f2bar" if (i == 0 and o.get("nb", 1)) else None, "hstored" if i == vpre else None, "hflag" if i == vmid else None)
    if p2back == 0: k.add("poll2", k.poll_item(f"v{V_P2}", f"s{PF2}"), "hflag")
    h_stream(k, o)

def q_stream(k, lo, hi, o, role):
    p1pos = o.get("p1pos"+role, 63)
    for n in range(lo, hi):
        if n == p1pos: k.add("poll1", k.poll_item(f"v{V_P1}", f"s{PF1}"), "setup")
        fl = o.get("qfl", "") if (role == "A" or n >= 32) else ""
        q_item(k, n, fl, "xstored" if (role == "A" and n == o.get("qpreA", 99)) else None)

PKA = 0
def adds(d, s_, n=16):
    if PKA: return [f"v_pk_add_f32 v[{d+q}:{d+q+1}], v[{d+q}:{d+q+1}], v[{s_+q}:{s_+q+1}]" for q in range(0, n, 2)]
    return [f"v_add_f32 v{d+q}, v{d+q}, v{s_+q}" for q in range(n)]
def rreads(off): return [f"ds_read_b128 {vr(RT+(p*4+jj)*4,4)}, v{V_RR+p} offset:{off+jj*1024}" for p in range(3) for jj in range(4)]
def hpack(dst, src):
    return [f"v_cvt_pk_bf16_f32 v{dst+f*4+rr*2+hh}, v{src+(2*hh)*4+2*f+rr}, v{src+(2*hh+1)*4+2*f+rr}" for f in range(2) for rr in range(2) for hh in range(2)]

def p2_main(k, nv1, o):
    k.stamp("q_all")
    nb = o.get("nb", 1)
    assert nv1 == 0
    for p in range(8):
        own = (p % 4 == 3)
        for st in range(8):
            need(k, f"x{p}_{st|1 if o.get('w2x', 0) else st}")
            if st == 0: k.stamp(f"p2_{p//2}{'ab'[p % 2]}")
            if p % 4 != 0 and st == 2:
                k.fill(f"ds_write_b128 v{V_RW}, {accname(p-1, jj, False)} offset:{(0 if (nb and p < 4) else P2R)+((p-1) % 4)*4096+jj*1024}" for jj in range(4))
            if p == 7 and st == 3:
                k.fill(["s_waitcnt lgkmcnt(0)", "s_barrier"] + rreads(P2R) + ["s_waitcnt lgkmcnt(4)"] + adds(RT, RT+16) + ["s_waitcnt lgkmcnt(0)"] + adds(RT, RT+32))
            if (p, st) == tuple(o.get("r0at", (3, 6))):
                k.fill(["s_waitcnt lgkmcnt(0)", "s_barrier"] + rreads(0 if nb else P2R) + ["s_waitcnt lgkmcnt(4)"] + adds(RT, RT+16) + ["s_waitcnt lgkmcnt(0)"] + ([] if nb else ["s_barrier"]) + adds(RT, RT+32))
            if (p, st) == tuple(o.get("hpat", (4, 2))):
                k.fill(adds(RT, OWN) + hpack(PK+8, RT))
            if p == 5 and st == 1 and not nb: k.drain()
            if (p, st) == tuple(o.get("hs0at", (5, 1))):
                k.drain()
                k.vmem(f"buffer_store_dwordx4 v[{PK+8}:{PK+11}], v{V_L16}, {srdr(SRD_WS)}, s{HST} offen sc1", "hst0")
                k.vmem(f"buffer_store_dwordx4 v[{PK+12}:{PK+15}], v{V_L16}, {srdr(SRD_WS)}, s{HST} offen offset:1024 sc1", "hst0")
                k(f"s_add_u32 s{HST}, s{HST}, {4*112*1024}")
                k.L += 2
            if (p, st) == tuple(o.get("f2at", (6, 6))):
                k.wait("hst0")
                k.flag(f"s{FL1}")
                k.open("f2bar")
                k.stamp("v1_done")
                k.L -= 1
            for jj in range(4):
                acc = accname(p, jj, own)
                k(f"v_mfma_f32_16x16x32_bf16 {acc}, {vr(WQ+(st*4+jj)*4,4)}, {ar(((p*8+st) % XRN)*4,4)}, {'0' if st == 0 else acc}")
                if jj == 0: k.pump()
                if p == 7: k.drain(1 if st == 2 else 3)
                elif jj: k.drain(o.get('fn2', 3) if p in (3, 4) else 2)
            k.open(f"xfree{p*8+st}")
        if p == 6: k.drain()
    k.drain()
    k.stamp("p2_mfma")
    k("s_nop 4")
    pkadd(k, OWN, RT)
    for x in hpack(PK, OWN): k(x)
    k.vmem(f"buffer_store_dwordx4 v[{PK}:{PK+3}], v{V_L16}, {srdr(SRD_WS)}, s{HST} offen sc1", "hst")
    k.vmem(f"buffer_store_dwordx4 v[{PK+4}:{PK+7}], v{V_L16}, {srdr(SRD_WS)}, s{HST} offen offset:1024 sc1", "hst")
    k.open("hstored")
    k.L = o.get("L", 12) + 4
    k.pump()
    p3_setup(k)
    k.wait("hst")
    k.flag(f"s{FL2}")
    k.stamp("h_flag")
    k.open("hflag")
    k.L = o.get("Lf2", 20)
    k.pump()
    for n in range(nv1, k.NS): v_fetch(k, n)

def p3_main(k, o):
    FN = o.get("fn", 2)
    L3, LH = o.get("L3", 12), min(o.get("L3hi"+k.role, 12), k.HRN-5)
    hiat = o.get("hiat", 2)
    def tagcheck():
        out = []
        for jj in range(4):
            r = PLD+jj*4
            out += [f"v_perm_b32 v{PK}, v{r+1}, v{r}, v{TGV+5}", f"v_perm_b32 v{PK+1}, v{r+3}, v{r+2}, v{TGV+6}",
                    f"v_or_b32 v{PK}, v{PK}, v{PK+1}", f"v_xor_b32 v{PK+2+jj}, s{TAGB}, v{PK}"]
        return out + [f"v_or3_b32 v{PK}, v{PK+2}, v{PK+3}, v{PK+4}", f"v_or_b32 v{PK}, v{PK}, v{PK+5}", f"v_cmp_ne_u32 vcc, 0, v{PK}"]
    k.L = o.get("L3", 12)
    k("s_waitcnt lgkmcnt(0)")
    k.stamp("v_done")
    for p in range(8):
        own = (p % 4 == 3)
        off = 0 if p < 4 else P2R
        for j in range(k.NS):
            n = p*k.NS+j
            need(k, f"h{p}_{j|1 if o.get('w2', 0) else j}")
            if j == 2 and p % 4 != 0:
                for jj in range(4):
                    k.fill([f"ds_write_b128 v{V_RW}, {accname(p-1, jj, False)} offset:{off+((p-1) % 4)*4096+jj*1024}"] + [""]*(FN-1))
            if own and j == o.get('barat'+k.role, 4 if k.NS >= 14 else 3):
                k.fill(["s_waitcnt lgkmcnt(0)", "s_barrier"] + rreads(off) + ["s_waitcnt lgkmcnt(4)"] + adds(RT, RT+16) + ["s_waitcnt lgkmcnt(0)"] + adds(RT, RT+32))
            if p == 7 and j == o.get("tcat", 4):
                assert k.isdone("pld")
                k.fill(tagcheck())
            if p == 7 and j == max(o.get("tcat", 4), o.get('barat'+k.role, 4 if k.NS >= 14 else 3)): k.fill(adds(PLD, RT))
            if p == hiat and j == 0: k.L = LH
            if p == 4 and j == 2:
                k.drain()
                k.fill(adds(RT, OWN) + [f"v_bfi_b32 v{RT+r}, v{TGV+4}, v{TGV+(r % 4)}, v{RT+r}" for r in range(16)])
            for jj in range(4):
                acc = accname(p, jj, own)
                k(f"v_mfma_f32_16x16x32_bf16 {acc}, {vreg(k, j, jj*4, 4)}, {vr(WQ+4*(n % k.HRN),4)}, {'0' if j == 0 else acc}")
                for _ in range(o.get("pad", 0)): k(f"s_mov_b32 s{T2}, 0x12345678")
                if jj == 0: k.pump(o.get("pumpn", 2) if k.L > L3 else 99)
                else: k.drain(o.get("fn7", 3) if p == 7 else FN)
            if p == 4 and j == 7:
                k.drain()
                for jj in range(4):
                    k.vmem(f"buffer_store_dwordx4 {vr(RT+jj*4,4)}, v{V_L16}, {srdr(SRD_WS)}, s{PA} offen offset:{jj*1024} sc1", "pst")
                k.L = LH + 4
                k.stamp("part_st")
            if "pst" in k.vm and k.isdone("pst"): k.L = o.get("L3", 12)
            if j == 0: k.stamp(f"pos{p}")
    k.drain()
    L = k.lab("RETRY"); E = k.lab("RETRYX")
    k(f"s_mov_b32 s{S_CNT}, 0")
    k("s_nop 2")
    k(f"s_cbranch_vccz {E}")
    k.a.label(L)
    for jj in range(4): k(pld_ins(jj))
    k(f"s_add_u32 s{S_CNT}, s{S_CNT}, 1")
    k("s_waitcnt vmcnt(0)")
    for x in tagcheck(): k(x)
    pkadd(k, PLD, RT)
    k(f"s_cmp_gt_u32 s{S_CNT}, 0x40000")
    k(f"s_cbranch_scc1 {E}")
    k(f"s_cbranch_vccnz {L}")
    k.a.label(E)
    k.stamp("p3_mfma")
    k("s_nop 1")
    pkadd(k, OWN, PLD)
    for q in range(8):
        k(f"v_cvt_pk_bf16_f32 v{PK+q}, v{OWN+2*q}, v{OWN+2*q+1}")
    k("s_nop 1")
    for pr in range(2):
        k(f"v_permlane16_swap_b32 v{PK+4*pr}, v{PK+4*pr+2}")
        k(f"v_permlane16_swap_b32 v{PK+4*pr+1}, v{PK+4*pr+3}")
    yfl = o.get("yfl", "")
    for pr in range(2):
        k(f"buffer_store_dwordx4 v[{PK+4*pr}:{PK+4*pr+3}], v5, {srdr(SRD_OUT)}, s{YB} offen offset:{64*pr} {yfl}")
    assert k.sp == len(k.stream)

def cw_setup(a):
    a("s_getpc_b64 s[72:73]")
    a.label("PCREF")
    a(f"s_sub_u32 s72, s72, PCREF-{KNAME}")
    a("s_subb_u32 s73, s73, 0")
    a("v_lshlrev_b32 v240, 7, v0")
    a("v_add_u32 v242, 0x8000, v240")
    a(f"v_min_u32 v242, DONE-{KNAME}, v242")
    a(f"v_min_u32 v240, DONE-{KNAME}, v240")
    a("v_mov_b32 v241, s73")
    a("v_mov_b32 v243, s73")
    a("v_add_co_u32 v240, vcc, s72, v240")
    a("v_addc_co_u32 v241, vcc, 0, v241, vcc")
    a("v_add_co_u32 v242, vcc, s72, v242")
    a("v_addc_co_u32 v243, vcc, 0, v243, vcc")
def cw_go(a):
    a("global_load_dword v244, v[240:241], off")
    a("global_load_dword v245, v[242:243], off")

def line_loop(k, srd_, rowbytes, s_off, count, label, lpr=8, n=8):
    sh = {8: 3, 16: 4}[lpr]
    k(f"v_lshrrev_b32 v5, {sh}, v1")
    k(f"v_mul_u32_u24 v5, {rowbytes}, v5")
    k(f"v_and_b32 v6, {lpr-1}, v1")
    k("v_lshl_add_u32 v5, v6, 4, v5")
    k(f"s_mov_b32 s{S_CNT}, {count}")
    k.a.label(label)
    for t in range(n):
        k(f"buffer_load_dwordx4 {vr(16+t*4,4)}, v5, {srdr(srd_)}, s{s_off} offen")
        k(f"s_add_u32 s{s_off}, s{s_off}, {(64//lpr)*rowbytes}")
    k(f"s_add_u32 s{s_off}, s{s_off}, s{T3}")
    k(f"s_sub_u32 s{S_CNT}, s{S_CNT}, 1")
    k(f"s_cmp_lg_u32 s{S_CNT}, 0")
    k(f"s_cbranch_scc1 {label}")

def help_q(k, rows):
    k(f"s_mul_i32 s{T0}, s{S_XCD}, 7")
    k(f"s_sub_u32 s{T1}, 1, s{T0}")
    k(f"s_and_b32 s{T1}, s{T1}, 3")
    k(f"s_lshl_b32 s{T2}, s{S_HALF}, 2")
    k(f"s_add_u32 s{T2}, s{T2}, s{T1}")
    k(f"s_cmp_lt_u32 s{T2}, 7")
    k(f"s_cselect_b32 s{T1}, s{T2}, s{T1}")
    k(f"s_add_u32 s{T0}, s{T0}, s{T1}")
    k(f"s_lshl_b32 s{T0}, s{T0}, 8")
    k(f"s_add_u32 s{T0}, s{T0}, {(128-rows)*14336}")
    k(f"s_mul_i32 s{T1}, s{S_WAVE}, {256*14336}")
    k(f"s_add_u32 s{T0}, s{T0}, s{T1}")
    k(f"s_mov_b32 s{T3}, {(128-rows)*14336}")
    m = k.o.get("hqm", 0)
    if m == 0:
        line_loop(k, SRD_QW, 14336, T0, 2, "HQ", 16, rows//4)
        return
    k("v_lshrrev_b32 v5, 4, v1")
    k("v_mul_u32_u24 v5, 14336, v5")
    k("v_lshl_add_u32 v5, v3, 4, v5")
    for t in range(rows//4):
        for g in range(2):
            ch = t if m == 1 else rows//4-1-t
            k(f"s_add_u32 s{T1}, s{T0}, {(128*g + 4*ch)*14336}")
            k(f"buffer_load_dwordx4 {vr(16+(2*t+g)*4,4)}, v5, {srdr(SRD_QW)}, s{T1} offen")

def help_v(k, blk0, nblk, label, blk0o, nblko, blk2, nblk2):
    k(f"s_lshr_b32 s{T0}, s{S_XCD}, 1")
    k(f"s_mul_i32 s{T0}, s{T0}, 14")
    k(f"s_sub_u32 s{T1}, 3, s{T0}")
    k(f"s_and_b32 s{T1}, s{T1}, 7")
    k(f"s_lshl_b32 s{T2}, s{S_HALF}, 3")
    k(f"s_add_u32 s{T2}, s{T2}, s{T1}")
    k(f"s_cmp_lt_u32 s{T2}, 14")
    k(f"s_cselect_b32 s{T1}, s{T2}, s{T1}")
    k(f"s_add_u32 s{T0}, s{T0}, s{T1}")
    k(f"s_lshl_b32 s{T0}, s{T0}, 7")
    NA = k.o.get("NA", 16)
    k(f"s_xor_b32 s{L0}, s{T0}, 128")
    k(f"s_mul_i32 s{T1}, s{S_WAVE}, {28-NA}")
    k(f"s_mul_i32 s{T2}, s{S_WAVE}, {NA}")
    k(f"s_add_u32 s{T2}, s{T2}, {112-4*NA}")
    k(f"s_bitcmp1_b32 s{S_XCD}, 0")
    k(f"s_cselect_b32 s{T1}, s{T2}, s{T1}")
    k(f"s_mul_i32 s{T1}, s{T1}, {32*7168}")
    k(f"s_add_u32 s{T0}, s{T0}, s{T1}")
    k(f"s_bitcmp1_b32 s{S_XCD}, 0")
    k(f"s_cselect_b32 s{T1}, {blk0o}, {blk0}")
    k(f"s_cselect_b32 s{T2}, {nblko}, {nblk}")
    k(f"s_cselect_b32 s{T3}, {hex((-2*64*7168 if k.o.get('hback', 1) else 0) & 0xffffffff)}, 0")
    k(f"s_mul_i32 s{T1}, s{T1}, {64*7168}")
    k(f"s_add_u32 s{T0}, s{T0}, s{T1}")
    line_loop(k, SRD_V, 7168, T0, f"s{T2}", label)
    if k.o.get("cw", 0) & 4 and label == "HV15": cw_go(k)
    if k.o.get('deleg', 1) and nblk2:
        k(f"s_bitcmp1_b32 s{S_XCD}, 0")
        k(f"s_cbranch_scc0 {label}X")
        k(f"s_mul_i32 s{T1}, s{S_WAVE}, {(28-NA)*32*7168}")
        k(f"s_add_u32 s{L0}, s{L0}, s{T1}")
        k(f"s_add_u32 s{L0}, s{L0}, {(4*NA*32 + blk2*64)*7168}")
        k(f"s_mov_b32 s{T3}, 0")
        line_loop(k, SRD_V, 7168, L0, nblk2, label+"B")
        k.a.label(label+"X")

def mid_main(k, nv1, vat):
    def vpart():
        for n in range(nv1):
            if n == nv1//2: k.L = k.o.get("L", 12)
            v_fetch(k, n)
        if nv1:
            k("s_waitcnt lgkmcnt(0)")
            k.open(f"vfree{nv1-1}")
    for pr in range(32):
        if pr == vat//2: vpart()
        if pr == 16 and k.role == "B": k.L = k.o.get("L", 12)
        dequant_pair(k, pr)
        if pr == 15: k.stamp("q_half")
    if vat == 64: vpart()

def role_a(a, o):
    k = K(a, o); k.role = "A"; k.NS = o.get("NA", 16); k.HRN = 32 - 4*max(0, k.NS-14); NS = k.NS
    a.label("ROLE_A")
    k(f"s_lshr_b32 s{T0}, s{S_I2}, 1")
    k(f"s_and_b32 s{T1}, s{T0}, 1")
    k(f"s_lshl_b32 s{S_N64}, s{S_XCD}, 1")
    k(f"s_add_u32 s{S_N64}, s{S_N64}, s{T1}")
    k(f"s_lshr_b32 s{T0}, s{T0}, 1")
    k(f"s_lshl_b32 s{S_M32}, s{S_HALF}, 2")
    k(f"s_add_u32 s{S_M32}, s{S_M32}, s{T0}")
    k(f"s_lshl_b32 s{T1}, s{T1}, 1")
    k(f"s_add_u32 s{RHO}, s{S_M32}, s{T1}")
    k(f"s_lshl_b32 s{T0}, s{S_N64}, 7")
    k(f"s_lshl_b32 s{T1}, s{S_WAVE}, 19")
    k(f"s_add_u32 s{T0}, s{T0}, s{T1}")
    dma_voff(k, V_U0, V_U1, 2048, T0)
    k(f"v_lshrrev_b32 v{V_X0}, 3, v1")
    k(f"v_lshlrev_b32 v{V_X0}, 11, v{V_X0}")
    k(f"v_xor_b32 v{V_T2}, v{V_T2}, v2")
    k(f"v_lshl_add_u32 v{V_X0}, v{V_T2}, 4, v{V_X0}")
    k(f"s_lshl_b32 s{T0}, s{S_M32}, 16")
    k(f"s_lshl_b32 s{T1}, s{S_WAVE}, 9")
    k(f"s_add_u32 s{T0}, s{T0}, s{T1}")
    k(f"v_add_u32 v{V_X0}, s{T0}, v{V_X0}")
    k(f"v_xor_b32 v{V_X1}, 64, v{V_X0}")
    k("s_waitcnt lgkmcnt(0)")
    srd(a, SRD_U, 16, U_BYTES)
    srd(a, SRD_X, 8, X_BYTES)
    k(f"s_lshl_b32 s{XST_}, s{S_HALF}, 16")
    def p1_item(jp, i):
        def f(tag):
            if i in (0, 4, 8):
                k(f"s_add_u32 s{L1}, s{RHO}, {jp}")
                k(f"s_and_b32 s{L1}, s{L1}, 3")
            if i == 0: k(f"s_lshl_b32 s{L0}, s{L1}, 7")
            if i in (4, 8):
                k(f"s_lshl_b32 s{L0}, s{L1}, 17")
                if i == 8: k(f"s_add_u32 s{L0}, s{L0}, 0x10000")
                k(f"s_xor_b32 s{L0}, s{L0}, s{XST_}")
            k(f"s_add_u32 m0, s{S_AREA}, {P1R + (jp % 2)*4096 + i*1024 if i < 4 else jp*8192 + (i-4)*1024}")
            if i not in (0, 4, 8): k(f"s_add_u32 s{L0}, s{L0}, 0x4000")
            else: k("s_nop 0")
            if i < 4: k.vmem(f"buffer_load_dwordx4 v{V_X0+(i&1)}, {srdr(SRD_X)}, s{L0} offen lds", tag)
            else: k.vmem(f"buffer_load_dwordx4 v{V_U0+(i&1)}, {srdr(SRD_U)}, s{L0} offen lds", tag)
        k.add(f"p1x{jp//2}" if i < 4 else f"p1u{jp}_{0 if i < 8 else 1}", f, "p1free" if (jp == 2 and i == 0) else None)
    X = lambda jp: [(jp, i) for i in range(4)]
    U = lambda jp, u: [(jp, i) for i in range(4+4*u, 8+4*u)]
    for jp, i in X(0) + X(1) + U(0, 0): p1_item(jp, i)
    for jp, i in U(0, 1) + X(2) + X(3) + U(1, 0) + U(1, 1) + U(2, 0) + U(2, 1) + U(3, 0) + U(3, 1): p1_item(jp, i)
    k.nv1 = 0
    npf = o.get("npfA", 14-NS//2)
    pfat = NS - o.get("pfbackA", 0)
    pford = list(range(npf)) if o.get("pffwd", 0) else list(range(13-NS//2, 13-NS//2-npf, -1))
    def pfs():
        for st in pford:
            for q in range(4): vpf_item(k, st, q)
    for n in range(NS):
        if n == pfat: pfs()
        for q in range(4): v_item(k, n, q, "setup")
    if pfat == NS: pfs()
    k.add("poll2a", k.poll_item(f"v{V_P2}", f"s{PF1}"))
    h_stream(k, o)
    k.pump()
    epoch_load(k)
    srd(a, SRD_V, 18, V_BYTES); srd(a, SRD_OUT, 20, OUT_BYTES); srd(a, SRD_WS, 24, WS_BYTES)
    tr_addrs(k)
    k(f"v_lshrrev_b32 v{V_XR0}, 1, v3")
    k(f"v_xor_b32 v{V_XR0}, v{V_XR0}, v2")
    k(f"v_lshlrev_b32 v{V_XR0}, 4, v{V_XR0}")
    k(f"v_lshl_add_u32 v{V_XR0}, v3, 7, v{V_XR0}")
    k(f"v_add_u32 v{V_XR0}, s{S_AREA}, v{V_XR0}")
    k(f"s_lshl_b32 s{T0}, s{S_HALF}, 6")
    k(f"v_xor_b32 v{V_XR0}, s{T0}, v{V_XR0}")
    k(f"v_xor_b32 v{V_XR1}, 64, v{V_XR0}")
    k(f"v_add_u32 v{V_RW}, s{S_AREA}, v{V_L16}")
    k(f"s_lshl_b32 s{T0}, s{S_WAVE}, 11")
    k(f"s_add_u32 s{T0}, s{T0}, {P1R}")
    k(f"v_add_u32 v{V_RR}, s{T0}, v{V_L16}")
    k(f"v_add_u32 v{V_RR+1}, {hex(2*AREA_SZ)}, v{V_RR}")
    k(f"s_and_b32 s{T1}, s{S_WAVE}, 1")
    k(f"s_lshl_b32 s{T0}, s{S_M32}, 1")
    k(f"s_add_u32 s{T0}, s{T0}, s{T1}")
    k(f"s_lshr_b32 s{T1}, s{S_WAVE}, 1")
    k(f"s_lshl_b32 s{T2}, s{S_N64}, 1")
    k(f"s_add_u32 s{T2}, s{T2}, s{T1}")
    k(f"s_lshl_b32 s{XSO}, s{T0}, 5")
    k(f"s_add_u32 s{XSO}, s{XSO}, s{T2}")
    k(f"s_lshl_b32 s{XSO}, s{XSO}, 10")
    k(f"s_lshl_b32 s{T1}, s{S_HALF}, 4")
    k(f"s_add_u32 s{T1}, s{T1}, s{S_N64}")
    k(f"s_lshl_b32 s{T1}, s{T1}, 2")
    k(f"s_and_b32 s{T0}, s{S_M32}, 3")
    k(f"s_add_u32 s{T1}, s{T1}, s{T0}")
    k(f"s_lshl_b32 s{T1}, s{T1}, 7")
    k(f"s_add_u32 s{FL1}, s{T1}, {hex(F1_OFF)}")
    v_setup(k)
    k.stamp("issue0")
    k.L = o.get("Lp1", 18)
    k.pump()
    A1 = 224
    def acc1(jj, mi): return ar(A1 + (((jj >> 1)*2 + mi)*2 + (jj & 1))*4, 4)
    def xreads(jp0):
        for jp in (jp0, jp0+1):
            for u in range(2):
                for mi in range(2):
                    k(f"ds_read_b128 {ar(((2*jp+u)*2+mi)*4,4)}, v{V_XR0+u} offset:{P1R+(jp % 2)*4096+mi*2048}")
    def ureads(j):
        for jj in range(4):
            for h in range(2):
                k(f"ds_read_b64_tr_b16 {ar(64+(j % 2)*16+jj*4+2*h,2)}, v{V_TR+jj} offset:{j*4096+h*512}")
    k.wait("p1x0")
    xreads(0)
    tag_calc(k)
    k.open("p1free")
    k.pump()
    k.wait("p1u0_0")
    k.stamp("p1s0")
    ureads(0)
    for j in range(8):
        if j == 2: xreads(2)
        if j < 7:
            k.wait(f"p1u{(j+1)//2}_{(j+1) % 2}")
            if j == 6:
                k.stamp("p1_loaded"); k.L = o.get("L", 12)
            k.stamp(f"p1s{j+1}")
            k("s_waitcnt lgkmcnt(0)")
            ureads(j+1)
        else:
            k("s_waitcnt lgkmcnt(0)")
        for jj in range(4):
            for mi in range(2):
                k(f"v_mfma_f32_16x16x32_bf16 {acc1(jj, mi)}, {ar(64+(j % 2)*16+jj*4,4)}, {ar((j*2+mi)*4,4)}, {'0' if j == 0 else acc1(jj, mi)}")
            k.pump(2)
    k(f"s_mov_b32 s{T0}, 0x58000000")
    k(f"v_mov_b32 v{V_X1}, s{T0}")
    k("s_nop 3")
    for q in (0, 2, 1, 3, 4, 6, 5, 7):
        k(f"ds_write_b128 v{V_RW}, {ar(A1+q*4,4)} offset:{P1R+q*1024}")
    k("s_waitcnt lgkmcnt(0)")
    k("s_barrier")
    k.stamp("p1_bar")
    R = 16
    for w in range(4):
        for c in range(2):
            k(f"ds_read_b128 {vr(R+(w*2+c)*4,4)}, v{V_RR+w//2} offset:{(w % 2)*AREA_SZ+c*1024}")
    k("s_waitcnt lgkmcnt(4)")
    pkadd(k, R, R+8, 4)
    k("s_waitcnt lgkmcnt(0)")
    pkadd(k, R+16, R+24, 4)
    pkadd(k, R, R+16, 4)
    for q in range(4):
        d = R+2*q
        k(f"v_pk_mul_f32 v[{d}:{d+1}], v[{d}:{d+1}], v[{V_X1}:{V_X1+1}] op_sel_hi:[1,0]")
    for q in range(4):
        k(f"v_cvt_pk_bf16_f32 v{R+32+q}, v{R+2*q}, v{R+2*q+1}")
    k.vmem(f"buffer_store_dwordx4 v[{R+32}:{R+35}], v{V_L16}, {srdr(SRD_WS)}, s{XSO} offen sc1", "xrst")
    k.stamp("p1_done")
    k(f"s_cmp_lt_u32 s{S_I2}, 14")
    k("s_cbranch_scc1 WORKER_A")
    k("s_waitcnt vmcnt(0)")
    sv = list(k.vm)
    k.flag(f"s{FL1}")
    if o.get("n14", 4): help_v(k, o.get("b14", 3), o.get("n14", 3), "HV14", o.get("b14o", 7), o.get("n14o", 2), o.get("b14d", 3), o.get("n14d", 3))
    k("s_waitcnt vmcnt(0)")
    k("s_branch FINISH")
    k.vm = sv
    a.label("WORKER_A")
    k.open("setup")
    k.L = o.get("LA", 12)
    k.pump(o.get("nxA", 0))
    red_addrs(k, 0)
    p3_setup(k)
    k.wait("xrst")
    k.flag(f"s{FL1}"); k.open("f1"); k.open("f1done")
    k.stamp("h_flag")
    k.pump()
    def pfw():
        for st in pford:
            need(k, f"pf{st}"); k.pump()
    for n in range(NS):
        if n == pfat: pfw()
        v_fetch(k, n)
        if n == 6: k.stamp("q_half")
    k.stamp("v1_done")
    if pfat == NS: pfw()
    p3_main(k, o)
    k(f"s_or_b32 s{T0}, s{S_XCD}, s{S_I2}")
    k(f"s_or_b32 s{T0}, s{T0}, s{S_WAVE}")
    k(f"s_cmp_lg_u32 s{T0}, 0")
    k("s_cbranch_scc1 FINISH")
    k(f"s_add_u32 s{T0}, s{S_EP}, 1")
    k(f"v_mov_b32 v{V_T}, s{T0}")
    k(f"s_lshl_b32 s{T0}, s{S_HALF}, 7")
    k(f"s_add_u32 s{T0}, s{T0}, {hex(EP_OFF)}")
    k("s_mov_b64 exec, 1")
    k(f"buffer_store_dword v{V_T}, v0, {srdr(SRD_WS)}, s{T0} offen sc1")
    k("s_mov_b64 exec, -1")
    k("s_branch FINISH")

def spare_b(k, a, o):
    k("s_waitcnt lgkmcnt(0)")
    srd(a, SRD_V, 18, V_BYTES)
    srd(a, SRD_QW, 10, QW_BYTES)
    if o.get("tw", 0) == 2:
        k("v_lshlrev_b32 v5, 19, v1")
        k(f"buffer_load_dword v251, v5, {srdr(SRD_V)}, 0 offen")
    if o.get("tw", 0) == 1:
        srd(a, SRD_OUT, 20, OUT_BYTES); srd(a, SRD_WS, 24, WS_BYTES)
        for i, off in enumerate((0xC0000, 0x2E0000, 0x3F0000, 0x400000, 0x7C0000)):
            k(f"s_mov_b32 s{T0}, {hex(off)}")
            k(f"buffer_load_dword v{246+i}, v0, {srdr(SRD_WS)}, s{T0} offen")
        k("v_lshlrev_b32 v5, 16, v1")
        k(f"buffer_load_dword v251, v5, {srdr(SRD_OUT)}, 0 offen")
    if o.get("hq", 52): help_q(k, o.get("hq", 52))
    if o.get("cw", 0) & 2: cw_go(k)
    if o.get("n15", 3): help_v(k, o.get("b15", 0), o.get("n15", 3), "HV15", o.get("b15o", 3), o.get("n15o", 4), o.get("b15d", 0), o.get("n15d", 3))
    k("s_waitcnt vmcnt(0)")
    k("s_branch FINISH")

def role_b(a, o):
    k = K(a, o); k.role = "B"; k.NS = 28 - o.get("NA", 16); k.HRN = 32
    k.L = o.get("LB0", 12)
    a.label("ROLE_B")
    k(f"s_cmp_lt_u32 s{S_I2}, 14")
    if o.get("sb", 0): k("s_cbranch_scc0 SPARE_B")
    else:
        k("s_cbranch_scc1 WORKER_B")
        spare_b(k, a, o)
    a.label("WORKER_B")
    role_ids(k)
    q_setup(k, False)
    k("s_waitcnt lgkmcnt(0)")
    srd(a, SRD_QW, 10, QW_BYTES); srd(a, SRD_SC, 12, SC_BYTES); srd(a, SRD_Z, 14, SC_BYTES)
    nv1, vat = o.get("nv1B", 0), o.get("vatB", 32)
    k.nv1 = nv1
    sz_items(k)
    q_stream(k, 0, vat, o, "B")
    for n in range(nv1):
        for q in range(4): v_item(k, n, q, "setup")
    q_stream(k, vat, 64, o, "B")
    tail_stream(k, nv1, o, "B")
    k.pump()
    epoch_load(k)
    srd(a, SRD_V, 18, V_BYTES); srd(a, SRD_OUT, 20, OUT_BYTES); srd(a, SRD_WS, 24, WS_BYTES)
    k("s_setreg_imm32_b32 hwreg(HW_REG_MODE, 4, 2), 3")
    tr_addrs(k)
    v_setup(k)
    p2_setup(k)
    red_addrs(k, 0)
    k.open("setup")
    k.L = o.get("LB1", 16)
    k.pump()
    k.wait("sz")
    tag_calc(k)
    mid_main(k, nv1, vat)
    p2_main(k, nv1, o)
    p3_main(k, o)
    if o.get("sb", 0):
        k("s_branch FINISH" if o.get("stamp") else "s_endpgm")
        a.label("SPARE_B")
        spare_b(k, a, o)

def build(opt):
    global PKA
    PKA = opt.get("pk", 0)
    a = Asm(); K.uid = 0
    a.raw(HEADER.rstrip())
    a.raw(f"; @launch grid=(256,1,1) block=(256,1,1) lds={LDS_BYTES}")
    a.raw('.amdgcn_target "amdgcn-amd-amdhsa--gfx950"')
    kernel_begin(a, KNAME)
    a("s_cmp_ge_u32 s2, 256")
    a("s_cbranch_scc1 DONE")
    if opt.get("stamp"): a(f"{TIMER(opt)} s[92:93]")
    a("s_load_dwordx16 s[8:23], s[0:1], 0")
    a("s_load_dwordx2 s[24:25], s[0:1], 64")
    cw = opt.get("cw", 0)
    if cw:
        lo, hi = opt.get("cwlo", 0), opt.get("cwhi", 240)
        a(f"s_sub_u32 s3, s2, {lo}")
        a(f"s_cmp_lt_u32 s3, {hi-lo}")
        a("s_cbranch_scc1 NOCW")
        cw_setup(a); cw_go(a)
        a.label("NOCW")
    a("v_lshrrev_b32 v4, 6, v0")
    a("v_and_b32 v1, 63, v0")
    a(f"v_readfirstlane_b32 s{S_WAVE}, v4")
    a("v_lshrrev_b32 v2, 4, v1")
    a("v_and_b32 v3, 15, v1")
    a(f"v_lshlrev_b32 v{V_L16}, 4, v1")
    a("v_mov_b32 v0, 0")
    a(f"s_and_b32 s{S_XCD}, s2, 7")
    a(f"s_lshr_b32 s{T0}, s2, 3")
    a(f"s_and_b32 s{S_HALF}, s{T0}, 1")
    a(f"s_lshr_b32 s{S_I2}, s{T0}, 1")
    a(f"s_mul_i32 s{S_AREA}, s{S_WAVE}, {AREA_SZ}")
    a(f"s_bitcmp1_b32 s{S_I2}, 0")
    if opt.get("bfirst", 0):
        a("s_cbranch_scc0 ROLE_A")
        role_b(a, opt)
        role_a(a, opt)
    else:
        a("s_cbranch_scc1 ROLE_B")
        role_a(a, opt)
        role_b(a, opt)
    a.label("FINISH")
    if opt.get("stamp"):
        a("s_waitcnt vmcnt(0)")
        a(f"{TIMER(opt)} s[72:73]")
        a("s_load_dwordx2 s[70:71], s[0:1], 64")
        a("s_waitcnt lgkmcnt(0)")
        srd(a, 76, 70, 1 << 20, STAMP_OFF)
        a("s_lshl_b32 s70, s2, 2")
        a(f"s_add_u32 s70, s70, s{S_WAVE}")
        a("s_lshl_b32 s70, s70, 7")
        regs = [92] + STAMP_REGS[:len(STAMP_NAMES)] + [72]
        a("s_mov_b64 exec, 1")
        for i, r in enumerate(regs):
            a(f"v_mov_b32 v16, s{r}")
            a(f"v_mov_b32 v17, s{r+1}")
            a(f"buffer_store_dwordx2 v[16:17], v0, s[76:79], s70 offen offset:{i*8}")
            a("s_nop 1")
    a.label("DONE")
    a("s_endpgm")
    kernel_desc(a, KNAME, 512, 102, 256)
    return a.text(), ["start"] + stamp_names(opt) + ["end"]

if __name__ == "__main__":
    opt = eval(sys.argv[2]) if len(sys.argv) > 2 else {}
    txt, names = build(opt)
    open(sys.argv[1], "w").write(txt)
    print(len(txt))
```
